```python
import torch

def _softmax(x, axis=-1):
    return torch.softmax(x, dim=axis)
def _gelu(x):
    return torch.nn.functional.gelu(x, approximate="tanh")
def _silu(x):
    return torch.nn.functional.silu(x)
def _sigmoid(x):
    return torch.sigmoid(x)
def _layernorm(x, axis=-1, eps=1e-5):
    m = x.mean(dim=axis, keepdim=True)
    v = x.var(dim=axis, keepdim=True, unbiased=False)
    return (x - m) / torch.sqrt(v + eps)
def _scatter_add(tgt, idx, src, axis=0):
    return tgt.clone().index_add_(axis, idx, src)
def _segment_sum(src, seg, n):
    out = torch.zeros((n,) + src.shape[1:], dtype=src.dtype)
    return out.index_add_(0, seg, src)
def _pad(x, pw):
    flat = tuple(v for pair in reversed(pw) for v in pair)
    return torch.nn.functional.pad(x, flat)

kernel_name = 'sequential_preLN__ssm_conv_s4__glu_gated_bilinear__prompt'

def setup_inputs():

    _w = (lambda a: (lambda t: t.to(torch.bfloat16) if t.is_floating_point() else t)(torch.as_tensor(a)))
    def _A_setup():
        B, L, D, N = 1, 2048, 512, 128
        A_re = -(lambda _x: torch.exp(torch.as_tensor(_x)))((lambda *s: torch.randn(*s, dtype=torch.bfloat16) * 6.4)(D, N))
        A_im = torch.pi * (lambda *s: torch.randn(*s, dtype=torch.bfloat16) * 0.05)(D, N)
        B_re = (lambda *s: torch.randn(*s, dtype=torch.bfloat16) * 0.1)(D, N)
        B_im = (lambda *s: torch.randn(*s, dtype=torch.bfloat16) * 0.1)(D, N)
        C_re = (lambda *s: torch.randn(*s, dtype=torch.bfloat16) * 0.1)(D, N)
        C_im = (lambda *s: torch.randn(*s, dtype=torch.bfloat16) * 0.1)(D, N)
        log_dt = (lambda *s: torch.randn(*s, dtype=torch.bfloat16) * 0.05)(D) * 0.5 - 4.0
        Dskip = (lambda *s: torch.randn(*s, dtype=torch.bfloat16) * 0.05)(D)
        return {
            "u": _w((lambda *s: torch.randn(*s, dtype=torch.bfloat16) * 0.05)(B, L, D)),
            "A_re": _w(A_re),
            "A_im": _w(A_im),
            "B_re": _w(B_re),
            "B_im": _w(B_im),
            "C_re": _w(C_re),
            "C_im": _w(C_im),
            "log_dt": _w(log_dt),
            "Dskip": _w(Dskip),
        }
    _A_in = _A_setup()

    def _B_setup():
        B, S, D, F = 1, 2048, 512, 1792
        return {
            "x": _w((lambda *s: torch.randn(*s, dtype=torch.bfloat16) * 0.05)(B, S, D)),
            "w_gate": _w((lambda *s: torch.randn(*s, dtype=torch.bfloat16) * 0.4)(D, F) * (D ** -0.5)),
            "w_up": _w((lambda *s: torch.randn(*s, dtype=torch.bfloat16) * 0.4)(D, F) * (D ** -0.5)),
            "w_down": _w((lambda *s: torch.randn(*s, dtype=torch.bfloat16) * 0.4)(F, D) * (F ** -0.5)),
        }
    _B_in = _B_setup()

    return {
        "A_u": _A_in["u"],
        "A_A_re": _A_in["A_re"],
        "A_A_im": _A_in["A_im"],
        "A_B_re": _A_in["B_re"],
        "A_B_im": _A_in["B_im"],
        "A_C_re": _A_in["C_re"],
        "A_C_im": _A_in["C_im"],
        "A_log_dt": _A_in["log_dt"],
        "A_Dskip": _A_in["Dskip"],
        "B_x": _B_in["x"],
        "B_w_gate": _B_in["w_gate"],
        "B_w_up": _B_in["w_up"],
        "B_w_down": _B_in["w_down"],
    }

def reference(A_u, A_A_re, A_A_im, A_B_re, A_B_im, A_C_re, A_C_im, A_log_dt, A_Dskip, B_x, B_w_gate, B_w_up, B_w_down):
    def _A_ref(u, A_re, A_im, B_re, B_im, C_re, C_im, log_dt, Dskip):
        Bsz, L, D = u.shape
        dt = torch.exp(log_dt)[:, None]
        A = A_re + 1j * A_im
        Bc = B_re + 1j * B_im
        Cc = C_re + 1j * C_im
        logdA = dt * A
        dB = dt * Bc
        l = (lambda x, dt: x.to(dt))(torch.arange(L), A_re.dtype)
        P = torch.exp(logdA[:, :, None] * l[None, None, :])
        K = torch.einsum("dn,dnl,dn->dl", Cc, P, dB).real
        L2 = 2 * L
        Kp = _pad(K, ((0, 0), (0, L)))
        up = (lambda x, *d: x.permute(*d))(u, 0, 2, 1)
        up = _pad(up, ((0, 0), (0, 0), (0, L)))
        Kf = (lambda x, axes=(-2,-1): torch.fft.rfft2(x.float(), dim=axes))(Kp[:, None, :], axes=(-2, -1))
        Uf = (lambda x, axes=(-2,-1): torch.fft.rfft2(x.float(), dim=axes))(up[:, :, None, :], axes=(-2, -1))
        Yf = Uf * Kf[None, :, :, :]
        y = (lambda x, s, axes=(-2,-1): torch.fft.irfft2(x, s=s, dim=axes).to(torch.bfloat16))(Yf, (1, L2), axes=(-2, -1))[:, :, 0, :L]
        y = (lambda x, *d: x.permute(*d))(y, 0, 2, 1) + u * Dskip[None, None, :]
        return y

    def _B_ref(x, w_gate, w_up, w_down):
        g = torch.einsum("bsd,df->bsf", x, w_gate)
        u = torch.einsum("bsd,df->bsf", x, w_up)
        h = g * u
        return torch.einsum("bsf,fd->bsd", h, w_down)

    x = A_u
    h = x + _A_ref(_layernorm(x, axis=-1), A_A_re, A_A_im, A_B_re, A_B_im, A_C_re, A_C_im, A_log_dt, A_Dskip)
    h2 = h + _B_ref(_layernorm(h, axis=-1), B_w_gate, B_w_up, B_w_down)
    return h2
```

```python
import re
_reg = re.compile(r'(?<![\w.])([vas])(\d+)(?![\w:\]])|(?<![\w.])([vas])\[(\d+):(\d+)\]|(?<![\w.])(vcc|exec|m0)(?:_lo|_hi)?(?![\w])')
def regs_of(op):
    out = set()
    for m in _reg.finditer(op):
        if m.group(1): out.add((m.group(1), int(m.group(2))))
        elif m.group(3):
            for i in range(int(m.group(4)), int(m.group(5)) + 1): out.add((m.group(3), i))
        else: out.add((m.group(6), 0))
    return out
TRANS = ('v_exp_f32', 'v_log_f32', 'v_rcp_f32', 'v_rsq_f32', 'v_sqrt_f32', 'v_sin_f32', 'v_cos_f32', 'v_rcp_iflag_f32')
class Ins:
    def __init__(self, text):
        self.text = text
        t = text.split(';')[0].strip()
        self.kind = None; self.w = set(); self.r = set(); self.mn = ''
        self.a = set(); self.b = set(); self.c = set(); self.data = set()
        if not t or t.endswith(':') or t.startswith('.'):
            self.kind = 'label' if t.endswith(':') else 'none'; return
        p = t.split(None, 1); mn = p[0]; self.mn = mn
        rest = p[1] if len(p) > 1 else ''
        ops = []; depth = 0; cur = ''
        for ch in rest:
            if ch == '[': depth += 1
            if ch == ']': depth -= 1
            if ch == ',' and depth == 0: ops.append(cur.strip()); cur = ''
            else: cur += ch
        if cur.strip(): ops.append(cur.strip())
        self.ops = ops
        R = [regs_of(o) for o in ops]
        allr = set().union(*R) if R else set()
        base = re.sub(r'_(e32|e64|dpp|sdwa)$', '', mn)
        self.base = base
        self.dpp = ('row_' in t or 'quad_perm' in t or 'wave_' in t or mn.endswith('_dpp'))
        if base.startswith('v_mfma'):
            self.kind = 'mfma'; self.w = R[0]; self.a = R[1]; self.b = R[2]; self.c = R[3]; self.r = R[1] | R[2] | R[3]
            self.passes = 8 if '32x32' in base else 4
        elif base.startswith('v_'):
            self.kind = 'valu'
            if (base.startswith('v_permlane') and 'swap' in base) or base == 'v_swap_b32':
                self.w = R[0] | R[1]; self.r = R[0] | R[1]
            elif base.startswith('v_cmpx'):
                self.w = R[0] | {('exec', 0)}; self.r = set().union(*R[1:])
            elif base in ('v_add_co_u32', 'v_sub_co_u32', 'v_addc_co_u32', 'v_subb_co_u32', 'v_mad_u64_u32', 'v_div_scale_f32'):
                self.w = R[0] | R[1]; self.r = set().union(*R[2:])
            elif base == 'v_nop': pass
            else:
                self.w = R[0]; self.r = set().union(*R[1:]) if len(R) > 1 else set()
                if base.startswith(('v_fmac', 'v_pk_fmac', 'v_dot2c', 'v_writelane')) or self.dpp or 'sdwa' in mn or 'UNUSED_PRESERVE' in t: self.r |= R[0]
                if base == 'v_cndmask_b32' and len(ops) == 3: self.r.add(('vcc', 0))
            self.trans = base in TRANS
            self.dot = base.startswith('v_dot')
        elif base.startswith('ds_'):
            self.kind = 'ds'
            if base.startswith(('ds_read', 'ds_bpermute', 'ds_permute', 'ds_swizzle')) or '_rtn' in base:
                self.w = R[0]; self.r = set().union(*R[1:])
                if 'd16' in base: self.r |= R[0]
            else: self.r = allr
        elif base.startswith(('global_', 'buffer_', 'flat_')):
            self.kind = 'vmem'
            self.lds = bool(re.search(r'\blds\b', t)) or '_lds_' in base
            if self.lds: self.r = allr | {('m0', 0)}
            elif 'load' in base:
                self.w = R[0]; self.r = set().union(*R[1:])
            elif 'atomic' in base and re.search(r'\bsc0\b', t) and base.startswith('global'):
                self.w = R[0]; self.r = set().union(*R[1:])
            else:
                self.r = allr
                if 'store' in base and ('x4' in base or 'x3' in base):
                    self.data = R[1] if base.startswith(('global', 'flat')) else R[0]
        elif base.startswith('s_'):
            self.kind = 'salu'
            if base in ('s_nop', 's_waitcnt', 's_barrier', 's_endpgm', 's_branch', 's_setprio', 's_sleep') or base.startswith(('s_cbranch', 's_cmp', 's_bitcmp')):
                self.r = allr
            else:
                self.w = R[0] if R else set(); self.r = set().union(*R[1:]) if len(R) > 1 else set()
                if 'saveexec' in base: self.w = self.w | {('exec', 0)}
        else:
            raise ValueError("unknown instr: " + text)
    def states(self):
        if self.kind in ('label', 'none'): return 0
        if self.mn == 's_nop': return int(self.ops[0], 0) + 1
        return 1
def need(p, c):
    n = 0
    isv = lambda s: {x for x in s if x[0] in 'va' and len(x[0]) == 1}
    iss = lambda s: {x for x in s if x[0] in ('s', 'vcc')}
    if p.kind == 'valu':
        wv = isv(p.w); ws = iss(p.w)
        if c.kind == 'mfma' and wv & c.r: n = max(n, 3 if p.dot else 2)
        if c.kind == 'valu':
            if p.trans and (wv & c.r): n = max(n, 1)
            if p.dot and (wv & (c.r | c.w)) and not (c.base == p.base and not (wv & (c.r - c.w))): n = max(n, 3)
            if c.dpp and (wv & c.r): n = max(n, 2)
            if c.base.startswith('v_permlane') and (wv & c.r): n = max(n, 2)
            if c.base in ('v_readfirstlane_b32', 'v_readlane_b32') and (wv & c.r): n = max(n, 1)
            if ws & c.r: n = max(n, 4 if c.base in ('v_readlane_b32', 'v_writelane_b32', 'v_div_fmas_f32') else 2)
            if ('exec', 0) in p.w:
                if c.dpp: n = max(n, 5)
                if c.base.startswith(('v_readlane', 'v_readfirstlane', 'v_writelane', 'v_permlane')): n = max(n, 4)
            if ('op_sel' in p.text and not p.base.startswith('v_pk_')) or 'sdwa' in p.mn or 'dst_sel' in p.text:
                if wv & (c.r | c.w): n = max(n, 1)
        if c.kind in ('ds', 'vmem') and p.dot and (wv & c.r): n = max(n, 3)
        if c.kind == 'vmem' and ws & c.r: n = max(n, 5)
        if c.kind == 'mfma' and ('exec', 0) in p.w: n = max(n, 4)
        if c.kind == 'salu' and ws & c.r: n = max(n, 1)
    if p.kind == 'salu':
        if ('m0', 0) in p.w and c.kind == 'vmem' and getattr(c, 'lds', False): n = max(n, 1)
    if p.kind == 'vmem' and p.data:
        if c.kind == 'valu' and p.data & c.w: n = max(n, 2)
        elif p.data & c.w: n = max(n, 1)
    if p.kind == 'mfma':
        big = {4: 8, 8: 12}[p.passes]
        if c.kind == 'mfma':
            if p.w & (c.a | c.b): n = max(n, big)
            if p.w & c.c:
                if not (p.w == c.c and p.passes == c.passes): n = max(n, big - 2)
            elif p.w & c.w: n = max(n, big)
        elif c.kind in ('valu', 'ds', 'vmem'):
            if p.w & (c.r | c.w): n = max(n, big)
            if c.kind == 'valu' and p.c & c.w: n = max(n, {4: 3, 8: 7}[p.passes])
    return n
def fix_hazards(lines, verbose=False):
    out = []
    ins = 0
    for text in lines:
        c = Ins(text)
        if c.kind not in ('label', 'none'):
            dist = 0; req = 0
            for p in reversed(out):
                if dist >= 20: break
                if p.kind in ('label', 'none'): continue
                k = need(p, c) - dist
                if k > req: req = k
                dist += p.states()
            if req > 0:
                out.append(Ins(f"  s_nop {req-1}")); ins += req
        out.append(c)
    if verbose: print("inserted wait states:", ins)
    return [i.text for i in out]
class Asm:
    def __init__(self): self.l = []
    def __call__(self, s):
        for x in s.split('\n'):
            x = x.strip()
            if x: self.l.append(('' if x.endswith(':') else '  ') + x)
    def text(self, verbose=False): return '\n'.join(fix_hazards(self.l, verbose)) + '\n'
def vr(b, n=1, k='v'): return f"{k}{b}" if n == 1 else f"{k}[{b}:{b+n-1}]"
def kd(name, vgpr, sgpr=102, accum=None, agpr=0):
    if accum is None: accum = (vgpr + 3) // 4 * 4
    nfv = accum + agpr if agpr else vgpr
    return f""".p2align 6
.amdhsa_kernel {name}
  .amdhsa_next_free_vgpr {nfv}
  .amdhsa_next_free_sgpr {sgpr}
  .amdhsa_accum_offset {accum}
  .amdhsa_group_segment_fixed_size 0
  .amdhsa_kernarg_size 128
  .amdhsa_user_sgpr_count 2
  .amdhsa_user_sgpr_kernarg_segment_ptr 1
  .amdhsa_system_sgpr_workgroup_id_x 1
  .amdhsa_float_denorm_mode_32 3
.end_amdhsa_kernel
"""
def head(name): return f".globl {name}\n.p2align 8\n.type {name},@function\n{name}:\n"
```

```python
import sys, os, struct
from asmlib import *
NAME = "sequential_preLN__ssm_conv_s4__glu_gated_bilinear__prompt"
PROF = bool(os.environ.get("PROF"))
G1 = 0x0; F2 = 0x4000; R2G = 0x8000; F3 = 0x10000
XT = 0x100000; HB = 0x300000; HF = 0x500000
PBUF = 0x2000000
sX, sARE, sAIM, sBRE, sBIM, sCRE, sCIM, sLDT, sDSK, sWG, sWU, sWD, sOUT, sDBG, sWS = \
    16, 18, 20, 22, 24, 26, 28, 30, 32, 36, 38, 40, 42, 44, 46
sNON = 48
SL = [0, 32768, 65536, 98304]; RING = 131072; RD = 7; MISC = 159744; LDS_TOTAL = 163840
CSTR = 11 * 512 + 32; TCH = 8 * CSTR; TAB = 0; TOE = SL[3]; TCP = 4160; UU = TOE + 8 * TCP; UCH = 4608; YY = UU + 2 * UCH
assert YY + 16384 <= MISC and 2 * TCH <= SL[3]
CNT = MISC + 4032
RES = SL[1]; RED = SL[1] + 8192; UP = 131072
DPP = "row_mask:0xf bank_mask:0xf"
SPIN = 1 << 16
def sp(b): return f"s[{b}:{b+1}]"
def pr(b): return f"v[{b}:{b+1}]"
def q4(b): return f"v[{b}:{b+3}]"
def f2u(x): return "0x%08x" % struct.unpack("<I", struct.pack("<f", x))[0]
def wsptr(a, dst, off):
    a(f"s_add_u32 s{dst}, s{sWS}, {hex(off) if isinstance(off, int) else off}"); a(f"s_addc_u32 s{dst+1}, s{sWS+1}, 0")
def srd(a, d, off, size):
    wsptr(a, d, off)
    a(f"s_and_b32 s{d+1}, s{d+1}, 0xffff"); a(f"s_mov_b32 s{d+2}, {hex(size)}"); a(f"s_mov_b32 s{d+3}, 0x00020000")
_st = {}
def stamp(a, i):
    if PROF:
        a("s_memtime s[100:101]"); a("s_waitcnt lgkmcnt(0)"); a(f"v_writelane_b32 v255, s100, {i}")
def stamp_out(a):
    if not PROF: return
    a("s_waitcnt vmcnt(0)")
    stamp(a, 29)
    a("s_memrealtime s[100:101]"); a("s_waitcnt lgkmcnt(0)"); a("v_writelane_b32 v255, s100, 31")
    a("s_lshl_b32 s3, s2, 3"); a("s_add_u32 s3, s3, s10"); a("s_lshl_b32 s3, s3, 7"); a(f"s_add_u32 s3, s3, {hex(PBUF)}")
    a("v_mbcnt_lo_u32_b32 v1, -1, 0"); a("v_lshl_add_u32 v1, v1, 2, s3")
    a("s_mov_b32 exec_hi, 0")
    a(f"global_store_dword v1, v255, {sp(sWS)}")
_lab = [0]
def poll(a, loads, checks, sleep=2, pre=0):
    _lab[0] += 1; n = _lab[0]
    a("s_mov_b64 s[98:99], exec")
    a("s_mov_b32 s97, 0")
    if pre: a(f"s_sleep {pre}")
    a(f"poll{n}:")
    for x in loads: a(x)
    a("s_add_u32 s97, s97, 1")
    a("s_waitcnt vmcnt(0)")
    if len(checks) == 1:
        a(f"v_cmp_ne_u32 vcc, s{sNON}, v{checks[0]}")
    else:
        a(f"v_cmp_ne_u32 vcc, s{sNON}, v{checks[0]}")
        for c in checks[1:]:
            a(f"v_cmp_ne_u32 s[94:95], s{sNON}, v{c}"); a("s_nop 0"); a("s_or_b64 vcc, vcc, s[94:95]")
    a("s_and_b64 exec, exec, vcc")
    a(f"s_cbranch_execz pollx{n}")
    a(f"s_cmp_ge_u32 s97, {SPIN}"); a(f"s_cbranch_scc1 pollx{n}")
    if sleep: a(f"s_sleep {sleep}")
    a(f"s_branch poll{n}")
    a(f"pollx{n}:")
    a("s_mov_b64 exec, s[98:99]")
def get_nonce(a, vt, first_loaded=False):
    _lab[0] += 1; n = _lab[0]
    a("s_mov_b32 s97, 0")
    if first_loaded: a(f"s_branch nonc{n}")
    a(f"non{n}:")
    a(f"v_mov_b32 v{vt+1}, 0")
    a(f"global_load_dword v{vt}, v{vt+1}, {sp(sDBG)} sc1")
    a(f"nonc{n}:")
    a("s_add_u32 s97, s97, 1")
    a("s_waitcnt vmcnt(0)")
    a(f"v_readfirstlane_b32 s{sNON}, v{vt}")
    a(f"s_cmp_ge_u32 s97, {SPIN}"); a(f"s_cbranch_scc1 nonx{n}")
    a(f"s_cmp_eq_u32 s{sNON}, 0"); a(f"s_cbranch_scc1 non{n}")
    a(f"nonx{n}:")
def lds_spin(a, vaddr, vt, target, off=0):
    _lab[0] += 1; n = _lab[0]
    a("s_mov_b32 s97, 0")
    a(f"lsp{n}:")
    a(f"ds_read_b32 v{vt}, v{vaddr} offset:{off}")
    a("s_add_u32 s97, s97, 1")
    a("s_waitcnt lgkmcnt(0)")
    a(f"v_readfirstlane_b32 s96, v{vt}")
    a(f"s_cmp_ge_u32 s97, {SPIN*8}"); a(f"s_cbranch_scc1 lsx{n}")
    a(f"s_cmp_lt_u32 s96, {target}"); a(f"s_cbranch_scc1 lsp{n}")
    a(f"lsx{n}:")
def check_or_poll(a, load, reg, sleep=2):
    _lab[0] += 1; n = _lab[0]
    a(f"v_cmp_ne_u32 vcc, s{sNON}, v{reg}")
    a(f"s_cbranch_vccz cok{n}")
    poll(a, [load], [reg], sleep=sleep)
    a(f"cok{n}:")
def flag_store(a, soff, vt):
    a(f"v_mov_b32 v{vt}, {soff}"); a(f"v_mov_b32 v{vt+1}, s{sNON}")
    a("s_mov_b64 exec, 1")
    a(f"global_store_dword v{vt}, v{vt+1}, {sp(sWS)} sc1")
    a("s_mov_b64 exec, -1")
def ln_final(a, S, Q, M, SD, T):
    a(f"v_mul_f32 v{T}, {f2u(1/512)}, v{S}")
    a(f"v_mul_f32 v{T+1}, {f2u(1/512)}, v{Q}")
    a(f"v_fma_f32 v{T+1}, -v{T}, v{T}, v{T+1}")
    a(f"v_max_f32 v{T+1}, 0, v{T+1}")
    a(f"v_cvt_pk_bf16_f32 v{T}, v{T}, v{T+1}")
    a(f"v_lshlrev_b32 v{M}, 16, v{T}")
    a(f"v_and_b32 v{T+1}, 0xffff0000, v{T}")
    a(f"v_add_f32 v{T+1}, {f2u(1e-5)}, v{T+1}")
    a(f"v_cvt_pk_bf16_f32 v{T+1}, v{T+1}, v{T+1}")
    a(f"v_lshlrev_b32 v{T+1}, 16, v{T+1}")
    a(f"v_sqrt_f32 v{T+1}, v{T+1}")
    a(f"v_cvt_pk_bf16_f32 v{T+1}, v{T+1}, v{T+1}")
    a(f"v_lshlrev_b32 v{SD}, 16, v{T+1}")
def cmul_batch(a, jobs):
    for d, x, y in jobs: a(f"v_pk_mul_f32 {pr(d)}, {pr(x)}, {pr(y)} op_sel:[0,0] op_sel_hi:[1,0]")
    for d, x, y in jobs: a(f"v_pk_fma_f32 {pr(d)}, {pr(x)}, {pr(y)}, {pr(d)} op_sel:[1,1,0] op_sel_hi:[0,1,1] neg_lo:[1,0,0]")

def common_ids(a):
    a("s_and_b32 s14, s2, 7"); a("s_lshl_b32 s3, s14, 5"); a("s_lshr_b32 s5, s2, 3"); a("s_add_u32 s3, s3, s5")
    a("s_mov_b32 s4, 0xffff0000")
def late_ids(a):
    a("s_bfe_u32 s50, s2, 0x20003")
    a("s_lshr_b32 s15, s2, 5")
    if MAP3 == 0:
        a("s_and_b32 s12, s2, 4"); a("s_add_u32 s12, s12, s50")
        a("s_and_b32 s13, s2, 3"); a("s_mul_i32 s13, s13, 7"); a("s_add_u32 s13, s13, s15")
        a("s_mov_b32 s49, s15")
    else:
        a("s_mul_i32 s13, s14, 28"); a("s_lshr_b32 s5, s2, 3"); a("s_add_u32 s13, s13, s5")
        a("s_and_b32 s12, s13, 7"); a("s_lshr_b32 s13, s13, 3")
        a("s_mul_i32 s5, s13, 37"); a("s_lshr_b32 s5, s5, 8"); a("s_mul_i32 s5, s5, 7"); a("s_sub_u32 s49, s13, s5")
    a("s_and_b32 s49, s49, 3")
    def order(lst): return hex(sum(t << (4 * i) for i, t in enumerate(lst)))
    if ORDER == 0: tab = [order([(2 * p + 2 + i) & 7 for i in range(8)]) for p in range(4)]
    else: tab = [order([t for q in [x for x in range(4) if x != p] + [p] for t in (2 * q, 2 * q + 1)]) for p in range(4)]
    a("s_cmp_eq_u32 s49, 1"); a(f"s_mov_b32 s5, {tab[0]}"); a(f"s_cselect_b32 s5, {tab[1]}, s5")
    a("s_cmp_eq_u32 s49, 2"); a(f"s_cselect_b32 s5, {tab[2]}, s5")
    a("s_cmp_eq_u32 s49, 3"); a(f"s_cselect_b32 s49, {tab[3]}, s5")
    a("s_mul_i32 s5, s50, 0x22222222"); a("s_add_u32 s5, s5, 0x10101010")
    a("s_cmp_eq_u32 s15, 7"); a("s_cselect_b32 s12, s14, s12"); a("s_cselect_b32 s49, s5, s49"); a("s_cselect_b32 s13, 0, s13")
    a("s_lshl_b32 s14, s14, 2"); a("s_add_u32 s14, s14, s50")
    a("s_and_b32 s34, s12, 3")

PR = 8; WA = 240
def m_entry(a):
    a("s_lshl_b32 s5, s3, 9")
    a("v_lshl_add_u32 v2, v0, 1, s5")
    a("s_lshl_b32 s5, s3, 2")
    for i in range(6): a(f"v_mov_b32 v{PR+i}, 0")
    a(f"v_mov_b32 v6, {CNT}"); a(f"ds_write_b128 v6, {q4(PR)}")
    a("s_waitcnt lgkmcnt(0)")
    stamp(a, 23)
    for i, p in enumerate((sARE, sAIM, sBRE, sBIM, sCRE, sCIM)):
        a(f"global_load_short_d16_hi v{PR+i}, v2, {sp(p)} {NT}")
    a(f"s_load_dword s6, {sp(sLDT)}, s5")
    a("s_or_b32 s5, s2, s10"); a("s_cmp_lg_u32 s5, 0"); a("s_cbranch_scc1 m_go")
    a("s_or_b32 s5, s92, 1"); a("v_mov_b32 v2, 0"); a("v_mov_b32 v3, s5")
    a("s_mov_b64 exec, 1")
    a(f"global_store_dword v2, v3, {sp(sDBG)} sc1")
    a("s_mov_b64 exec, -1")
    a("m_go:")
    a("s_barrier")
def m_kgen(a):
    a("v_lshrrev_b32 v6, 5, v0"); a(f"v_mul_u32_u24 v6, {UCH}, v6"); a("v_and_b32 v7, 31, v0")
    a("v_lshl_add_u32 v6, v7, 4, v6"); a(f"v_add_u32 v6, {UU}, v6")
    a("v_bfe_u32 v7, v0, 1, 3"); a(f"v_mul_u32_u24 v7, {TCP}, v7"); a("v_and_b32 v40, 1, v0")
    a("v_lshl_add_u32 v7, v40, 4, v7"); a(f"v_add_u32 v7, {TOE}, v7")
    a("v_cmp_gt_u32 vcc, 64, v0")
    for i in range(4): a(f"v_mov_b32 v{36+i}, 0")
    a("v_cndmask_b32 v6, v7, v6, vcc")
    a("ds_write_b128 v6, v[36:39]")
    late_ids(a)
    a("s_lshr_b32 s7, s10, 1")
    a(f"s_mul_i32 s8, s7, {TCH}")
    a("v_and_b32 v7, 127, v0"); a(f"v_lshl_add_u32 v{WA}, v7, 2, s8")
    for c in range(1, 8): a(f"v_add_u32 v{WA+c}, {c*CSTR}, v{WA}")
    a("v_and_b32 v2, 15, v0"); a("v_bfe_u32 v3, v0, 4, 2")
    a(f"s_mul_i32 s9, s7, {4*TCP}"); a(f"s_add_u32 s9, s9, {TOE}")
    a("v_lshl_add_u32 v4, v3, 4, s8")
    def adr(dst, cls, idx):
        a(f"v_mul_u32_u24 v{dst}, {CSTR}, v{cls}"); a(f"v_lshl_add_u32 v{dst}, v{idx}, 9, v{dst}"); a(f"v_add_u32 v{dst}, v{dst}, v4")
    a("v_and_b32 v26, 7, v2"); a("v_lshrrev_b32 v15, 3, v2"); adr(16, 26, 15)
    a("v_and_b32 v6, 3, v2"); a("v_bfe_u32 v7, v2, 2, 1")
    a("v_lshl_add_u32 v20, v2, 5, s9")
    a("v_lshl_add_u32 v21, v3, 9, v20"); a("v_add_u32 v21, 2048, v21")
    a("v_lshrrev_b32 v22, 1, v3"); a("v_lshl_add_u32 v20, v22, 9, v20")
    a("v_and_b32 v22, 1, v3"); a("v_lshl_add_u32 v20, v22, 4, v20")
    a("s_bitcmp1_b32 s10, 0"); a("s_cbranch_scc1 m_adrY")
    a("v_lshl_add_u32 v26, v7, 3, v6")
    a("v_subrev_u32 v27, 1, v6"); a("v_max_i32 v27, 0, v27"); a("v_lshl_add_u32 v27, v7, 2, v27")
    a("v_cmp_eq_u32 vcc, 1, v15")
    a("v_lshlrev_b32 v28, 1, v15"); a("v_sub_u32 v28, 4, v28")
    a("v_cndmask_b32 v26, v26, v27, vcc")
    for t in range(3):
        a("v_and_b32 v27, 3, v26"); a("v_lshl_add_u32 v27, v15, 2, v27"); a("v_lshrrev_b32 v29, 2, v26"); a("v_add_u32 v29, 2, v29")
        adr(17 + t, 27, 29)
        if t < 2: a("v_add_u32 v26, v26, v28")
    a("s_branch m_adrJ")
    a("m_adrY:")
    a("v_lshl_add_u32 v26, v7, 1, v6")
    a("v_and_b32 v27, 3, v26"); a("v_lshl_add_u32 v27, v15, 2, v27")
    a("v_lshrrev_b32 v29, 2, v26"); a("v_lshlrev_b32 v28, 1, v15"); a("v_sub_u32 v29, v29, v28"); a("v_add_u32 v29, 7, v29")
    adr(17, 27, 29)
    a("v_lshl_add_u32 v27, v15, 2, v6"); a("v_sub_u32 v29, v7, v28"); a("v_add_u32 v29, 9, v29")
    adr(18, 27, 29)
    a("v_add_u32 v20, 1024, v20")
    a("m_adrJ:")
    a("v_add_u32 v4, 1, v2")
    a("v_and_b32 v5, 3, v4"); a(f"v_mul_u32_u24 v5, {TCP}, v5")
    a("v_lshrrev_b32 v4, 2, v4"); a("v_lshl_add_u32 v5, v4, 3, v5")
    a("v_lshlrev_b32 v4, 4, v3"); a("v_sub_u32 v5, v5, v4")
    a("s_and_b32 s8, s10, 1"); a("s_lshl_b32 s8, s8, 8")
    a("s_add_u32 s9, s9, s8"); a("s_add_u32 s9, s9, 48")
    a("v_add_u32 v23, s9, v5")
    a(f"s_mul_i32 s9, s7, {UCH}"); a(f"s_add_u32 s9, s9, {UU+480-192}"); a("s_sub_u32 s9, s9, s8")
    a("v_lshl_add_u32 v24, v2, 5, v4"); a("v_add_u32 v24, s9, v24")
    a("v_lshrrev_b32 v4, 1, v3"); a("v_bfe_u32 v5, v2, 2, 1"); a("v_xor_b32 v4, v4, v5"); a("v_lshl_add_u32 v4, v2, 1, v4")
    a("v_and_b32 v5, 1, v3"); a("v_lshlrev_b32 v5, 3, v5"); a("v_lshl_add_u32 v25, v4, 4, v5")
    a("s_lshl_b32 s8, s10, 12"); a(f"s_add_u32 s8, s8, {YY}"); a("v_add_u32 v25, s8, v25")
    stamp(a, 24)
    a("s_waitcnt lgkmcnt(0)")
    a("s_lshl_b32 s8, s6, 16"); a("s_and_b32 s9, s6, 0xffff0000")
    a("s_cmp_ge_u32 s10, 2"); a("s_cselect_b32 s8, s9, s8")
    a(f"v_mov_b32 v7, {f2u(1.4426950408889634)}")
    a("v_mul_f32 v40, s8, v7")
    a("v_exp_f32 v40, v40")
    a("v_cvt_pk_bf16_f32 v40, v40, v40")
    a("v_lshlrev_b32 v40, 16, v40")
    a("s_waitcnt vmcnt(0)")
    stamp(a, 1)
    a(f"v_mul_f32 v41, v40, v{PR}"); a(f"v_mul_f32 v42, v40, v{PR+1}")
    a("v_mul_f32 v41, v41, v7")
    a("v_mul_f32 v42, 0.15915494, v42")
    a(f"v_mul_f32 v{PR+2}, v40, v{PR+2}"); a(f"v_mul_f32 v{PR+3}, v40, v{PR+3}")
    S = {i: 44 + 2 * (i - 1) for i in range(1, 19)}
    E = {p: 80 + 2 * i for i, p in enumerate((32, 64, 128, 256, 512, 768, 1024, 1280, 1536, 1792))}
    C = {j: 100 + 2 * j for j in range(16)}
    T = 132; CV = 160
    a("v_mov_b32 v31, 0"); a(f"global_load_dword v30, v31, {sp(sDBG)} sc1")
    V = []
    cvi = [0]
    def put(kind, k, reg):
        if kind == 'c': cls, idx = k & 7, k >> 3
        elif kind == 'r1': cls, idx = k & 3, 2 + (k >> 2)
        elif kind == 'r2': cls, idx = 4 + (k & 3), 2 + (k >> 2)
        elif kind == 'r4': cls, idx = 4 * k[0] + (k[1] & 3), 7 - 2 * k[0] + (k[1] >> 2)
        else: cls, idx = 4 * (k[0] >> 1) + k[1], 9 - 2 * (k[0] >> 1) + (k[0] & 1)
        t = CV + cvi[0]; cvi[0] += 1
        if reg is None: V.append(f"v_mov_b32 v{t}, 0x00003f80")
        else: V.append(f"v_cvt_pk_bf16_f32 v{t}, v{reg}, {'-' if kind == 'c' else ''}v{reg+1}")
        V.append(('put', cls, idx, t))
    class A2:
        def __call__(self, x): V.append(x)
    v = A2()
    D = [(S[1], 1.0), (S[16], 16.0), (E[256], 256.0)]
    for i, (d, p) in enumerate(D):
        if p == 1.0:
            v(f"v_exp_f32 v{T+3*i}, v41"); v(f"v_fract_f32 v{T+3*i+1}, v42")
        else:
            v(f"v_mul_f32 v{T+3*i}, {f2u(p)}, v41"); v(f"v_mul_f32 v{T+3*i+1}, {f2u(p)}, v42")
            v(f"v_exp_f32 v{T+3*i}, v{T+3*i}"); v(f"v_fract_f32 v{T+3*i+1}, v{T+3*i+1}")
    for i, (d, p) in enumerate(D):
        v(f"v_cos_f32 v{d}, v{T+3*i+1}"); v(f"v_sin_f32 v{d+1}, v{T+3*i+1}")
    cmul_batch(v, [(C[0], PR + 4, PR + 2)])
    put('r1', 0, None)
    for i, (d, p) in enumerate(D):
        v(f"v_mul_f32 v{d}, v{d}, v{T+3*i}"); v(f"v_mul_f32 v{d+1}, v{d+1}, v{T+3*i}")
    put('c', 0, C[0])
    cmul_batch(v, [(S[2], S[1], S[1]), (E[32], S[16], S[16]), (E[512], E[256], E[256]), (C[1], C[0], S[16]), (S[17], S[16], S[1])])
    put('r1', 1, S[1]); put('r1', 16, S[16]); put('r2', 0, E[256])
    cmul_batch(v, [(S[4], S[2], S[2]), (E[64], E[32], E[32]), (E[1024], E[512], E[512]), (S[3], S[2], S[1])])
    put('r1', 17, S[17]); put('r4', (0, 0), E[512]); put('r1', 2, S[2]); put('c', 1, C[1])
    cmul_batch(v, [(E[768], E[512], E[256]), (C[2], C[0], E[32]), (C[3], C[1], E[32]), (S[18], S[16], S[2])])
    put('r1', 4, S[4]); put('r8', (0, 0), E[1024]); put('r1', 3, S[3])
    cmul_batch(v, [(S[8], S[4], S[4]), (E[128], E[64], E[64]), (S[5], S[4], S[1]), (S[6], S[4], S[2])])
    put('r4', (1, 0), E[768]); put('c', 2, C[2]); put('c', 3, C[3]); put('r1', 18, S[18])
    jobs = [((S[7], S[4], S[3]), ('r1', 7)), ((E[1280], E[1024], E[256]), ('r8', (1, 0))), ((E[1536], E[1024], E[512]), ('r8', (2, 0))),
            ((E[1792], E[1024], E[768]), ('r8', (3, 0)))]
    jobs += [((C[4 + i], C[i], E[64]), ('c', 4 + i)) for i in range(4)]
    jobs += [((S[8 + i], S[8], S[i]), ('r1', 8 + i)) for i in range(1, 8)]
    jobs += [((T + 2 * (i - 1), E[256], S[2 * i]), ('r2', i)) for i in (1, 2, 3, 4, 8, 9)]
    jobs += [((C[8 + i], C[i], E[128]), ('c', 8 + i)) for i in range(8)]
    jobs += [((T + 2 * (i - 1), E[256], S[2 * i]), ('r2', i)) for i in (5, 6, 7)]
    jobs += [((C[4 * b + i - 1], E[512 + 256 * b], S[4 * i]), ('r4', (b, i))) for b in range(2) for i in range(1, 5)]
    jobs += [((C[8 + 2 * g + i - 1], E[1024 + 256 * g], S[8 * i]), ('r8', (g, i))) for g in range(4) for i in range(1, 3)]
    pend = [((S[8],), ('r1', 8)), ((S[5],), ('r1', 5)), ((S[6],), ('r1', 6))]
    for b0 in range(0, len(jobs), 4):
        bt = jobs[b0:b0+4]
        cmul_batch(v, [j[0] for j in bt])
        for j in pend: put(j[1][0], j[1][1], j[0][0])
        pend = bt
    for j in pend: put(j[1][0], j[1][1], j[0][0])
    assert cvi[0] == 67
    waiting = {}; ready = []; since = 0
    for x in V:
        if isinstance(x, tuple):
            _, cls, idx, t = x
            if cls in waiting:
                i0, t0 = waiting.pop(cls); ready.append(f"ds_write2st64_b32 v{WA+cls}, v{t0}, v{t} offset0:{2*i0} offset1:{2*idx}")
            else: waiting[cls] = (idx, t)
            continue
        a(x); since += 1
        if ready and since >= DSGAP:
            y = ready.pop(0); since = 0
            if not os.environ.get("NODS"): a(y)
    stamp(a, 25)
    for x in ready: a(x)
    for cls, (idx, t) in waiting.items(): a(f"ds_write_b32 v{WA+cls}, v{t} offset:{512*idx}")
    a(f"s_lshl_b32 s8, s7, 2"); a(f"s_add_u32 s8, s8, {CNT+4}"); a("v_mov_b32 v26, s8"); a("v_mov_b32 v27, 1")
    a("s_mov_b64 exec, 1"); a("ds_add_u32 v26, v27"); a("s_mov_b64 exec, -1")
    stamp(a, 2)
    lds_spin(a, 26, 27, 2)
    stamp(a, 3)
    BF = 44; AF = 76; ACC = 172
    def copies(vals, dst, off, tmp):
        for c in range(4):
            for p in range(4): a(f"v_cvt_pk_bf16_f32 v{tmp+4*c+p}, v{vals[c+2*p]}, v{vals[c+2*p+1]}")
            a(f"ds_write_b128 v{dst}, {q4(tmp+4*c)} offset:{32+c*TCP+off}")
    def genmm(nt):
        for ks in range(8):
            a(f"ds_read_b128 {q4(BF+4*ks)}, v16 offset:{64*ks}")
            for t in range(nt): a(f"ds_read_b128 {q4(AF+4*(nt*ks+t))}, v{17+t} offset:{64*ks}")
        for ks in range(8):
            a(f"s_waitcnt lgkmcnt({min(15, (nt+1)*(7-ks))})")
            for t in range(nt):
                a(f"v_mfma_f32_16x16x32_bf16 {q4(ACC+4*t)}, {q4(AF+4*(nt*ks+t))}, {q4(BF+4*ks)}, {q4(ACC+4*t) if ks else 0}")
    a("s_bitcmp1_b32 s10, 0"); a("s_cbranch_scc1 m_waveY")
    genmm(3)
    stamp(a, 4)
    a("s_nop 7")
    a("s_mov_b32 exec_lo, 0x80000000"); a("s_mov_b32 exec_hi, 0")
    a(f"v_mov_b32 v{ACC+9}, v{ACC+8}")
    a("s_mov_b32 exec_lo, 0"); a("s_mov_b32 exec_hi, 0x80000000")
    a(f"v_mov_b32 v{ACC+10}, v{ACC+9}")
    a("s_mov_b64 exec, -1")
    copies([ACC + i for i in range(11)], 20, 0, AF)
    a(f"v_cvt_pk_bf16_f32 v13, 0, v{ACC}")
    a("s_mov_b64 exec, 1")
    a(f"ds_write_b32 v20, v13 offset:{1*TCP+28}")
    a(f"ds_write_b32 v20, v{AF} offset:{2*TCP+28}")
    a(f"ds_write_b32 v20, v13 offset:{3*TCP+24}")
    a(f"ds_write_b32 v20, v{AF+4} offset:{3*TCP+28}")
    a("s_mov_b64 exec, -1")
    a("s_branch m_join")
    a("m_waveY:")
    genmm(2)
    stamp(a, 4)
    copies([ACC + i for i in (0, 0, 0, 1, 1, 1, 2, 2, 2, 2, 2)], 20, 0, AF)
    v8 = [ACC + 4 + i for i in [0] * 5 + [1] * 7 + [2] * 7]
    copies(v8[0:11], 21, 0, AF + 16); copies(v8[8:19], 21, 16, AF + 32)
    a("m_join:")
    m_setup(a)
    a("s_waitcnt lgkmcnt(0)")
    stamp(a, 5)
    a("s_barrier")
    stamp(a, 6)
def m_conv(a):
    Y = 32; FA = [64, 128]; FB = [96, 160]
    def reads(r):
        s = r & 1; L = []
        for p in range(8):
            L.append(f"ds_read_b64 {pr(FA[s]+4*p)}, v23 offset:{64*(8*p+r)}")
            L.append(f"ds_read_b64 {pr(FA[s]+4*p+2)}, v23 offset:{64*(8*p+r)+8}")
            L.append(f"ds_read_b128 {q4(FB[s]+4*p)}, v24 offset:{512*p+64*(3-r)}")
        return L
    for x in reads(0): a(x)
    order = sorted([(p, c2) for p in range(8) for c2 in range(8 - p)], key=lambda x: (max(x), x))
    for r in range(4):
        s = r & 1
        nxt = reads(r + 1) if r < 3 else []
        first = set(); have = -1; issued = 0
        if r > 0: a("s_waitcnt lgkmcnt(0)")
        for i, (p, c2) in enumerate(order):
            c = p + c2
            if r == 0 and max(p, c2) > have:
                have = max(p, c2)
                a(f"s_waitcnt lgkmcnt({min(15, 3*(7-have) + issued)})")
            src = q4(Y + 4 * c) if (r > 0 or c in first) else "0"
            first.add(c)
            a(f"v_mfma_f32_16x16x32_bf16 {q4(Y+4*c)}, {q4(FA[s]+4*p)}, {q4(FB[s]+4*c2)}, {src}")
            k = i - (8 if r == 0 else 0)
            if 0 <= k < len(nxt): a(nxt[k]); issued += 1
    stamp(a, 7)
    for c in (0, 1, 2, 3, 4, 5, 6, 7):
        a(f"v_cvt_pk_bf16_f32 v{64+2*c}, v{Y+4*c}, v{Y+4*c+1}"); a(f"v_cvt_pk_bf16_f32 v{65+2*c}, v{Y+4*c+2}, v{Y+4*c+3}")
        a(f"ds_write_b64 v25, {pr(64+2*c)} offset:{512*c}")
    a("s_waitcnt lgkmcnt(0)")
    a("s_barrier")
    stamp(a, 8)
SO = 64
def so(i): return f"s{SO+i}"
def warm1(a):
    a("s_lshr_b32 s5, s2, 3"); a("s_and_b32 s5, s5, 15"); a("s_lshl_b32 s5, s5, 1"); a("s_lshr_b32 s7, s11, 1"); a("s_add_u32 s5, s5, s7")
    a("s_mul_i32 s5, s5, 57344")
    if MAP3:
        a("s_mul_i32 s6, s14, 28"); a("s_lshr_b32 s6, s6, 3")
        a("v_and_b32 v28, 3, v0"); a("v_add_u32 v28, s6, v28"); a("v_min_u32 v28, 27, v28"); a("v_bfe_u32 v29, v0, 2, 4")
    else:
        a("s_and_b32 s6, s14, 3"); a("s_mul_i32 s6, s6, 7")
        a("v_and_b32 v28, 7, v0"); a("v_min_u32 v28, 6, v28"); a("v_add_u32 v28, s6, v28"); a("v_bfe_u32 v29, v0, 3, 3")
    a("v_mul_u32_u24 v29, 3584, v29"); a("v_lshl_add_u32 v28, v28, 7, v29"); a("v_add_u32 v28, s5, v28"); a("v_add_u32 v29, 28672, v28")
    a("s_waitcnt lgkmcnt(0)")
    a("s_bitcmp1_b32 s11, 0"); a(f"s_cselect_b32 s8, s{sWU}, s{sWG}"); a(f"s_cselect_b32 s9, s{sWU+1}, s{sWG+1}")
    a("s_barrier")
    if WDLY: a(f"s_sleep {WDLY}")
    if WARM: a(f"global_load_dword v253, v28, s[8:9] {WNT}")
    if WARM and not MAP3: a(f"global_load_dword v252, v29, s[8:9] {WNT}")
def warm2(a):
    a("s_lshl_b32 s5, s14, 2"); a("s_add_u32 s5, s5, s11"); a("s_mul_i32 s5, s5, 14336")
    a("v_lshl_add_u32 v28, v2, 7, s5"); a(f"global_load_dword v252, v28, {sp(sWD)}")
    a("v_min_u32 v28, 47, v2"); a("s_add_u32 s5, s5, 8192"); a("v_lshl_add_u32 v28, v28, 7, s5"); a(f"global_load_dword v253, v28, {sp(sWD)}")
def m_setup(a):
    get_nonce(a, 30, first_loaded=True)
    a("s_add_u32 s51, s50, 4"); a("s_min_u32 s51, s51, 6")
    a("s_cmp_ge_u32 s15, 5"); a("s_cselect_b32 s8, 4096, 0"); a("s_cselect_b32 s5, 5, 0"); a("s_sub_u32 s5, s15, s5")
    for b in range(7):
        if b < 5:
            a("s_cmp_ge_u32 s5, s50"); a("s_addc_u32 s6, s5, 0")
            a("s_cmp_ge_u32 s6, s51"); a("s_addc_u32 s6, s6, 0")
            a("s_lshl_b32 s6, s6, 13")
            if b < 4: a("s_add_u32 s5, s5, 1"); a("s_cmp_eq_u32 s5, 5"); a("s_cselect_b32 s5, 0, s5")
        else: a(f"s_lshl_b32 s6, s{51 if b == 5 else 50}, 13")
        a(f"s_or_b32 {so(4*b)}, s6, s8")
        for t in range(1, 4): a(f"s_xor_b32 {so(4*b+t)}, {so(4*b)}, {2048*t}")
    a("s_lshl_b32 s5, s12, 18"); a(f"s_add_u32 s5, s5, {hex(HB)}"); srd(a, 52, "s5", 0x40000)
    a("s_mul_i32 s5, s11, 458752"); a("s_lshl_b32 s6, s15, 7"); a("s_add_u32 s5, s5, s6")
    a(f"s_add_u32 s56, s{sWD}, s5"); a(f"s_addc_u32 s57, s{sWD+1}, 0"); a("s_and_b32 s57, s57, 0xffff"); a(f"s_mov_b32 s58, {458752-896}"); a("s_mov_b32 s59, 0x00020000")
    a("s_mul_i32 s6, s14, 112"); a("s_mul_i32 s5, s11, 28"); a("s_add_u32 s6, s6, s5"); a("s_lshl_b32 s6, s6, 11"); a(f"s_add_u32 s6, s6, {hex(HF)}")
    srd(a, 60, "s6", 57344)
    a("s_add_u32 s16, s11, s34"); a("s_and_b32 s16, s16, 3")
    a("s_lshl_b32 s17, s16, 13")
    a("s_lshl_b32 s18, s11, 13")
NREG = 16; W2R = 96
class VM:
    def __init__(self, a): self.a = a; self.q = []
    def add(self, tag, n=1): self.q.extend([tag] * n); assert len(self.q) <= 63
    def wait(self, tag, upto=None):
        ks = [j for j, x in enumerate(self.q) if x == tag]
        if not ks: return
        k = ks[-1] if upto is None else ks[upto - 1]
        self.a(f"s_waitcnt vmcnt({len(self.q)-1-k})"); del self.q[:k+1]
    def drained(self): self.q = []
def m_phaseC(a):
    vm = VM(a)
    a("v_and_b32 v2, 63, v0"); a("v_lshlrev_b32 v3, 4, v2")
    a("v_lshrrev_b32 v5, 3, v2"); a("v_bfe_u32 v6, v2, 4, 1"); a("v_lshlrev_b32 v6, 2, v6"); a("v_and_b32 v4, 7, v2"); a("v_xor_b32 v4, v4, v6")
    a("v_lshlrev_b32 v4, 4, v4"); a("v_lshl_add_u32 v4, v5, 10, v4")
    AREA = [SL[3], SL[3] + 4096, UP, UP + 4096, SL[0], SL[0] + 4096]
    where = {}
    def w2dma(st, base):
        for i in range(2):
            a(f"s_lshl_b32 s5, {so(2*st+i)}, 3"); a(f"s_add_u32 m0, s18, {base+2048*i}"); a("s_add_u32 s6, s5, 7168")
            a(f"buffer_load_dwordx4 v4, s[56:59], s5 offen lds"); a(f"buffer_load_dwordx4 v4, s[56:59], s6 offen offset:1024 lds")
        vm.add(f"w{st}", 4); where[st] = base
    a("v_bfe_u32 v5, v2, 2, 2"); a("v_lshrrev_b32 v6, 5, v2"); a("v_lshl_add_u32 v6, v6, 2, v5"); a("v_lshlrev_b32 v8, 7, v6")
    a("v_lshrrev_b32 v5, 1, v5"); a("s_and_b32 s5, s11, 1"); a("v_xor_b32 v5, s5, v5"); a("v_lshl_add_u32 v8, v5, 6, v8")
    a("v_and_b32 v5, 1, v2"); a("v_lshl_add_u32 v8, v5, 5, v8"); a("v_bfe_u32 v5, v2, 4, 1"); a("v_lshl_add_u32 v8, v5, 4, v8")
    a("v_bfe_u32 v5, v2, 1, 1"); a("v_lshl_add_u32 v8, v5, 3, v8"); a("v_add_u32 v8, s18, v8")
    a("v_xor_b32 v9, 64, v8")
    a(f"v_add_u32 v12, {SL[3]}, v8"); a(f"v_add_u32 v13, {SL[3]}, v9")
    a("s_lshr_b32 s5, s11, 1"); a("s_lshl_b32 s5, s5, 10"); a("v_add_u32 v10, s5, v3"); a("v_xor_b32 v11, 1024, v10")
    a("s_lshr_b32 s5, s12, 1"); a("s_lshl_b32 s5, s5, 12"); a("s_lshl_b32 s6, s16, 10"); a("s_add_u32 s5, s5, s6"); a(f"s_add_u32 s5, s5, {hex(F2)}")
    a("v_add_u32 v5, s5, v3")
    def w2read(dst, base, i):
        hi = base >= SL[3]; o = base - (SL[3] if hi else 0) + 2048 * i
        for d in range(2):
            for h in range(2): a(f"ds_read_b64_tr_b16 {pr(dst+4*d+2*h)}, v{(12 if hi else 8)+d} offset:{o+1024*h}")
    freeA = list(AREA); st = {"f": 0, "g": 0}
    def w2grab():
        g = st["g"]; st["g"] += 1
        vm.wait(f"w{g}")
        for i in range(2): w2read(W2R + 8 * (2 * g + i), where[g], i)
        a("s_waitcnt lgkmcnt(0)")
        freeA.append(where[g])
    def w2step():
        if st["f"] >= 14: return
        if not freeA: w2grab()
        w2dma(st["f"], freeA.pop(0)); st["f"] += 1
    a("s_barrier")
    for k in range(W2PRE): w2step()
    stamp(a, 9)
    poll(a, [f"global_load_dword v6, v5, {sp(sWS)} sc1"], [6], sleep=2, pre=P2PRE)
    vm.drained()
    stamp(a, 10)
    def hdma(j, lo=0, hi=8):
        if lo == 0: a("s_and_b32 s19, s49, 7"); a("s_lshl_b32 s19, s19, 15"); a("s_add_u32 s19, s19, s17"); a("s_lshr_b32 s49, s49, 4"); a("s_add_u32 s20, s19, 4096")
        for i in range(lo, hi):
            if i == lo or i == 4: a(f"s_add_u32 m0, s18, {SL[1+(j&1)]+4096*(i//4)}")
            a(f"buffer_load_dwordx4 v3, s[52:55], s{19+i//4} offen offset:{1024*(i%4)} sc1 lds")
        vm.add(f"h{j}", hi - lo)
    hdma(0)
    vm.wait("h0", upto=3); a("s_barrier")
    stamp(a, 11)
    hdma(1, 0, 3)
    vm.wait("h0"); a("s_barrier")
    hdma(1, 3, 8)
    for j in range(1, 8):
        if j >= 2:
            hdma(j)
            for k in range(W2SCH[j - 2]): w2step()
            while st["g"] < min(8, st["f"] - W2SCH[j - 2]): w2grab()
        vm.wait(f"h{j}"); a("s_barrier")
        if j == 4: stamp(a, 12)
    while st["f"] < 14: w2step()
    while st["g"] < 8: w2grab()
    stamp(a, 16)
    return vm, where, w2read
def m_phaseD(a, vm, where, w2read):
    ACC = 16; RG = [80, 88, 224, 232, 240]
    a("s_lshr_b32 s5, s14, 2"); a("s_mul_i32 s5, s5, 28"); a("s_mul_i32 s6, s11, 7"); a("s_add_u32 s5, s5, s6"); a("s_lshl_b32 s5, s5, 6"); a(f"s_add_u32 s5, s5, {hex(F3)}")
    a("v_min_u32 v5, 27, v2"); a("v_lshl_add_u32 v5, v5, 4, s5")
    poll(a, [f"global_load_dword v6, v5, {sp(sWS)} sc1"], [6], sleep=2, pre=P3PRE)
    vm.drained()
    stamp(a, 17)
    slot = {}; free = list(RG); WL = {}
    def hload(i):
        b = free.pop(0); slot[i] = b
        a(f"buffer_load_dwordx4 {q4(b)}, v10, s[60:63], {so(i)} offen sc1")
        a(f"buffer_load_dwordx4 {q4(b+4)}, v11, s[60:63], {so(i)} offen sc1")
        vm.add(i, 2)
    nxt = 0
    for i in range(5): hload(i); nxt += 1
    a("v_cmp_gt_u32 vcc, 4, v2"); a("v_mov_b32 v5, s50"); a("v_mov_b32 v6, s51"); a("v_cndmask_b32 v5, v5, v6, vcc")
    a("v_and_b32 v6, 3, v2"); a("v_lshl_add_u32 v5, v5, 2, v6"); a("s_add_u32 s5, s5, 0x8000"); a("v_lshl_add_u32 v5, v5, 4, s5")
    a("s_lshl_b32 s6, s14, 1"); a("s_lshr_b32 s7, s11, 1"); a("s_add_u32 s19, s6, s7")
    a("s_lshl_b32 s20, s15, 6"); a("s_and_b32 s7, s11, 1"); a("s_lshl_b32 s7, s7, 5"); a("s_add_u32 s20, s20, s7")
    a("s_lshl_b32 s5, s19, 15"); a("s_lshl_b32 s7, s20, 6"); a("s_add_u32 s5, s5, s7"); a(f"s_add_u32 s5, s5, {hex(HB)}")
    srd(a, 52, "s5", 2048)
    a("s_lshl_b32 s21, s11, 11"); a(f"s_add_u32 s21, s21, {RES}")
    a("v_bfe_u32 v14, v2, 2, 2"); a("v_lshrrev_b32 v7, 5, v2"); a("v_lshl_add_u32 v14, v7, 4, v14"); a("v_lshlrev_b32 v14, 6, v14")
    a("v_bfe_u32 v7, v2, 4, 1"); a("v_lshl_add_u32 v14, v7, 5, v14"); a("v_and_b32 v7, 3, v2"); a("v_lshl_add_u32 v14, v7, 3, v14")
    a("v_add_u32 v14, s21, v14")
    a("s_lshl_b32 s5, s19, 8"); a(f"s_add_u32 s5, s5, {hex(R2G)}")
    a("v_and_b32 v15, 31, v2"); a("v_lshl_add_u32 v15, v15, 3, s5")
    a("s_lshl_b32 s5, s19, 15"); a("s_lshl_b32 s7, s20, 1"); a("s_add_u32 s5, s5, s7")
    a("v_and_b32 v4, 15, v2"); a("v_lshlrev_b32 v4, 10, v4"); a("v_lshrrev_b32 v7, 4, v2"); a("v_lshl_add_u32 v4, v7, 4, v4"); a("v_add_u32 v4, s5, v4")
    HR = W2R + 32; HP = W2R + 48; SR = W2R + 56
    for i in range(28):
        vm.wait(i)
        if i >= NREG: a(f"s_waitcnt lgkmcnt({4 if i + 1 < 28 else 0})")
        wb = W2R + 8 * i if i < NREG else WL[i]
        for j in range(4):
            c = f"v[{ACC+16*j}:{ACC+16*j+15}]"
            a(f"v_mfma_f32_32x32x16_bf16 {c}, {q4(wb+4*(j&1))}, {q4(slot[i]+4*(j>>1))}, {c if i else 0}")
        free.append(slot[i])
        if not (4 <= i < 8): free.append(wb)
        if i == 8:
            a("s_barrier")
            a("s_mov_b32 m0, s21")
            a("buffer_load_dwordx4 v3, s[52:55], 0 offen sc1 lds"); a("buffer_load_dwordx4 v3, s[52:55], 0 offen offset:1024 sc1 lds"); vm.add("r", 2)
            a(f"global_load_dwordx2 {pr(SR)}, v15, {sp(sWS)} sc1"); vm.add("g")
            a(f"global_load_dword v6, v5, {sp(sWS)} sc1"); vm.add("f")
        if i + 2 >= NREG and i + 2 < 28:
            b = free.pop(0); WL[i + 2] = b; w2read(b, where[(i + 2) // 2], (i + 2) % 2)
        want = min(28, i + 1 + HDEP)
        while nxt < want and free:
            if nxt == 20:
                vm.wait("f")
                check_or_poll(a, f"global_load_dword v6, v5, {sp(sWS)} sc1", 6, sleep=1)
            hload(nxt); nxt += 1
        if i == 14: stamp(a, 18)
    stamp(a, 19)
    for k in range(4): a(f"ds_read_b64_tr_b16 {pr(HP+2*k)}, v14 offset:{256*k}")
    for j in range(1, 4):
        a(f"s_xor_b32 s6, s11, {j}"); a("s_mul_i32 s6, s6, 12288"); a(f"s_add_u32 s6, s6, {RED}"); a("v_add_u32 v12, s6, v3")
        for q in range(4): a(f"ds_write_b128 v12, {q4(ACC+16*j+4*q)} offset:{4096*(j-1)+1024*q}")
    a("s_mul_i32 s6, s11, 12288"); a(f"s_add_u32 s6, s6, {RED}"); a("v_add_u32 v13, s6, v3")
    a("v_add_u32 v7, 16384, v4")
    check_or_poll(a, f"global_load_dwordx2 {pr(SR)}, v15, {sp(sWS)} sc1", SR + 1, sleep=1)
    a("s_waitcnt lgkmcnt(12)")
    for k in range(8): a(f"v_lshlrev_b32 v{HR+2*k}, 16, v{HP+k}"); a(f"v_and_b32 v{HR+2*k+1}, s4, v{HP+k}")
    a("s_waitcnt lgkmcnt(0)"); a("s_barrier")
    stamp(a, 20)
    O = ACC; P = 160
    for j in range(3):
        for q in range(4): a(f"ds_read_b128 {q4(P+16*j+4*q)}, v13 offset:{4096*j+1024*q}")
    for j in range(3):
        a(f"s_waitcnt lgkmcnt({4*(2-j)})")
        for p in range(8): a(f"v_pk_add_f32 {pr(O+2*p)}, {pr(O+2*p)}, {pr(P+16*j+2*p)}")
    for p in range(8): a(f"v_pk_fma_f32 {pr(O+2*p)}, {pr(O+2*p)}, {pr(SR)}, {pr(HR+2*p)} op_sel:[0,0,0] op_sel_hi:[1,0,1]")
    for p in range(8): a(f"v_cvt_pk_bf16_f32 v{80+p}, v{O+2*p}, v{O+2*p+1}")
    for p in range(4): a(f"v_permlane16_swap_b32 v{80+p}, v{84+p}")
    a(f"global_store_dwordx4 v4, {q4(80)}, {sp(sOUT)} {OUTFL}")
    a(f"global_store_dwordx4 v7, {q4(84)}, {sp(sOUT)} {OUTFL}")
    stamp(a, 21)

def x_entry(a):
    T = 16
    a("v_and_b32 v2, 63, v0")
    a("s_lshl_b32 s6, s5, 14")
    a("v_lshrrev_b32 v5, 4, v2"); a("v_and_b32 v9, 15, v2")
    a("v_lshlrev_b32 v3, 12, v5"); a("v_lshl_add_u32 v3, v9, 4, v3")
    a("s_lshl_b32 s7, s11, 8"); a("s_add_u32 s7, s7, s6"); a("v_add_u32 v3, s7, v3")
    a("s_waitcnt lgkmcnt(0)")
    stamp(a, 23)
    for i in range(4): a(f"global_load_dwordx4 {q4(T+4*i)}, v3, {sp(sX)} offset:{1024*i} {NT}")
    a("s_barrier")
    stamp(a, 24)
def h_xrole(a):
    T = 16; F = 48; R = 64
    a("v_lshlrev_b32 v4, 8, v9"); a("v_lshl_add_u32 v4, v5, 4, v4")
    a("s_lshl_b32 s7, s11, 12"); a("s_add_u32 s7, s7, s6"); a(f"s_add_u32 s7, s7, {hex(XT)}"); a("v_add_u32 v4, s7, v4")
    a("s_lshl_b32 s7, s11, 7"); a(f"s_add_u32 s7, s7, {MISC}"); a("v_lshl_add_u32 v10, v2, 1, s7")
    a("v_and_b32 v8, 7, v2"); a("v_lshlrev_b32 v8, 4, v8"); a(f"v_add_u32 v11, {MISC}, v8")
    a(f"v_mov_b32 v12, {CNT}"); a("v_mov_b32 v13, 1"); a("v_mov_b32 v7, 0")
    a("s_lshl_b32 s6, s5, 7"); a(f"s_add_u32 s6, s6, {hex(G1)}")
    a("v_add_u32 v8, s6, v8")
    stamp(a, 25)
    a("s_waitcnt vmcnt(4)")
    stamp(a, 26)
    a("s_waitcnt vmcnt(0)")
    stamp(a, 27)
    for i in range(4):
        for e in range(i + 1, 4): a(f"v_swap_b32 v{T+4*i+e}, v{T+4*e+i}")
        a(f"global_store_dwordx4 v4, {q4(T+4*i)}, {sp(sWS)} offset:{64*i} sc1")
    stamp(a, 1)
    a(f"global_load_dword v6, v7, {sp(sDBG)} sc1")
    a("s_mov_b32 s7, 0x3f803f80")
    for j in range(4):
        for r in range(4):
            o = R + 4 * (r >> 1) + (r & 1)
            a(f"v_dot2_f32_bf16 v{o}, v{T+4*j+r}, s7, {('v%d' % o) if j else 0}")
            a(f"v_dot2_f32_bf16 v{o+2}, v{T+4*j+r}, v{T+4*j+r}, {('v%d' % (o+2)) if j else 0}")
    for k in range(4): a(f"v_add_f32_dpp v{R+k}, v{R+k}, v{R+k} row_ror:8 row_mask:0xf bank_mask:0x3")
    for k in range(4): a(f"v_add_f32_dpp v{R+k}, v{R+4+k}, v{R+4+k} row_ror:8 row_mask:0xf bank_mask:0xc")
    for k in range(2): a(f"v_add_f32_dpp v{R+k}, v{R+k}, v{R+k} row_half_mirror row_mask:0xf bank_mask:0x5")
    for k in range(2): a(f"v_add_f32_dpp v{R+k}, v{R+2+k}, v{R+2+k} row_half_mirror row_mask:0xf bank_mask:0xa")
    for ctl in ("quad_perm:[1,0,3,2]", "quad_perm:[2,3,0,1]"):
        for k in range(2): a(f"v_add_f32_dpp v{R+k}, v{R+k}, v{R+k} {ctl} {DPP}")
    a("s_mov_b32 exec_lo, 0x11111111"); a("s_mov_b32 exec_hi, 0x11111111")
    a(f"ds_write_b64 v10, {pr(R)}")
    a("s_mov_b64 exec, 1")
    a("ds_add_u32 v12, v13")
    a("s_mov_b64 exec, -1")
    lds_spin(a, 12, 14, 4)
    for w in range(4): a(f"ds_read_b128 {q4(F+4*w)}, v11 offset:{128*w}")
    a("s_waitcnt lgkmcnt(0)")
    for k in range(2):
        a(f"v_pk_add_f32 {pr(F+2*k)}, {pr(F+2*k)}, {pr(F+4+2*k)}"); a(f"v_pk_add_f32 {pr(F+8+2*k)}, {pr(F+8+2*k)}, {pr(F+12+2*k)}")
    for k in range(2): a(f"v_pk_add_f32 {pr(F+2*k)}, {pr(F+2*k)}, {pr(F+8+2*k)}")
    b0 = Asm(); b1 = Asm()
    ln_final(b0, F, F + 2, 72, 76, 80); ln_final(b1, F + 1, F + 3, 73, 77, 82)
    for x, y in zip(b0.l, b1.l): a(x); a(y)
    a("v_rcp_f32 v76, v76"); a("v_rcp_f32 v77, v77")
    a("v_lshrrev_b32 v72, 16, v72"); a("v_or_b32 v78, v72, v73")
    stamp(a, 22)
    get_nonce(a, 6, first_loaded=True)
    a(f"v_mov_b32 v79, s{sNON}")
    a("s_mov_b64 exec, 1")
    a("ds_add_rtn_u32 v14, v12, v13")
    a("s_waitcnt lgkmcnt(0)")
    a("v_readfirstlane_b32 s7, v14")
    a("s_mov_b64 exec, 0xff")
    a("s_cmp_lg_u32 s7, 7"); a("s_cbranch_scc1 x_nost")
    a(f"global_store_dwordx4 v8, v[76:79], {sp(sWS)} sc1")
    a("x_nost:")
    a("s_mov_b64 exec, -1")
    stamp(a, 2)
    if XPRE: a(f"s_sleep {XPRE}")
XF = 224; W1R = 96
def h_u(a):
    GL = 112; GR = 128; XR = 144; W = 160; UPK = 184; MM = 192; RR = 200
    late_ids(a)
    a("v_and_b32 v2, 63, v0"); a("v_lshlrev_b32 v3, 4, v2")
    a("s_lshl_b32 s5, s13, 7")
    for m, p in enumerate((sWG, sWU)):
        d = 52 + 4 * m
        a(f"s_add_u32 s{d}, s{p}, s5"); a(f"s_addc_u32 s{d+1}, s{p+1}, 0"); a(f"s_and_b32 s{d+1}, s{d+1}, 0xffff")
        a(f"s_mov_b32 s{d+2}, {511*3584+128}"); a(f"s_mov_b32 s{d+3}, 0x00020000")
    a("v_lshrrev_b32 v5, 3, v2"); a("v_mul_u32_u24 v5, 3584, v5"); a("v_bfe_u32 v6, v2, 4, 1"); a("v_lshlrev_b32 v6, 1, v6")
    a("v_and_b32 v10, 7, v2"); a("v_xor_b32 v10, v10, v6"); a("v_xor_b32 v11, 4, v10")
    a("v_lshl_add_u32 v10, v10, 4, v5"); a("v_lshl_add_u32 v11, v11, 4, v5")
    a("s_lshl_b32 s18, s11, 13"); a("s_mul_i32 s19, s11, 114688"); a("s_mov_b32 s20, s34")
    a("v_bfe_u32 v5, v2, 2, 2"); a("v_lshrrev_b32 v6, 4, v2"); a("v_lshlrev_b32 v12, 10, v6"); a("v_lshl_add_u32 v12, v5, 7, v12")
    a("v_lshrrev_b32 v5, 1, v5"); a("v_and_b32 v6, 1, v6"); a("v_lshl_add_u32 v5, v6, 1, v5"); a("v_xor_b32 v5, s11, v5"); a("v_lshl_add_u32 v12, v5, 5, v12")
    a("v_and_b32 v5, 3, v2"); a("v_lshl_add_u32 v12, v5, 3, v12"); a("v_add_u32 v13, 65536, v12")
    a(f"v_mov_b32 v14, {CNT}"); a("v_mov_b32 v1, 1"); a("s_mov_b32 s21, 0x3f803f80")
    a("v_bfe_u32 v5, v0, 3, 1"); a("v_xor_b32 v5, v5, v0"); a("v_lshlrev_b32 v5, 4, v5"); a(f"v_add_u32 v240, {YY}, v5")
    a("v_lshrrev_b32 v6, 2, v0"); a("v_lshlrev_b32 v6, 15, v6"); a("v_and_b32 v7, 3, v0"); a("v_lshl_add_u32 v6, v7, 4, v6")
    a("s_lshl_b32 s5, s3, 7"); a(f"s_add_u32 s5, s5, {hex(HB)}"); a("v_add_u32 v241, s5, v6")
    a("s_lshl_b32 s22, s11, 12"); a("s_lshl_b32 s5, s3, 4"); a("s_add_u32 s22, s22, s5"); a(f"s_add_u32 s22, s22, {hex(F2)}")
    a("s_lshl_b32 s5, s11, 12"); a("v_add_u32 v5, s5, v3")
    a(f"v_add_u32 v8, {YY}, v5"); a(f"s_add_u32 s5, s5, {YY}"); a("v_lshl_add_u32 v9, v2, 6, s5")
    if G1: a(f"v_add_u32 v5, {hex(G1)}, v5")
    a("v_lshrrev_b32 v6, 1, v0"); a("v_lshlrev_b32 v6, 14, v6"); a("v_and_b32 v7, 1, v0"); a("v_lshl_add_u32 v6, v7, 5, v6")
    a("s_lshl_b32 s5, s3, 6"); a(f"s_add_u32 s5, s5, {hex(XT)}"); a("v_add_u32 v6, s5, v6")
    a("s_lshl_b32 s5, s3, 2")
    a(f"s_load_dword s7, {sp(sDSK)}, s5")
    a("v_lshlrev_b32 v15, 4, v0"); a(f"v_add_u32 v7, {UU+512}, v15")
    stamp(a, 3)
    poll(a, [f"global_load_dwordx4 {q4(GL+4*p)}, v5, {sp(sWS)} offset:{1024*p} sc1" for p in range(4)], [GL + 4 * p + 3 for p in range(4)], sleep=1, pre=P1PRE)
    stamp(a, 4)
    a(f"global_load_dwordx4 {q4(XR)}, v6, {sp(sWS)} sc1")
    a(f"global_load_dwordx4 {q4(XR+4)}, v6, {sp(sWS)} offset:16 sc1")
    for p in range(4): a(f"ds_write_b128 v8, {q4(GL+4*p)} offset:{1024*p}")
    for p in range(4): a(f"ds_read_b128 {q4(GR+4*p)}, v9 offset:{16*p}")
    a("s_waitcnt lgkmcnt(0)")
    a("s_lshl_b32 s72, s7, 16"); a("s_mov_b32 s73, s72"); a("s_and_b32 s74, s7, 0xffff0000"); a("s_mov_b32 s75, s74")
    for p in range(4):
        a(f"v_lshlrev_b32 v{MM+2*p}, 16, v{GR+4*p+2}"); a(f"v_and_b32 v{MM+2*p+1}, s4, v{GR+4*p+2}")
    for p in range(4): a(f"v_pk_mul_f32 {pr(MM+2*p)}, {pr(MM+2*p)}, {pr(GR+4*p)} neg_lo:[1,0] neg_hi:[1,0]")
    a("s_waitcnt vmcnt(0)")
    stamp(a, 5)
    for j in range(8):
        a(f"v_lshlrev_b32 v{XF+j}, 16, v{XR+j}"); a(f"v_and_b32 v{XF+8+j}, s4, v{XR+j}")
    cp = [(ch, p) for ch in range(2) for p in range(4)]
    for i, (ch, p) in enumerate(cp): a(f"v_pk_fma_f32 {pr(W+2*i)}, {pr(XF+8*ch+2*p)}, {pr(GR+4*p)}, {pr(MM+2*p)}")
    for i, (ch, p) in enumerate(cp):
        a(f"v_cvt_pk_bf16_f32 v{UPK+4*ch+3-p}, v{W+2*i+1}, v{W+2*i}")
        if p == 3: a(f"ds_write_b128 v7, {q4(UPK+4*ch)} offset:{UCH*ch}")
    a("s_waitcnt lgkmcnt(0)")
    stamp(a, 6)
    a("s_barrier")
    return [f"v_pk_fma_f32 {pr(XF+2*i)}, {pr(W+2*i)}, s[{72+2*ch}:{73+2*ch}], {pr(XF+2*i)}" for i, (ch, p) in enumerate(cp)]
def h_phaseB(a, deferred):
    vm = VM(a)
    a(f"s_setprio {BPRIO}")
    def dma(c, slot):
        a("s_and_b32 s5, s20, 3"); a("s_mul_i32 s5, s5, 458752"); a("s_add_u32 s5, s5, s19"); a("s_add_u32 s20, s20, 1")
        for o in range(4):
            a(f"s_add_u32 m0, s18, {SL[slot]+2048*o}")
            a(f"buffer_load_dwordx4 v10, s[52:55], s5 offen {DNT} lds")
            a(f"s_add_u32 m0, s18, {SL[slot]+2048*o+1024}")
            a(f"buffer_load_dwordx4 v11, s[56:59], s5 offen {DNT} lds")
            if o < 3: a("s_add_u32 s5, s5, 28672")
        vm.add(c, 8)
    a("s_cmp_eq_u32 s15, 7"); a("s_cbranch_scc1 h_spB")
    dma(0, 0)
    dma(1, 1); dma(2, 2)
    for x in deferred: a(x)
    SM = 80
    nsy = [0]
    def sync(c):
        vm.wait(c)
        a("s_mov_b64 exec, 1"); a("ds_add_u32 v14, v1 offset:12"); a("s_mov_b64 exec, -1")
        nsy[0] += 1
        lds_spin(a, 14, 4, 4 * nsy[0], off=12)
    def grab(c, slot):
        for ks in range(8):
            for h in range(2): a(f"ds_read_b64_tr_b16 {pr(W1R+32*c+4*ks+2*h)}, v{12+slot//2} offset:{(slot%2)*32768+4096*ks+512*h}")
    def sums(c):
        for k in range(32): a(f"v_dot2_f32_bf16 v{SM+k%4}, v{W1R+32*c+k}, s21, {('v%d' % (SM+k%4)) if (c or k >= 4) else 0}")
    stamp(a, 7)
    sync(1); grab(0, 0); grab(1, 1)
    stamp(a, 19)
    sync(2); dma(3, 0); grab(2, 2)
    stamp(a, 8)
    a("s_branch h_spJ")
    a("h_spB:")
    if WARM2: warm2(a)
    for x in deferred: a(x)
    a("h_spJ:")
    stamp(a, 9)
    a("s_setprio 2")
    a("s_barrier")
    stamp(a, 10)
    R = 16; U = 32
    for w in range(4): a(f"ds_read_b128 {q4(R+4*w)}, v240 offset:{4096*w}")
    for ch in range(2):
        a(f"s_waitcnt lgkmcnt({2*(1-ch)})")
        for hlf in range(2):
            for p in range(4):
                a(f"v_lshlrev_b32 v{U+8*hlf+2*p}, 16, v{R+8*ch+4*hlf+p}"); a(f"v_and_b32 v{U+8*hlf+2*p+1}, s4, v{R+8*ch+4*hlf+p}")
        for p in range(4): a(f"v_pk_add_f32 {pr(U+2*p)}, {pr(U+2*p)}, {pr(U+8+2*p)}")
        for p in range(4): a(f"v_pk_add_f32 {pr(U+2*p)}, {pr(U+2*p)}, {pr(XF+8*ch+2*p)}")
        for p in range(4): a(f"v_cvt_pk_bf16_f32 v{48+4*ch+p}, v{U+2*p}, v{U+2*p+1}")
        a(f"global_store_dwordx4 v241, {q4(48+4*ch)}, {sp(sWS)} offset:{64*ch} sc1"); vm.add("s")
    stamp(a, 11)
    a("s_cmp_eq_u32 s15, 7"); a("s_cbranch_scc1 h_spare")
    sync(3); grab(3, 0); sums(0); sums(1)
    a("s_waitcnt vmcnt(0)"); flag_store(a, "s22", 8); stamp(a, 12)
    a("s_waitcnt lgkmcnt(0)")
    a("s_barrier")
    sums(2); sums(3)
    a(f"v_pk_add_f32 {pr(SM)}, {pr(SM)}, {pr(SM+2)}"); a(f"v_add_f32 v{SM}, v{SM}, v{SM+1}"); a(f"v_mov_b32 v{SM+1}, v{SM}")
    a(f"v_permlane32_swap_b32 v{SM}, v{SM+1}"); a(f"v_add_f32 v{SM}, v{SM}, v{SM+1}"); a(f"v_mul_f32 v{SM}, {f2u(-1/512)}, v{SM}")
    a("s_mov_b32 s8, 0x00003f80"); a("s_mov_b32 s9, 0x3f800000")
KORD = [8 * (n & 3) + (n >> 2) for n in range(32)]
def center(ks):
    SM = 80; T = 224 + 8 * (KORD.index(ks) & 1); L = []
    for j in range(4):
        L.append(f"v_dot2_f32_bf16 v{T+2*j}, v{W1R+4*ks+j}, s8, v{SM}"); L.append(f"v_dot2_f32_bf16 v{T+2*j+1}, v{W1R+4*ks+j}, s9, v{SM}")
    M = [f"v_cvt_pk_bf16_f32 v{W1R+4*ks+j}, v{T+2*j}, v{T+2*j+1}" for j in range(4)]
    return L, M
def h_addr(a):
    a("v_bfe_u32 v6, v2, 2, 2"); a("v_lshrrev_b32 v8, 5, v2"); a("v_lshl_add_u32 v6, v8, 3, v6"); a("v_lshlrev_b32 v6, 6, v6")
    a("v_bfe_u32 v7, v2, 4, 1"); a("v_lshl_add_u32 v6, v7, 5, v6"); a("v_and_b32 v7, 3, v2"); a("v_lshl_add_u32 v12, v7, 3, v6")
    a("v_add_u32 v13, 65536, v12")
def h_phaseC(a):
    pend = []
    for n in range(32):
        L, M = center(KORD[n])
        for x in L[:4] + pend + L[4:]: a(x)
        pend = M
    for x in pend: a(x)
    a("s_lshl_b32 s5, s12, 2"); a("s_mul_i32 s5, s5, 112"); a("s_lshl_b32 s6, s13, 2"); a("s_add_u32 s5, s5, s6"); a("s_add_u32 s5, s5, s11")
    a("s_lshl_b32 s5, s5, 11"); a(f"s_add_u32 s5, s5, {hex(HF)}"); srd(a, 60, "s5", 4 * 229376)
    a("s_mul_i32 s22, s12, 28"); a("s_add_u32 s22, s22, s13"); a("s_lshl_b32 s22, s22, 2"); a("s_add_u32 s22, s22, s11")
    a("s_lshl_b32 s22, s22, 4"); a(f"s_add_u32 s22, s22, {hex(F3)}")
    stamp(a, 13)
    ACC = [16, 32]; BF = 48; NB = 8; PK = 80; LEAD = HLEAD
    def acc(i): return f"v[{ACC[i]}:{ACC[i]+15}]"
    def bread(g):
        j, n = divmod(g, 32); sl = 1 + (j & 1); r = BF + 4 * (g % NB)
        for h in range(2): a(f"ds_read_b64_tr_b16 {pr(r+2*h)}, v{12+sl//2} offset:{(sl%2)*32768+1024*KORD[n]+256*h}")
    def epi(ai):
        b = ACC[ai]; L = []
        for q in range(4):
            if EPK: L.append(f"v_pk_mul_f32 {pr(b+2*q)}, {pr(b+2*q)}, {pr(b+8+2*q)}")
            else: L.append(f"v_mul_f32 v{b+2*q}, v{b+2*q}, v{b+8+2*q}\nv_mul_f32 v{b+2*q+1}, v{b+2*q+1}, v{b+9+2*q}")
        L.append("s_and_b32 s5, s49, 7\ns_lshr_b32 s6, s5, 1\ns_mul_i32 s6, s6, 229376")
        for q in range(4): L.append(f"v_cvt_pk_bf16_f32 v{PK+q}, v{b+2*q}, v{b+2*q+1}")
        L.append("s_and_b32 s5, s5, 1\ns_lshl_b32 s5, s5, 10\ns_add_u32 s5, s5, s6\ns_lshr_b32 s49, s49, 4")
        L.append(f"buffer_store_dwordx4 {q4(PK)}, v3, s[60:63], s5 offen sc1")
        return L
    a("s_barrier")
    stamp(a, 14)
    BARN = 32 - BLEAD
    avail = 12; rd = 0
    while rd < LEAD: bread(rd); rd += 1
    for g in range(256):
        j, n = divmod(g, 32)
        bar = (g == 12 - BLEAD) or (n == BARN and j < 7)
        if bar:
            key = {12 - BLEAD: 20, BARN: 22, 128 + BARN: 24, 160 + BARN: 26}.get(g)
            assert rd == avail
            if g != 12 - BLEAD: a("s_waitcnt lgkmcnt(0)")
            if key and os.environ.get("BST"): stamp(a, key)
            a("s_barrier")
            if key and os.environ.get("BST"): stamp(a, key + 1)
            avail = 32 if g < 12 else avail + 32
        a(f"s_waitcnt lgkmcnt({2*(rd-g-1)})")
        a(f"v_mfma_f32_32x32x16_bf16 {acc(j&1)}, {q4(W1R+4*KORD[n])}, {q4(BF+4*(g%NB))}, {acc(j&1) if n else 0}")
        for k in range(2):
            if rd < min(avail, g + 1 + LEAD): bread(rd); rd += 1
        if j and 3 <= n < 13: a(epi((j - 1) & 1)[n - 3])
        if j and n == (STN if j < 7 else max(13, FLAGA + 1)): a(epi((j - 1) & 1)[10])
        if j == 7 and n == FLAGA:
            a("s_waitcnt vmcnt(0)"); flag_store(a, "s22", 5)
        if n == 31 and j in (0, 3): stamp(a, 15 if j == 0 else 16)
    stamp(a, 17)
    for x in epi(1): a(x)
    a("s_add_u32 s22, s22, 0x8000")
    a("s_waitcnt vmcnt(0)"); flag_store(a, "s22", 5)
    stamp(a, 18)
def h_var(a):
    a("s_waitcnt vmcnt(0)"); flag_store(a, "s22", 8)
    a("s_cmp_ge_u32 s11, 2"); a("s_cbranch_scc1 k_done")
    h_addr(a)
    a("s_barrier"); a("s_barrier"); a("s_barrier")
    a("s_cmp_eq_u32 s11, 0"); a("s_cbranch_scc1 v_a")
    a("s_barrier")
    a("v_a:")
    a("s_lshl_b32 s5, s11, 15"); a(f"s_add_u32 s5, s5, {SL[1]}"); a("v_add_u32 v12, s5, v12")
    for n in range(32):
        for h in range(2): a(f"ds_read_b64_tr_b16 {pr(W1R+4*n+2*h)}, v12 offset:{1024*n+256*h}")
    a("s_waitcnt lgkmcnt(0)")
    a("s_cmp_lg_u32 s11, 0"); a("s_cbranch_scc1 v_b")
    a("s_barrier")
    a("v_b:")
    for k in range(128):
        a(f"v_dot2_f32_bf16 v{16+k%2}, v{W1R+k}, s21, {('v%d' % (16+k%2)) if k >= 2 else 0}")
        a(f"v_dot2_f32_bf16 v{18+k%2}, v{W1R+k}, v{W1R+k}, {('v%d' % (18+k%2)) if k >= 2 else 0}")
    a("v_add_f32 v16, v16, v17"); a("v_add_f32 v18, v18, v19"); a("v_mov_b32 v17, v16"); a("v_mov_b32 v19, v18")
    a("v_permlane32_swap_b32 v16, v17"); a("v_permlane32_swap_b32 v18, v19"); a("v_add_f32 v16, v16, v17"); a("v_add_f32 v18, v18, v19")
    ln_final(a, 16, 18, 20, 22, 24)
    a("v_mul_f32 v22, v22, v22"); a("v_rcp_f32 v22, v22"); a(f"v_mov_b32 v23, s{sNON}")
    a("s_lshl_b32 s5, s14, 1"); a("s_add_u32 s5, s5, s11"); a("s_lshl_b32 s5, s5, 8"); a(f"s_add_u32 s5, s5, {hex(R2G)}")
    a("v_and_b32 v5, 31, v2"); a("v_lshl_add_u32 v5, v5, 3, s5")
    a("s_mov_b32 exec_hi, 0")
    a(f"global_store_dwordx2 v5, v[22:23], {sp(sWS)} sc1")

W1FL = os.environ.get("W1FL", "sc1"); NT = os.environ.get("NT", "nt"); W1DLY = int(os.environ.get("W1DLY", 0))
CPF = int(os.environ.get("CPF", 1))
XPRE = int(os.environ.get("XPRE", 7)); IDLEPRE = int(os.environ.get("IDLEPRE", 42)); W2B = int(os.environ.get("W2B", 5))
W2SCH = [int(c) for c in os.environ.get("W2SCH", "111111")]; ORDER = int(os.environ.get("ORDER", 1)); BLEAD = int(os.environ.get("BLEAD", 4)); HLEAD = int(os.environ.get("HLEAD", 7)); STN = int(os.environ.get("STN", 13)); EPK = int(os.environ.get("EPK", 0)); BPRIO = int(os.environ.get("BPRIO", 3)); WDLY = int(os.environ.get("WDLY", 8)); B3AT = int(os.environ.get("B3AT", 2)); FLAG1ST = int(os.environ.get("FLAG1ST", 1))
WARM = int(os.environ.get("WARM", 1)); WARM2 = int(os.environ.get("WARM2", 1)); WNT = os.environ.get("WNT", "nt"); MAP3 = int(os.environ.get("MAP3", 1)); DNT = os.environ.get("DNT", "")
DSGAP = int(os.environ.get("DSGAP", 5)); FLAGA = int(os.environ.get("FLAGA", 2))
P1PRE = int(os.environ.get("P1PRE", 0)); P2PRE = int(os.environ.get("P2PRE", 0)); P3PRE = int(os.environ.get("P3PRE", 14))
W2PRE = int(os.environ.get("W2PRE", 4)); HDEP = int(os.environ.get("HDEP", 6)); OUTFL = os.environ.get("OUTFL", "")

def kernel():
    a = Asm()
    a("s_cmp_ge_u32 s2, 256"); a("s_cbranch_scc1 k_done")
    if PROF:
        a("v_mov_b32 v255, 0")
        a("s_memrealtime s[100:101]"); a("s_waitcnt lgkmcnt(0)"); a("v_writelane_b32 v255, s100, 30")
        stamp(a, 0)
    a("s_load_dwordx16 s[16:31], s[0:1], 0")
    a("s_load_dwordx16 s[32:47], s[0:1], 64")
    a("s_memrealtime s[92:93]")
    if CPF:
        a("s_getpc_b64 s[90:91]")
        a("k_pc:")
        a("s_bfe_u32 s5, s2, 0x30003"); a("s_mul_i32 s5, s5, 5"); a("s_lshr_b32 s5, s5, 3"); a("s_lshl_b32 s5, s5, 13")
        a("v_lshrrev_b32 v1, 3, v0"); a("v_lshl_add_u32 v1, v1, 7, s5")
        a("v_min_u32 v1, k_end-k_pc-4, v1")
        a("global_load_dword v254, v1, s[90:91]")
    a("v_lshrrev_b32 v1, 6, v0")
    a("v_readfirstlane_b32 s10, v1")
    a("v_and_b32 v0, 255, v0")
    common_ids(a)
    a("s_and_b32 s11, s10, 3")
    a("s_cmp_ge_u32 s10, 4"); a("s_cbranch_scc1 e_h")
    m_entry(a)
    a("s_branch m_main")
    a("e_h:")
    a("s_setprio 2")
    a("s_cmp_lt_u32 s2, 128"); a("s_cbranch_scc1 e_x")
    warm1(a)
    a(f"s_sleep {IDLEPRE}")
    get_nonce(a, 6)
    a("s_branch h_join")
    a("e_x:")
    a("s_mov_b32 s5, s2")
    x_entry(a)
    h_xrole(a)
    a("h_join:")
    h_phaseB(a, h_u(a)); h_addr(a)
    h_phaseC(a)
    stamp_out(a)
    a("s_endpgm")
    a("m_main:")
    m_kgen(a); m_conv(a)
    m_phaseD(a, *m_phaseC(a))
    stamp_out(a)
    a("s_endpgm")
    a("h_spare:")
    h_var(a)
    a("k_done:")
    a("s_endpgm")
    a("k_end:")
    return a
if __name__ == "__main__":
    a = kernel()
    kn = NAME + "_kernel"
    s = f"; @launch grid=(256,1,1) block=(512,1,1) lds={LDS_TOTAL}\n"
    s += '.amdgcn_target "amdgcn-amd-amdhsa--gfx950"\n.text\n' + head(kn) + a.text(True) + '.section .rodata,"a"\n' + kd(kn, 256)
    open(sys.argv[1] if len(sys.argv) > 1 else "f.s", "w").write(s)
```

```python
import sys, os, struct
from asmlib import *
NAME = "sequential_preLN__ssm_conv_s4__glu_gated_bilinear__prompt"
PROF = bool(os.environ.get("PROF"))
PROBE = [int(x) for x in os.environ["PROBE"].split(",")] if os.environ.get("PROBE") else None
G1 = 0x0; F2 = 0x4000; R2G = 0x8000; F3 = 0x10000
XT = 0x100000; HB = 0x300000; HF = 0x500000
PBUF = 0x2000000
sX, sARE, sAIM, sBRE, sBIM, sCRE, sCIM, sLDT, sDSK, sWG, sWU, sWD, sOUT, sDBG, sWS = \
    16, 18, 20, 22, 24, 26, 28, 30, 32, 36, 38, 40, 42, 44, 46
sNON = 48
SL = [0, 32768, 65536, 98304]; RING = 131072; RD = 7; MISC = 159744; LDS_TOTAL = 163840
CSTR = 11 * 512 + 32; TCH = 8 * CSTR; TAB = 0; TOE = SL[3]; TCP = 4160; UU = TOE + 8 * TCP; UCH = 4608; YY = UU + 2 * UCH
assert YY + 16384 <= MISC and 2 * TCH <= SL[3]
CNT = MISC + 4032
RES = SL[1]; RED = SL[1] + 8192; UP = 131072
DPP = "row_mask:0xf bank_mask:0xf"
SPIN = 1 << 16
def sp(b): return f"s[{b}:{b+1}]"
def pr(b): return f"v[{b}:{b+1}]"
def q4(b): return f"v[{b}:{b+3}]"
def f2u(x): return "0x%08x" % struct.unpack("<I", struct.pack("<f", x))[0]
def wsptr(a, dst, off):
    a(f"s_add_u32 s{dst}, s{sWS}, {hex(off) if isinstance(off, int) else off}"); a(f"s_addc_u32 s{dst+1}, s{sWS+1}, 0")
def srd(a, d, off, size):
    wsptr(a, d, off)
    a(f"s_and_b32 s{d+1}, s{d+1}, 0xffff"); a(f"s_mov_b32 s{d+2}, {hex(size)}"); a(f"s_mov_b32 s{d+3}, 0x00020000")
_st = {}
def stamp(a, i):
    if PROF:
        if PROBE and i not in (0, 29, PROBE[1]): return
        a(("s_memrealtime" if PROBE else "s_memtime") + " s[100:101]"); a("s_waitcnt lgkmcnt(0)"); a(f"v_writelane_b32 v255, s100, {i}")
def stamp_out(a):
    if not PROF: return
    a("s_waitcnt vmcnt(0)")
    stamp(a, 29)
    a("s_memrealtime s[100:101]"); a("s_waitcnt lgkmcnt(0)"); a("v_writelane_b32 v255, s100, 31")
    a("s_lshl_b32 s3, s2, 3"); a("s_add_u32 s3, s3, s10"); a("s_lshl_b32 s3, s3, 7"); a(f"s_add_u32 s3, s3, {hex(PBUF)}")
    a("v_mbcnt_lo_u32_b32 v1, -1, 0"); a("v_lshl_add_u32 v1, v1, 2, s3")
    a("s_mov_b32 exec_hi, 0")
    a(f"global_store_dword v1, v255, {sp(sWS)}")
_lab = [0]
def poll(a, loads, checks, sleep=2, pre=0):
    _lab[0] += 1; n = _lab[0]
    a("s_mov_b64 s[98:99], exec")
    a("s_mov_b32 s97, 0")
    if pre: a(f"s_sleep {pre}")
    a(f"poll{n}:")
    for x in loads: a(x)
    a("s_add_u32 s97, s97, 1")
    a("s_waitcnt vmcnt(0)")
    if len(checks) == 1:
        a(f"v_cmp_ne_u32 vcc, s{sNON}, v{checks[0]}")
    else:
        a(f"v_cmp_ne_u32 vcc, s{sNON}, v{checks[0]}")
        for c in checks[1:]:
            a(f"v_cmp_ne_u32 s[94:95], s{sNON}, v{c}"); a("s_nop 0"); a("s_or_b64 vcc, vcc, s[94:95]")
    a("s_and_b64 exec, exec, vcc")
    a(f"s_cbranch_execz pollx{n}")
    a(f"s_cmp_ge_u32 s97, {SPIN}"); a(f"s_cbranch_scc1 pollx{n}")
    if sleep: a(f"s_sleep {sleep}")
    a(f"s_branch poll{n}")
    a(f"pollx{n}:")
    a("s_mov_b64 exec, s[98:99]")
def get_nonce(a, vt, first_loaded=False):
    _lab[0] += 1; n = _lab[0]
    a("s_mov_b32 s97, 0")
    if first_loaded: a(f"s_branch nonc{n}")
    a(f"non{n}:")
    a(f"v_mov_b32 v{vt+1}, 0")
    a(f"global_load_dword v{vt}, v{vt+1}, {sp(sDBG)} sc1")
    a(f"nonc{n}:")
    a("s_add_u32 s97, s97, 1")
    a("s_waitcnt vmcnt(0)")
    a(f"v_readfirstlane_b32 s{sNON}, v{vt}")
    a(f"s_cmp_ge_u32 s97, {SPIN}"); a(f"s_cbranch_scc1 nonx{n}")
    a(f"s_cmp_eq_u32 s{sNON}, 0"); a(f"s_cbranch_scc1 non{n}")
    a(f"nonx{n}:")
def lds_spin(a, vaddr, vt, target, off=0):
    _lab[0] += 1; n = _lab[0]
    a("s_mov_b32 s97, 0")
    a(f"lsp{n}:")
    a(f"ds_read_b32 v{vt}, v{vaddr} offset:{off}")
    a("s_add_u32 s97, s97, 1")
    a("s_waitcnt lgkmcnt(0)")
    a(f"v_readfirstlane_b32 s96, v{vt}")
    a(f"s_cmp_ge_u32 s97, {SPIN*8}"); a(f"s_cbranch_scc1 lsx{n}")
    a(f"s_cmp_lt_u32 s96, {target}"); a(f"s_cbranch_scc1 lsp{n}")
    a(f"lsx{n}:")
def check_or_poll(a, load, reg, sleep=2):
    _lab[0] += 1; n = _lab[0]
    a(f"v_cmp_ne_u32 vcc, s{sNON}, v{reg}")
    a(f"s_cbranch_vccz cok{n}")
    poll(a, [load], [reg], sleep=sleep)
    a(f"cok{n}:")
def flag_store(a, soff, vt):
    a(f"v_mov_b32 v{vt}, {soff}"); a(f"v_mov_b32 v{vt+1}, s{sNON}")
    a("s_mov_b64 exec, 1")
    a(f"global_store_dword v{vt}, v{vt+1}, {sp(sWS)} sc1")
    a("s_mov_b64 exec, -1")
def ln_final(a, S, Q, M, SD, T):
    a(f"v_mul_f32 v{T}, {f2u(1/512)}, v{S}")
    a(f"v_mul_f32 v{T+1}, {f2u(1/512)}, v{Q}")
    a(f"v_fma_f32 v{T+1}, -v{T}, v{T}, v{T+1}")
    a(f"v_max_f32 v{T+1}, 0, v{T+1}")
    a(f"v_cvt_pk_bf16_f32 v{T}, v{T}, v{T+1}")
    a(f"v_lshlrev_b32 v{M}, 16, v{T}")
    a(f"v_and_b32 v{T+1}, 0xffff0000, v{T}")
    a(f"v_add_f32 v{T+1}, {f2u(1e-5)}, v{T+1}")
    a(f"v_cvt_pk_bf16_f32 v{T+1}, v{T+1}, v{T+1}")
    a(f"v_lshlrev_b32 v{T+1}, 16, v{T+1}")
    a(f"v_sqrt_f32 v{T+1}, v{T+1}")
    a(f"v_cvt_pk_bf16_f32 v{T+1}, v{T+1}, v{T+1}")
    a(f"v_lshlrev_b32 v{SD}, 16, v{T+1}")
def cmul_batch(a, jobs):
    for d, x, y in jobs: a(f"v_pk_mul_f32 {pr(d)}, {pr(x)}, {pr(y)} op_sel:[0,0] op_sel_hi:[1,0]")
    for d, x, y in jobs: a(f"v_pk_fma_f32 {pr(d)}, {pr(x)}, {pr(y)}, {pr(d)} op_sel:[1,1,0] op_sel_hi:[0,1,1] neg_lo:[1,0,0]")

def common_ids(a):
    a("s_and_b32 s14, s2, 7"); a("s_lshl_b32 s3, s14, 5"); a("s_lshr_b32 s5, s2, 3"); a("s_add_u32 s3, s3, s5")
    a("s_mov_b32 s4, 0xffff0000")
def late_ids(a):
    a("s_bfe_u32 s50, s2, 0x20003")
    a("s_lshr_b32 s15, s2, 5")
    if MAP3 == 0:
        a("s_and_b32 s12, s2, 4"); a("s_add_u32 s12, s12, s50")
        a("s_and_b32 s13, s2, 3"); a("s_mul_i32 s13, s13, 7"); a("s_add_u32 s13, s13, s15")
        a("s_mov_b32 s49, s15")
    else:
        a("s_mul_i32 s13, s14, 28"); a("s_lshr_b32 s5, s2, 3"); a("s_add_u32 s13, s13, s5")
        a("s_and_b32 s12, s13, 7"); a("s_lshr_b32 s13, s13, 3")
        a("s_mul_i32 s5, s13, 37"); a("s_lshr_b32 s5, s5, 8"); a("s_mul_i32 s5, s5, 7"); a("s_sub_u32 s49, s13, s5")
    a("s_and_b32 s49, s49, 3")
    def order(lst): return hex(sum(t << (4 * i) for i, t in enumerate(lst)))
    if ORDER == 0: tab = [order([(2 * p + 2 + i) & 7 for i in range(8)]) for p in range(4)]
    else: tab = [order([t for q in [x for x in range(4) if x != p] + [p] for t in (2 * q, 2 * q + 1)]) for p in range(4)]
    a("s_cmp_eq_u32 s49, 1"); a(f"s_mov_b32 s5, {tab[0]}"); a(f"s_cselect_b32 s5, {tab[1]}, s5")
    a("s_cmp_eq_u32 s49, 2"); a(f"s_cselect_b32 s5, {tab[2]}, s5")
    a("s_cmp_eq_u32 s49, 3"); a(f"s_cselect_b32 s49, {tab[3]}, s5")
    a("s_mul_i32 s5, s50, 0x22222222"); a("s_add_u32 s5, s5, 0x10101010")
    a("s_cmp_eq_u32 s15, 7"); a("s_cselect_b32 s12, s14, s12"); a("s_cselect_b32 s49, s5, s49"); a("s_cselect_b32 s13, 0, s13")
    a("s_lshl_b32 s14, s14, 2"); a("s_add_u32 s14, s14, s50")
    a("s_and_b32 s34, s12, 3")

PR = 8; WA = 240
def m_entry(a):
    a("s_lshl_b32 s5, s3, 9")
    a("v_lshl_add_u32 v2, v0, 1, s5")
    a("s_lshl_b32 s5, s3, 2")
    for i in range(6): a(f"v_mov_b32 v{PR+i}, 0")
    a(f"v_mov_b32 v6, {CNT}"); a(f"ds_write_b128 v6, {q4(PR)}")
    a("s_waitcnt lgkmcnt(0)")
    stamp(a, 23)
    for i, p in enumerate((sARE, sAIM, sBRE, sBIM, sCRE, sCIM)):
        a(f"global_load_short_d16_hi v{PR+i}, v2, {sp(p)} {NT}")
    a(f"s_load_dword s6, {sp(sLDT)}, s5")
    a("s_or_b32 s5, s2, s10"); a("s_cmp_lg_u32 s5, 0"); a("s_cbranch_scc1 m_go")
    a("s_or_b32 s5, s92, 1"); a("v_mov_b32 v2, 0"); a("v_mov_b32 v3, s5")
    a("s_mov_b64 exec, 1")
    a(f"global_store_dword v2, v3, {sp(sDBG)} sc1")
    a("s_mov_b64 exec, -1")
    a("m_go:")
    a("s_barrier")
def m_kgen(a):
    a("v_lshrrev_b32 v6, 5, v0"); a(f"v_mul_u32_u24 v6, {UCH}, v6"); a("v_and_b32 v7, 31, v0")
    a("v_lshl_add_u32 v6, v7, 4, v6"); a(f"v_add_u32 v6, {UU}, v6")
    a("v_bfe_u32 v7, v0, 1, 3"); a(f"v_mul_u32_u24 v7, {TCP}, v7"); a("v_and_b32 v40, 1, v0")
    a("v_lshl_add_u32 v7, v40, 4, v7"); a(f"v_add_u32 v7, {TOE}, v7")
    a("v_cmp_gt_u32 vcc, 64, v0")
    for i in range(4): a(f"v_mov_b32 v{36+i}, 0")
    a("v_cndmask_b32 v6, v7, v6, vcc")
    a("ds_write_b128 v6, v[36:39]")
    late_ids(a)
    a("s_lshr_b32 s7, s10, 1")
    a(f"s_mul_i32 s8, s7, {TCH}")
    a("v_and_b32 v7, 127, v0"); a(f"v_lshl_add_u32 v{WA}, v7, 2, s8")
    for c in range(1, 8): a(f"v_add_u32 v{WA+c}, {c*CSTR}, v{WA}")
    a("v_and_b32 v2, 15, v0"); a("v_bfe_u32 v3, v0, 4, 2")
    a(f"s_mul_i32 s9, s7, {4*TCP}"); a(f"s_add_u32 s9, s9, {TOE}")
    a("v_lshl_add_u32 v4, v3, 4, s8")
    def adr(dst, cls, idx):
        a(f"v_mul_u32_u24 v{dst}, {CSTR}, v{cls}"); a(f"v_lshl_add_u32 v{dst}, v{idx}, 9, v{dst}"); a(f"v_add_u32 v{dst}, v{dst}, v4")
    a("v_and_b32 v26, 7, v2"); a("v_lshrrev_b32 v15, 3, v2"); adr(16, 26, 15)
    a("v_and_b32 v6, 3, v2"); a("v_bfe_u32 v7, v2, 2, 1")
    a("v_lshl_add_u32 v20, v2, 5, s9")
    a("v_lshl_add_u32 v21, v3, 9, v20"); a("v_add_u32 v21, 2048, v21")
    a("v_lshrrev_b32 v22, 1, v3"); a("v_lshl_add_u32 v20, v22, 9, v20")
    a("v_and_b32 v22, 1, v3"); a("v_lshl_add_u32 v20, v22, 4, v20")
    a("s_bitcmp1_b32 s10, 0"); a("s_cbranch_scc1 m_adrY")
    a("v_lshl_add_u32 v26, v7, 3, v6")
    a("v_subrev_u32 v27, 1, v6"); a("v_max_i32 v27, 0, v27"); a("v_lshl_add_u32 v27, v7, 2, v27")
    a("v_cmp_eq_u32 vcc, 1, v15")
    a("v_lshlrev_b32 v28, 1, v15"); a("v_sub_u32 v28, 4, v28")
    a("v_cndmask_b32 v26, v26, v27, vcc")
    for t in range(3):
        a("v_and_b32 v27, 3, v26"); a("v_lshl_add_u32 v27, v15, 2, v27"); a("v_lshrrev_b32 v29, 2, v26"); a("v_add_u32 v29, 2, v29")
        adr(17 + t, 27, 29)
        if t < 2: a("v_add_u32 v26, v26, v28")
    a("s_branch m_adrJ")
    a("m_adrY:")
    a("v_lshl_add_u32 v26, v7, 1, v6")
    a("v_and_b32 v27, 3, v26"); a("v_lshl_add_u32 v27, v15, 2, v27")
    a("v_lshrrev_b32 v29, 2, v26"); a("v_lshlrev_b32 v28, 1, v15"); a("v_sub_u32 v29, v29, v28"); a("v_add_u32 v29, 7, v29")
    adr(17, 27, 29)
    a("v_lshl_add_u32 v27, v15, 2, v6"); a("v_sub_u32 v29, v7, v28"); a("v_add_u32 v29, 9, v29")
    adr(18, 27, 29)
    a("v_add_u32 v20, 1024, v20")
    a("m_adrJ:")
    a("v_add_u32 v4, 1, v2")
    a("v_and_b32 v5, 3, v4"); a(f"v_mul_u32_u24 v5, {TCP}, v5")
    a("v_lshrrev_b32 v4, 2, v4"); a("v_lshl_add_u32 v5, v4, 3, v5")
    a("v_lshlrev_b32 v4, 4, v3"); a("v_sub_u32 v5, v5, v4")
    a("s_and_b32 s8, s10, 1"); a("s_lshl_b32 s8, s8, 8")
    a("s_add_u32 s9, s9, s8"); a("s_add_u32 s9, s9, 48")
    a("v_add_u32 v23, s9, v5")
    a(f"s_mul_i32 s9, s7, {UCH}"); a(f"s_add_u32 s9, s9, {UU+480-192}"); a("s_sub_u32 s9, s9, s8")
    a("v_lshl_add_u32 v24, v2, 5, v4"); a("v_add_u32 v24, s9, v24")
    a("v_lshrrev_b32 v4, 1, v3"); a("v_bfe_u32 v5, v2, 2, 1"); a("v_xor_b32 v4, v4, v5"); a("v_lshl_add_u32 v4, v2, 1, v4")
    a("v_and_b32 v5, 1, v3"); a("v_lshlrev_b32 v5, 3, v5"); a("v_lshl_add_u32 v25, v4, 4, v5")
    a("s_lshl_b32 s8, s10, 12"); a(f"s_add_u32 s8, s8, {YY}"); a("v_add_u32 v25, s8, v25")
    stamp(a, 24)
    a("s_waitcnt lgkmcnt(0)")
    a("s_lshl_b32 s8, s6, 16"); a("s_and_b32 s9, s6, 0xffff0000")
    a("s_cmp_ge_u32 s10, 2"); a("s_cselect_b32 s8, s9, s8")
    a(f"v_mov_b32 v7, {f2u(1.4426950408889634)}")
    a("v_mul_f32 v40, s8, v7")
    a("v_exp_f32 v40, v40")
    a("v_cvt_pk_bf16_f32 v40, v40, v40")
    a("v_lshlrev_b32 v40, 16, v40")
    a("s_waitcnt vmcnt(0)")
    stamp(a, 1)
    a(f"v_mul_f32 v41, v40, v{PR}"); a(f"v_mul_f32 v42, v40, v{PR+1}")
    a("v_mul_f32 v41, v41, v7")
    a("v_mul_f32 v42, 0.15915494, v42")
    a(f"v_mul_f32 v{PR+2}, v40, v{PR+2}"); a(f"v_mul_f32 v{PR+3}, v40, v{PR+3}")
    S = {i: 44 + 2 * (i - 1) for i in range(1, 19)}
    E = {p: 80 + 2 * i for i, p in enumerate((32, 64, 128, 256, 512, 768, 1024, 1280, 1536, 1792))}
    C = {j: 100 + 2 * j for j in range(16)}
    T = 132; CV = 160
    a("v_mov_b32 v31, 0"); a(f"global_load_dword v30, v31, {sp(sDBG)} sc1")
    V = []
    cvi = [0]
    def put(kind, k, reg):
        if kind == 'c': cls, idx = k & 7, k >> 3
        elif kind == 'r1': cls, idx = k & 3, 2 + (k >> 2)
        elif kind == 'r2': cls, idx = 4 + (k & 3), 2 + (k >> 2)
        elif kind == 'r4': cls, idx = 4 * k[0] + (k[1] & 3), 7 - 2 * k[0] + (k[1] >> 2)
        else: cls, idx = 4 * (k[0] >> 1) + k[1], 9 - 2 * (k[0] >> 1) + (k[0] & 1)
        t = CV + cvi[0]; cvi[0] += 1
        if reg is None: V.append(f"v_mov_b32 v{t}, 0x00003f80")
        else: V.append(f"v_cvt_pk_bf16_f32 v{t}, v{reg}, {'-' if kind == 'c' else ''}v{reg+1}")
        V.append(('put', cls, idx, t))
    class A2:
        def __call__(self, x): V.append(x)
    v = A2()
    D = [(S[1], 1.0), (S[16], 16.0), (E[256], 256.0)]
    for i, (d, p) in enumerate(D):
        if p == 1.0:
            v(f"v_exp_f32 v{T+3*i}, v41"); v(f"v_fract_f32 v{T+3*i+1}, v42")
        else:
            v(f"v_mul_f32 v{T+3*i}, {f2u(p)}, v41"); v(f"v_mul_f32 v{T+3*i+1}, {f2u(p)}, v42")
            v(f"v_exp_f32 v{T+3*i}, v{T+3*i}"); v(f"v_fract_f32 v{T+3*i+1}, v{T+3*i+1}")
    for i, (d, p) in enumerate(D):
        v(f"v_cos_f32 v{d}, v{T+3*i+1}"); v(f"v_sin_f32 v{d+1}, v{T+3*i+1}")
    cmul_batch(v, [(C[0], PR + 4, PR + 2)])
    put('r1', 0, None)
    for i, (d, p) in enumerate(D):
        v(f"v_mul_f32 v{d}, v{d}, v{T+3*i}"); v(f"v_mul_f32 v{d+1}, v{d+1}, v{T+3*i}")
    put('c', 0, C[0])
    cmul_batch(v, [(S[2], S[1], S[1]), (E[32], S[16], S[16]), (E[512], E[256], E[256]), (C[1], C[0], S[16]), (S[17], S[16], S[1])])
    put('r1', 1, S[1]); put('r1', 16, S[16]); put('r2', 0, E[256])
    cmul_batch(v, [(S[4], S[2], S[2]), (E[64], E[32], E[32]), (E[1024], E[512], E[512]), (S[3], S[2], S[1])])
    put('r1', 17, S[17]); put('r4', (0, 0), E[512]); put('r1', 2, S[2]); put('c', 1, C[1])
    cmul_batch(v, [(E[768], E[512], E[256]), (C[2], C[0], E[32]), (C[3], C[1], E[32]), (S[18], S[16], S[2])])
    put('r1', 4, S[4]); put('r8', (0, 0), E[1024]); put('r1', 3, S[3])
    cmul_batch(v, [(S[8], S[4], S[4]), (E[128], E[64], E[64]), (S[5], S[4], S[1]), (S[6], S[4], S[2])])
    put('r4', (1, 0), E[768]); put('c', 2, C[2]); put('c', 3, C[3]); put('r1', 18, S[18])
    jobs = [((S[7], S[4], S[3]), ('r1', 7)), ((E[1280], E[1024], E[256]), ('r8', (1, 0))), ((E[1536], E[1024], E[512]), ('r8', (2, 0))),
            ((E[1792], E[1024], E[768]), ('r8', (3, 0)))]
    jobs += [((C[4 + i], C[i], E[64]), ('c', 4 + i)) for i in range(4)]
    jobs += [((S[8 + i], S[8], S[i]), ('r1', 8 + i)) for i in range(1, 8)]
    jobs += [((T + 2 * (i - 1), E[256], S[2 * i]), ('r2', i)) for i in (1, 2, 3, 4, 8, 9)]
    jobs += [((C[8 + i], C[i], E[128]), ('c', 8 + i)) for i in range(8)]
    jobs += [((T + 2 * (i - 1), E[256], S[2 * i]), ('r2', i)) for i in (5, 6, 7)]
    jobs += [((C[4 * b + i - 1], E[512 + 256 * b], S[4 * i]), ('r4', (b, i))) for b in range(2) for i in range(1, 5)]
    jobs += [((C[8 + 2 * g + i - 1], E[1024 + 256 * g], S[8 * i]), ('r8', (g, i))) for g in range(4) for i in range(1, 3)]
    pend = [((S[8],), ('r1', 8)), ((S[5],), ('r1', 5)), ((S[6],), ('r1', 6))]
    for b0 in range(0, len(jobs), 4):
        bt = jobs[b0:b0+4]
        cmul_batch(v, [j[0] for j in bt])
        for j in pend: put(j[1][0], j[1][1], j[0][0])
        pend = bt
    for j in pend: put(j[1][0], j[1][1], j[0][0])
    assert cvi[0] == 67
    waiting = {}; ready = []; since = 0
    for x in V:
        if isinstance(x, tuple):
            _, cls, idx, t = x
            if cls in waiting:
                i0, t0 = waiting.pop(cls); ready.append(f"ds_write2st64_b32 v{WA+cls}, v{t0}, v{t} offset0:{2*i0} offset1:{2*idx}")
            else: waiting[cls] = (idx, t)
            continue
        a(x); since += 1
        if ready and since >= DSGAP:
            y = ready.pop(0); since = 0
            if not os.environ.get("NODS"): a(y)
    stamp(a, 25)
    for x in ready: a(x)
    for cls, (idx, t) in waiting.items(): a(f"ds_write_b32 v{WA+cls}, v{t} offset:{512*idx}")
    a(f"s_lshl_b32 s8, s7, 2"); a(f"s_add_u32 s8, s8, {CNT+4}"); a("v_mov_b32 v26, s8"); a("v_mov_b32 v27, 1")
    a("s_mov_b64 exec, 1"); a("ds_add_u32 v26, v27"); a("s_mov_b64 exec, -1")
    stamp(a, 2)
    lds_spin(a, 26, 27, 2)
    stamp(a, 3)
    BF = 44; AF = 76; ACC = 172
    def copies(vals, dst, off, tmp):
        for c in range(4):
            for p in range(4): a(f"v_cvt_pk_bf16_f32 v{tmp+4*c+p}, v{vals[c+2*p]}, v{vals[c+2*p+1]}")
            a(f"ds_write_b128 v{dst}, {q4(tmp+4*c)} offset:{32+c*TCP+off}")
    def genmm(nt):
        for ks in range(8):
            a(f"ds_read_b128 {q4(BF+4*ks)}, v16 offset:{64*ks}")
            for t in range(nt): a(f"ds_read_b128 {q4(AF+4*(nt*ks+t))}, v{17+t} offset:{64*ks}")
        for ks in range(8):
            a(f"s_waitcnt lgkmcnt({min(15, (nt+1)*(7-ks))})")
            for t in range(nt):
                a(f"v_mfma_f32_16x16x32_bf16 {q4(ACC+4*t)}, {q4(AF+4*(nt*ks+t))}, {q4(BF+4*ks)}, {q4(ACC+4*t) if ks else 0}")
    a("s_bitcmp1_b32 s10, 0"); a("s_cbranch_scc1 m_waveY")
    genmm(3)
    stamp(a, 4)
    a("s_nop 7")
    a("s_mov_b32 exec_lo, 0x80000000"); a("s_mov_b32 exec_hi, 0")
    a(f"v_mov_b32 v{ACC+9}, v{ACC+8}")
    a("s_mov_b32 exec_lo, 0"); a("s_mov_b32 exec_hi, 0x80000000")
    a(f"v_mov_b32 v{ACC+10}, v{ACC+9}")
    a("s_mov_b64 exec, -1")
    copies([ACC + i for i in range(11)], 20, 0, AF)
    a(f"v_cvt_pk_bf16_f32 v13, 0, v{ACC}")
    a("s_mov_b64 exec, 1")
    a(f"ds_write_b32 v20, v13 offset:{1*TCP+28}")
    a(f"ds_write_b32 v20, v{AF} offset:{2*TCP+28}")
    a(f"ds_write_b32 v20, v13 offset:{3*TCP+24}")
    a(f"ds_write_b32 v20, v{AF+4} offset:{3*TCP+28}")
    a("s_mov_b64 exec, -1")
    a("s_branch m_join")
    a("m_waveY:")
    genmm(2)
    stamp(a, 4)
    copies([ACC + i for i in (0, 0, 0, 1, 1, 1, 2, 2, 2, 2, 2)], 20, 0, AF)
    v8 = [ACC + 4 + i for i in [0] * 5 + [1] * 7 + [2] * 7]
    copies(v8[0:11], 21, 0, AF + 16); copies(v8[8:19], 21, 16, AF + 32)
    a("m_join:")
    m_setup(a)
    a("s_waitcnt lgkmcnt(0)")
    stamp(a, 5)
    a("s_barrier")
    stamp(a, 6)
def m_conv(a):
    Y = 32; FA = [64, 128]; FB = [96, 160]
    def reads(r):
        s = r & 1; L = []
        for p in range(8):
            L.append(f"ds_read_b64 {pr(FA[s]+4*p)}, v23 offset:{64*(8*p+r)}")
            L.append(f"ds_read_b64 {pr(FA[s]+4*p+2)}, v23 offset:{64*(8*p+r)+8}")
            L.append(f"ds_read_b128 {q4(FB[s]+4*p)}, v24 offset:{512*p+64*(3-r)}")
        return L
    for x in reads(0): a(x)
    order = sorted([(p, c2) for p in range(8) for c2 in range(8 - p)], key=lambda x: (max(x), x))
    for r in range(4):
        s = r & 1
        nxt = reads(r + 1) if r < 3 else []
        first = set(); have = -1; issued = 0
        if r > 0: a("s_waitcnt lgkmcnt(0)")
        for i, (p, c2) in enumerate(order):
            c = p + c2
            if r == 0 and max(p, c2) > have:
                have = max(p, c2)
                a(f"s_waitcnt lgkmcnt({min(15, 3*(7-have) + issued)})")
            src = q4(Y + 4 * c) if (r > 0 or c in first) else "0"
            first.add(c)
            a(f"v_mfma_f32_16x16x32_bf16 {q4(Y+4*c)}, {q4(FA[s]+4*p)}, {q4(FB[s]+4*c2)}, {src}")
            k = i - (8 if r == 0 else 0)
            if 0 <= k < len(nxt): a(nxt[k]); issued += 1
    stamp(a, 7)
    for c in (0, 1, 2, 3, 4, 5, 6, 7):
        a(f"v_cvt_pk_bf16_f32 v{64+2*c}, v{Y+4*c}, v{Y+4*c+1}"); a(f"v_cvt_pk_bf16_f32 v{65+2*c}, v{Y+4*c+2}, v{Y+4*c+3}")
        a(f"ds_write_b64 v25, {pr(64+2*c)} offset:{512*c}")
    a("s_waitcnt lgkmcnt(0)")
    a("s_barrier")
    stamp(a, 8)
SO = 64
def so(i): return f"s{SO+i}"
def warm1(a):
    a("s_lshr_b32 s5, s2, 3"); a("s_and_b32 s5, s5, 15"); a("s_lshl_b32 s5, s5, 1"); a("s_lshr_b32 s7, s11, 1"); a("s_add_u32 s5, s5, s7")
    a("s_mul_i32 s5, s5, 57344")
    if MAP3:
        a("s_mul_i32 s6, s14, 28"); a("s_lshr_b32 s6, s6, 3")
        a("v_and_b32 v28, 3, v0"); a("v_add_u32 v28, s6, v28"); a("v_min_u32 v28, 27, v28"); a("v_bfe_u32 v29, v0, 2, 4")
    else:
        a("s_and_b32 s6, s14, 3"); a("s_mul_i32 s6, s6, 7")
        a("v_and_b32 v28, 7, v0"); a("v_min_u32 v28, 6, v28"); a("v_add_u32 v28, s6, v28"); a("v_bfe_u32 v29, v0, 3, 3")
    a("v_mul_u32_u24 v29, 3584, v29"); a("v_lshl_add_u32 v28, v28, 7, v29"); a("v_add_u32 v28, s5, v28"); a("v_add_u32 v29, 28672, v28")
    a("s_waitcnt lgkmcnt(0)")
    a("s_bitcmp1_b32 s11, 0"); a(f"s_cselect_b32 s8, s{sWU}, s{sWG}"); a(f"s_cselect_b32 s9, s{sWU+1}, s{sWG+1}")
    a("s_barrier")
    if WDLY: a(f"s_sleep {WDLY}")
    if WARM: a(f"global_load_dword v253, v28, s[8:9] {WNT}")
    if WARM and not MAP3: a(f"global_load_dword v252, v29, s[8:9] {WNT}")
def warm2(a):
    a("s_lshl_b32 s5, s14, 2"); a("s_add_u32 s5, s5, s11"); a("s_mul_i32 s5, s5, 14336")
    a("v_lshl_add_u32 v28, v2, 7, s5"); a(f"global_load_dword v252, v28, {sp(sWD)}")
    a("v_min_u32 v28, 47, v2"); a("s_add_u32 s5, s5, 8192"); a("v_lshl_add_u32 v28, v28, 7, s5"); a(f"global_load_dword v253, v28, {sp(sWD)}")
def m_setup(a):
    get_nonce(a, 30, first_loaded=True)
    a("s_add_u32 s51, s50, 4"); a("s_min_u32 s51, s51, 6")
    a("s_cmp_ge_u32 s15, 5"); a("s_cselect_b32 s8, 4096, 0"); a("s_cselect_b32 s5, 5, 0"); a("s_sub_u32 s5, s15, s5")
    for b in range(7):
        if b < 5:
            a("s_cmp_ge_u32 s5, s50"); a("s_addc_u32 s6, s5, 0")
            a("s_cmp_ge_u32 s6, s51"); a("s_addc_u32 s6, s6, 0")
            a("s_lshl_b32 s6, s6, 13")
            if b < 4: a("s_add_u32 s5, s5, 1"); a("s_cmp_eq_u32 s5, 5"); a("s_cselect_b32 s5, 0, s5")
        else: a(f"s_lshl_b32 s6, s{51 if b == 5 else 50}, 13")
        a(f"s_or_b32 {so(4*b)}, s6, s8")
        for t in range(1, 4): a(f"s_xor_b32 {so(4*b+t)}, {so(4*b)}, {2048*t}")
    a("s_lshl_b32 s5, s12, 18"); a(f"s_add_u32 s5, s5, {hex(HB)}"); srd(a, 52, "s5", 0x40000)
    a("s_mul_i32 s5, s11, 458752"); a("s_lshl_b32 s6, s15, 7"); a("s_add_u32 s5, s5, s6")
    a(f"s_add_u32 s56, s{sWD}, s5"); a(f"s_addc_u32 s57, s{sWD+1}, 0"); a("s_and_b32 s57, s57, 0xffff"); a(f"s_mov_b32 s58, {458752-896}"); a("s_mov_b32 s59, 0x00020000")
    a("s_mul_i32 s6, s14, 112"); a("s_mul_i32 s5, s11, 28"); a("s_add_u32 s6, s6, s5"); a("s_lshl_b32 s6, s6, 11"); a(f"s_add_u32 s6, s6, {hex(HF)}")
    srd(a, 60, "s6", 57344)
    a("s_add_u32 s16, s11, s34"); a("s_and_b32 s16, s16, 3")
    a("s_lshl_b32 s17, s16, 13")
    a("s_lshl_b32 s18, s11, 13")
NREG = 16; W2R = 96
class VM:
    def __init__(self, a): self.a = a; self.q = []
    def add(self, tag, n=1): self.q.extend([tag] * n); assert len(self.q) <= 63
    def wait(self, tag, upto=None):
        ks = [j for j, x in enumerate(self.q) if x == tag]
        if not ks: return
        k = ks[-1] if upto is None else ks[upto - 1]
        self.a(f"s_waitcnt vmcnt({len(self.q)-1-k})"); del self.q[:k+1]
    def drained(self): self.q = []
def m_phaseC(a):
    vm = VM(a)
    a("v_and_b32 v2, 63, v0"); a("v_lshlrev_b32 v3, 4, v2")
    a("v_lshrrev_b32 v5, 3, v2"); a("v_bfe_u32 v6, v2, 4, 1"); a("v_lshlrev_b32 v6, 2, v6"); a("v_and_b32 v4, 7, v2"); a("v_xor_b32 v4, v4, v6")
    a("v_lshlrev_b32 v4, 4, v4"); a("v_lshl_add_u32 v4, v5, 10, v4")
    AREA = [SL[3], SL[3] + 4096, UP, UP + 4096, SL[0], SL[0] + 4096]
    where = {}
    def w2dma(st, base):
        for i in range(2):
            a(f"s_lshl_b32 s5, {so(2*st+i)}, 3"); a(f"s_add_u32 m0, s18, {base+2048*i}"); a("s_add_u32 s6, s5, 7168")
            a(f"buffer_load_dwordx4 v4, s[56:59], s5 offen lds"); a(f"buffer_load_dwordx4 v4, s[56:59], s6 offen offset:1024 lds")
        vm.add(f"w{st}", 4); where[st] = base
    a("v_bfe_u32 v5, v2, 2, 2"); a("v_lshrrev_b32 v6, 5, v2"); a("v_lshl_add_u32 v6, v6, 2, v5"); a("v_lshlrev_b32 v8, 7, v6")
    a("v_lshrrev_b32 v5, 1, v5"); a("s_and_b32 s5, s11, 1"); a("v_xor_b32 v5, s5, v5"); a("v_lshl_add_u32 v8, v5, 6, v8")
    a("v_and_b32 v5, 1, v2"); a("v_lshl_add_u32 v8, v5, 5, v8"); a("v_bfe_u32 v5, v2, 4, 1"); a("v_lshl_add_u32 v8, v5, 4, v8")
    a("v_bfe_u32 v5, v2, 1, 1"); a("v_lshl_add_u32 v8, v5, 3, v8"); a("v_add_u32 v8, s18, v8")
    a("v_xor_b32 v9, 64, v8")
    a(f"v_add_u32 v12, {SL[3]}, v8"); a(f"v_add_u32 v13, {SL[3]}, v9")
    a("s_lshr_b32 s5, s11, 1"); a("s_lshl_b32 s5, s5, 10"); a("v_add_u32 v10, s5, v3"); a("v_xor_b32 v11, 1024, v10")
    a("s_lshr_b32 s5, s12, 1"); a("s_lshl_b32 s5, s5, 12"); a("s_lshl_b32 s6, s16, 10"); a("s_add_u32 s5, s5, s6"); a(f"s_add_u32 s5, s5, {hex(F2)}")
    a("v_add_u32 v5, s5, v3")
    def w2read(dst, base, i):
        hi = base >= SL[3]; o = base - (SL[3] if hi else 0) + 2048 * i
        for d in range(2):
            for h in range(2): a(f"ds_read_b64_tr_b16 {pr(dst+4*d+2*h)}, v{(12 if hi else 8)+d} offset:{o+1024*h}")
    freeA = list(AREA); st = {"f": 0, "g": 0}
    def w2grab():
        g = st["g"]; st["g"] += 1
        vm.wait(f"w{g}")
        for i in range(2): w2read(W2R + 8 * (2 * g + i), where[g], i)
        a("s_waitcnt lgkmcnt(0)")
        freeA.append(where[g])
    def w2step():
        if st["f"] >= 14: return
        if not freeA: w2grab()
        w2dma(st["f"], freeA.pop(0)); st["f"] += 1
    a("s_barrier")
    for k in range(W2PRE): w2step()
    stamp(a, 9)
    poll(a, [f"global_load_dword v6, v5, {sp(sWS)} sc1"], [6], sleep=2, pre=P2PRE)
    vm.drained()
    stamp(a, 10)
    def hdma(j, lo=0, hi=8):
        if lo == 0: a("s_and_b32 s19, s49, 7"); a("s_lshl_b32 s19, s19, 15"); a("s_add_u32 s19, s19, s17"); a("s_lshr_b32 s49, s49, 4"); a("s_add_u32 s20, s19, 4096")
        for i in range(lo, hi):
            if i == lo or i == 4: a(f"s_add_u32 m0, s18, {SL[1+(j&1)]+4096*(i//4)}")
            a(f"buffer_load_dwordx4 v3, s[52:55], s{19+i//4} offen offset:{1024*(i%4)} sc1 lds")
        vm.add(f"h{j}", hi - lo)
    hdma(0)
    vm.wait("h0", upto=3); a("s_barrier")
    stamp(a, 11)
    hdma(1, 0, 3)
    vm.wait("h0"); a("s_barrier")
    hdma(1, 3, 8)
    for j in range(1, 8):
        if j >= 2:
            hdma(j)
            for k in range(W2SCH[j - 2]): w2step()
            while st["g"] < min(8, st["f"] - W2SCH[j - 2]): w2grab()
        vm.wait(f"h{j}"); a("s_barrier")
        if j == 4: stamp(a, 12)
    while st["f"] < 14: w2step()
    while st["g"] < 8: w2grab()
    stamp(a, 16)
    return vm, where, w2read
def m_phaseD(a, vm, where, w2read):
    ACC = 16; RG = [80, 88, 224, 232, 240]
    a("s_lshr_b32 s5, s14, 2"); a("s_mul_i32 s5, s5, 28"); a("s_mul_i32 s6, s11, 7"); a("s_add_u32 s5, s5, s6"); a("s_lshl_b32 s5, s5, 6"); a(f"s_add_u32 s5, s5, {hex(F3)}")
    a("v_min_u32 v5, 27, v2"); a("v_lshl_add_u32 v5, v5, 4, s5")
    poll(a, [f"global_load_dword v6, v5, {sp(sWS)} sc1"], [6], sleep=2, pre=P3PRE)
    vm.drained()
    stamp(a, 17)
    slot = {}; free = list(RG); WL = {}
    def hload(i):
        b = free.pop(0); slot[i] = b
        a(f"buffer_load_dwordx4 {q4(b)}, v10, s[60:63], {so(i)} offen sc1")
        a(f"buffer_load_dwordx4 {q4(b+4)}, v11, s[60:63], {so(i)} offen sc1")
        vm.add(i, 2)
    nxt = 0
    for i in range(5): hload(i); nxt += 1
    a("v_cmp_gt_u32 vcc, 4, v2"); a("v_mov_b32 v5, s50"); a("v_mov_b32 v6, s51"); a("v_cndmask_b32 v5, v5, v6, vcc")
    a("v_and_b32 v6, 3, v2"); a("v_lshl_add_u32 v5, v5, 2, v6"); a("s_add_u32 s5, s5, 0x8000"); a("v_lshl_add_u32 v5, v5, 4, s5")
    a("s_lshl_b32 s6, s14, 1"); a("s_lshr_b32 s7, s11, 1"); a("s_add_u32 s19, s6, s7")
    a("s_lshl_b32 s20, s15, 6"); a("s_and_b32 s7, s11, 1"); a("s_lshl_b32 s7, s7, 5"); a("s_add_u32 s20, s20, s7")
    a("s_lshl_b32 s5, s19, 15"); a("s_lshl_b32 s7, s20, 6"); a("s_add_u32 s5, s5, s7"); a(f"s_add_u32 s5, s5, {hex(HB)}")
    srd(a, 52, "s5", 2048)
    a("s_lshl_b32 s21, s11, 11"); a(f"s_add_u32 s21, s21, {RES}")
    a("v_bfe_u32 v14, v2, 2, 2"); a("v_lshrrev_b32 v7, 5, v2"); a("v_lshl_add_u32 v14, v7, 4, v14"); a("v_lshlrev_b32 v14, 6, v14")
    a("v_bfe_u32 v7, v2, 4, 1"); a("v_lshl_add_u32 v14, v7, 5, v14"); a("v_and_b32 v7, 3, v2"); a("v_lshl_add_u32 v14, v7, 3, v14")
    a("v_add_u32 v14, s21, v14")
    a("s_lshl_b32 s5, s19, 8"); a(f"s_add_u32 s5, s5, {hex(R2G)}")
    a("v_and_b32 v15, 31, v2"); a("v_lshl_add_u32 v15, v15, 3, s5")
    a("s_lshl_b32 s5, s19, 15"); a("s_lshl_b32 s7, s20, 1"); a("s_add_u32 s5, s5, s7")
    a("v_and_b32 v4, 15, v2"); a("v_lshlrev_b32 v4, 10, v4"); a("v_lshrrev_b32 v7, 4, v2"); a("v_lshl_add_u32 v4, v7, 4, v4"); a("v_add_u32 v4, s5, v4")
    HR = W2R + 32; HP = W2R + 48; SR = W2R + 56
    for i in range(28):
        vm.wait(i)
        if i >= NREG: a(f"s_waitcnt lgkmcnt({4 if i + 1 < 28 else 0})")
        wb = W2R + 8 * i if i < NREG else WL[i]
        for j in range(4):
            c = f"v[{ACC+16*j}:{ACC+16*j+15}]"
            a(f"v_mfma_f32_32x32x16_bf16 {c}, {q4(wb+4*(j&1))}, {q4(slot[i]+4*(j>>1))}, {c if i else 0}")
        free.append(slot[i])
        if not (4 <= i < 8): free.append(wb)
        if i == 8:
            a("s_barrier")
            a("s_mov_b32 m0, s21")
            a("buffer_load_dwordx4 v3, s[52:55], 0 offen sc1 lds"); a("buffer_load_dwordx4 v3, s[52:55], 0 offen offset:1024 sc1 lds"); vm.add("r", 2)
            a(f"global_load_dwordx2 {pr(SR)}, v15, {sp(sWS)} sc1"); vm.add("g")
            a(f"global_load_dword v6, v5, {sp(sWS)} sc1"); vm.add("f")
        if i + 2 >= NREG and i + 2 < 28:
            b = free.pop(0); WL[i + 2] = b; w2read(b, where[(i + 2) // 2], (i + 2) % 2)
        want = min(28, i + 1 + HDEP)
        while nxt < want and free:
            if nxt == 20:
                vm.wait("f")
                check_or_poll(a, f"global_load_dword v6, v5, {sp(sWS)} sc1", 6, sleep=1)
            hload(nxt); nxt += 1
        if i == 14: stamp(a, 18)
    stamp(a, 19)
    for k in range(4): a(f"ds_read_b64_tr_b16 {pr(HP+2*k)}, v14 offset:{256*k}")
    for j in range(1, 4):
        a(f"s_xor_b32 s6, s11, {j}"); a("s_mul_i32 s6, s6, 12288"); a(f"s_add_u32 s6, s6, {RED}"); a("v_add_u32 v12, s6, v3")
        for q in range(4): a(f"ds_write_b128 v12, {q4(ACC+16*j+4*q)} offset:{4096*(j-1)+1024*q}")
    a("s_mul_i32 s6, s11, 12288"); a(f"s_add_u32 s6, s6, {RED}"); a("v_add_u32 v13, s6, v3")
    a("v_add_u32 v7, 16384, v4")
    check_or_poll(a, f"global_load_dwordx2 {pr(SR)}, v15, {sp(sWS)} sc1", SR + 1, sleep=1)
    a("s_waitcnt lgkmcnt(12)")
    for k in range(8): a(f"v_lshlrev_b32 v{HR+2*k}, 16, v{HP+k}"); a(f"v_and_b32 v{HR+2*k+1}, s4, v{HP+k}")
    a("s_waitcnt lgkmcnt(0)"); a("s_barrier")
    stamp(a, 20)
    O = ACC; P = 160
    for j in range(3):
        for q in range(4): a(f"ds_read_b128 {q4(P+16*j+4*q)}, v13 offset:{4096*j+1024*q}")
    for j in range(3):
        a(f"s_waitcnt lgkmcnt({4*(2-j)})")
        for p in range(8): a(f"v_pk_add_f32 {pr(O+2*p)}, {pr(O+2*p)}, {pr(P+16*j+2*p)}")
    for p in range(8): a(f"v_pk_fma_f32 {pr(O+2*p)}, {pr(O+2*p)}, {pr(SR)}, {pr(HR+2*p)} op_sel:[0,0,0] op_sel_hi:[1,0,1]")
    for p in range(8): a(f"v_cvt_pk_bf16_f32 v{80+p}, v{O+2*p}, v{O+2*p+1}")
    for p in range(4): a(f"v_permlane16_swap_b32 v{80+p}, v{84+p}")
    a(f"global_store_dwordx4 v4, {q4(80)}, {sp(sOUT)} {OUTFL}")
    a(f"global_store_dwordx4 v7, {q4(84)}, {sp(sOUT)} {OUTFL}")
    stamp(a, 21)

def x_entry(a):
    T = 16
    a("v_and_b32 v2, 63, v0")
    a("s_lshl_b32 s6, s5, 14")
    a("v_lshrrev_b32 v5, 4, v2"); a("v_and_b32 v9, 15, v2")
    a("v_lshlrev_b32 v3, 12, v5"); a("v_lshl_add_u32 v3, v9, 4, v3")
    a("s_lshl_b32 s7, s11, 8"); a("s_add_u32 s7, s7, s6"); a("v_add_u32 v3, s7, v3")
    a("s_waitcnt lgkmcnt(0)")
    stamp(a, 23)
    for i in range(4): a(f"global_load_dwordx4 {q4(T+4*i)}, v3, {sp(sX)} offset:{1024*i} {NT}")
    a("s_barrier")
    stamp(a, 24)
def h_xrole(a):
    T = 16; F = 48; R = 64
    a("v_lshlrev_b32 v4, 8, v9"); a("v_lshl_add_u32 v4, v5, 4, v4")
    a("s_lshl_b32 s7, s11, 12"); a("s_add_u32 s7, s7, s6"); a(f"s_add_u32 s7, s7, {hex(XT)}"); a("v_add_u32 v4, s7, v4")
    a("s_lshl_b32 s7, s11, 7"); a(f"s_add_u32 s7, s7, {MISC}"); a("v_lshl_add_u32 v10, v2, 1, s7")
    a("v_and_b32 v8, 7, v2"); a("v_lshlrev_b32 v8, 4, v8"); a(f"v_add_u32 v11, {MISC}, v8")
    a(f"v_mov_b32 v12, {CNT}"); a("v_mov_b32 v13, 1"); a("v_mov_b32 v7, 0")
    a("s_lshl_b32 s6, s5, 7"); a(f"s_add_u32 s6, s6, {hex(G1)}")
    a("v_add_u32 v8, s6, v8")
    stamp(a, 25)
    a("s_waitcnt vmcnt(4)")
    stamp(a, 26)
    a("s_waitcnt vmcnt(0)")
    stamp(a, 27)
    for i in range(4):
        for e in range(i + 1, 4): a(f"v_swap_b32 v{T+4*i+e}, v{T+4*e+i}")
        a(f"global_store_dwordx4 v4, {q4(T+4*i)}, {sp(sWS)} offset:{64*i} sc1")
    stamp(a, 1)
    a(f"global_load_dword v6, v7, {sp(sDBG)} sc1")
    a("s_mov_b32 s7, 0x3f803f80")
    for j in range(4):
        for r in range(4):
            o = R + 4 * (r >> 1) + (r & 1)
            a(f"v_dot2_f32_bf16 v{o}, v{T+4*j+r}, s7, {('v%d' % o) if j else 0}")
            a(f"v_dot2_f32_bf16 v{o+2}, v{T+4*j+r}, v{T+4*j+r}, {('v%d' % (o+2)) if j else 0}")
    for k in range(4): a(f"v_add_f32_dpp v{R+k}, v{R+k}, v{R+k} row_ror:8 row_mask:0xf bank_mask:0x3")
    for k in range(4): a(f"v_add_f32_dpp v{R+k}, v{R+4+k}, v{R+4+k} row_ror:8 row_mask:0xf bank_mask:0xc")
    for k in range(2): a(f"v_add_f32_dpp v{R+k}, v{R+k}, v{R+k} row_half_mirror row_mask:0xf bank_mask:0x5")
    for k in range(2): a(f"v_add_f32_dpp v{R+k}, v{R+2+k}, v{R+2+k} row_half_mirror row_mask:0xf bank_mask:0xa")
    for ctl in ("quad_perm:[1,0,3,2]", "quad_perm:[2,3,0,1]"):
        for k in range(2): a(f"v_add_f32_dpp v{R+k}, v{R+k}, v{R+k} {ctl} {DPP}")
    a("s_mov_b32 exec_lo, 0x11111111"); a("s_mov_b32 exec_hi, 0x11111111")
    a(f"ds_write_b64 v10, {pr(R)}")
    a("s_mov_b64 exec, 1")
    a("ds_add_u32 v12, v13")
    a("s_mov_b64 exec, -1")
    lds_spin(a, 12, 14, 4)
    for w in range(4): a(f"ds_read_b128 {q4(F+4*w)}, v11 offset:{128*w}")
    a("s_waitcnt lgkmcnt(0)")
    for k in range(2):
        a(f"v_pk_add_f32 {pr(F+2*k)}, {pr(F+2*k)}, {pr(F+4+2*k)}"); a(f"v_pk_add_f32 {pr(F+8+2*k)}, {pr(F+8+2*k)}, {pr(F+12+2*k)}")
    for k in range(2): a(f"v_pk_add_f32 {pr(F+2*k)}, {pr(F+2*k)}, {pr(F+8+2*k)}")
    b0 = Asm(); b1 = Asm()
    ln_final(b0, F, F + 2, 72, 76, 80); ln_final(b1, F + 1, F + 3, 73, 77, 82)
    for x, y in zip(b0.l, b1.l): a(x); a(y)
    a("v_rcp_f32 v76, v76"); a("v_rcp_f32 v77, v77")
    a("v_lshrrev_b32 v72, 16, v72"); a("v_or_b32 v78, v72, v73")
    stamp(a, 22)
    get_nonce(a, 6, first_loaded=True)
    a(f"v_mov_b32 v79, s{sNON}")
    a("s_mov_b64 exec, 1")
    a("ds_add_rtn_u32 v14, v12, v13")
    a("s_waitcnt lgkmcnt(0)")
    a("v_readfirstlane_b32 s7, v14")
    a("s_mov_b64 exec, 0xff")
    a("s_cmp_lg_u32 s7, 7"); a("s_cbranch_scc1 x_nost")
    a(f"global_store_dwordx4 v8, v[76:79], {sp(sWS)} sc1")
    a("x_nost:")
    a("s_mov_b64 exec, -1")
    stamp(a, 2)
    if XPRE: a(f"s_sleep {XPRE}")
XF = 224; W1R = 96
def h_u(a):
    GL = 112; GR = 128; XR = 144; W = 160; UPK = 184; MM = 192; RR = 200
    late_ids(a)
    a("v_and_b32 v2, 63, v0"); a("v_lshlrev_b32 v3, 4, v2")
    a("s_lshl_b32 s5, s13, 7")
    for m, p in enumerate((sWG, sWU)):
        d = 52 + 4 * m
        a(f"s_add_u32 s{d}, s{p}, s5"); a(f"s_addc_u32 s{d+1}, s{p+1}, 0"); a(f"s_and_b32 s{d+1}, s{d+1}, 0xffff")
        a(f"s_mov_b32 s{d+2}, {511*3584+128}"); a(f"s_mov_b32 s{d+3}, 0x00020000")
    a("v_lshrrev_b32 v5, 3, v2"); a("v_mul_u32_u24 v5, 3584, v5"); a("v_bfe_u32 v6, v2, 4, 1"); a("v_lshlrev_b32 v6, 1, v6")
    a("v_and_b32 v10, 7, v2"); a("v_xor_b32 v10, v10, v6"); a("v_xor_b32 v11, 4, v10")
    a("v_lshl_add_u32 v10, v10, 4, v5"); a("v_lshl_add_u32 v11, v11, 4, v5")
    a("s_lshl_b32 s18, s11, 13"); a("s_mul_i32 s19, s11, 114688"); a("s_mov_b32 s20, s34")
    a("v_bfe_u32 v5, v2, 2, 2"); a("v_lshrrev_b32 v6, 4, v2"); a("v_lshlrev_b32 v12, 10, v6"); a("v_lshl_add_u32 v12, v5, 7, v12")
    a("v_lshrrev_b32 v5, 1, v5"); a("v_and_b32 v6, 1, v6"); a("v_lshl_add_u32 v5, v6, 1, v5"); a("v_xor_b32 v5, s11, v5"); a("v_lshl_add_u32 v12, v5, 5, v12")
    a("v_and_b32 v5, 3, v2"); a("v_lshl_add_u32 v12, v5, 3, v12"); a("v_add_u32 v13, 65536, v12")
    a(f"v_mov_b32 v14, {CNT}"); a("v_mov_b32 v1, 1"); a("s_mov_b32 s21, 0x3f803f80")
    a("v_bfe_u32 v5, v0, 3, 1"); a("v_xor_b32 v5, v5, v0"); a("v_lshlrev_b32 v5, 4, v5"); a(f"v_add_u32 v240, {YY}, v5")
    a("v_lshrrev_b32 v6, 2, v0"); a("v_lshlrev_b32 v6, 15, v6"); a("v_and_b32 v7, 3, v0"); a("v_lshl_add_u32 v6, v7, 4, v6")
    a("s_lshl_b32 s5, s3, 7"); a(f"s_add_u32 s5, s5, {hex(HB)}"); a("v_add_u32 v241, s5, v6")
    a("s_lshl_b32 s22, s11, 12"); a("s_lshl_b32 s5, s3, 4"); a("s_add_u32 s22, s22, s5"); a(f"s_add_u32 s22, s22, {hex(F2)}")
    a("s_lshl_b32 s5, s11, 12"); a("v_add_u32 v5, s5, v3")
    a(f"v_add_u32 v8, {YY}, v5"); a(f"s_add_u32 s5, s5, {YY}"); a("v_lshl_add_u32 v9, v2, 6, s5")
    if G1: a(f"v_add_u32 v5, {hex(G1)}, v5")
    a("v_lshrrev_b32 v6, 1, v0"); a("v_lshlrev_b32 v6, 14, v6"); a("v_and_b32 v7, 1, v0"); a("v_lshl_add_u32 v6, v7, 5, v6")
    a("s_lshl_b32 s5, s3, 6"); a(f"s_add_u32 s5, s5, {hex(XT)}"); a("v_add_u32 v6, s5, v6")
    a("s_lshl_b32 s5, s3, 2")
    a(f"s_load_dword s7, {sp(sDSK)}, s5")
    a("v_lshlrev_b32 v15, 4, v0"); a(f"v_add_u32 v7, {UU+512}, v15")
    stamp(a, 3)
    poll(a, [f"global_load_dwordx4 {q4(GL+4*p)}, v5, {sp(sWS)} offset:{1024*p} sc1" for p in range(4)], [GL + 4 * p + 3 for p in range(4)], sleep=1, pre=P1PRE)
    stamp(a, 4)
    a(f"global_load_dwordx4 {q4(XR)}, v6, {sp(sWS)} sc1")
    a(f"global_load_dwordx4 {q4(XR+4)}, v6, {sp(sWS)} offset:16 sc1")
    for p in range(4): a(f"ds_write_b128 v8, {q4(GL+4*p)} offset:{1024*p}")
    for p in range(4): a(f"ds_read_b128 {q4(GR+4*p)}, v9 offset:{16*p}")
    a("s_waitcnt lgkmcnt(0)")
    a("s_lshl_b32 s72, s7, 16"); a("s_mov_b32 s73, s72"); a("s_and_b32 s74, s7, 0xffff0000"); a("s_mov_b32 s75, s74")
    for p in range(4):
        a(f"v_lshlrev_b32 v{MM+2*p}, 16, v{GR+4*p+2}"); a(f"v_and_b32 v{MM+2*p+1}, s4, v{GR+4*p+2}")
    for p in range(4): a(f"v_pk_mul_f32 {pr(MM+2*p)}, {pr(MM+2*p)}, {pr(GR+4*p)} neg_lo:[1,0] neg_hi:[1,0]")
    a("s_waitcnt vmcnt(0)")
    stamp(a, 5)
    for j in range(8):
        a(f"v_lshlrev_b32 v{XF+j}, 16, v{XR+j}"); a(f"v_and_b32 v{XF+8+j}, s4, v{XR+j}")
    cp = [(ch, p) for ch in range(2) for p in range(4)]
    for i, (ch, p) in enumerate(cp): a(f"v_pk_fma_f32 {pr(W+2*i)}, {pr(XF+8*ch+2*p)}, {pr(GR+4*p)}, {pr(MM+2*p)}")
    for i, (ch, p) in enumerate(cp):
        a(f"v_cvt_pk_bf16_f32 v{UPK+4*ch+3-p}, v{W+2*i+1}, v{W+2*i}")
        if p == 3: a(f"ds_write_b128 v7, {q4(UPK+4*ch)} offset:{UCH*ch}")
    a("s_waitcnt lgkmcnt(0)")
    stamp(a, 6)
    a("s_barrier")
    return [f"v_pk_fma_f32 {pr(XF+2*i)}, {pr(W+2*i)}, s[{72+2*ch}:{73+2*ch}], {pr(XF+2*i)}" for i, (ch, p) in enumerate(cp)]
def h_phaseB(a, deferred):
    vm = VM(a)
    a(f"s_setprio {BPRIO}")
    def dma(c, slot):
        a("s_and_b32 s5, s20, 3"); a("s_mul_i32 s5, s5, 458752"); a("s_add_u32 s5, s5, s19"); a("s_add_u32 s20, s20, 1")
        for o in range(4):
            a(f"s_add_u32 m0, s18, {SL[slot]+2048*o}")
            a(f"buffer_load_dwordx4 v10, s[52:55], s5 offen {DNT} lds")
            a(f"s_add_u32 m0, s18, {SL[slot]+2048*o+1024}")
            a(f"buffer_load_dwordx4 v11, s[56:59], s5 offen {DNT} lds")
            if o < 3: a("s_add_u32 s5, s5, 28672")
        vm.add(c, 8)
    a("s_cmp_eq_u32 s15, 7"); a("s_cbranch_scc1 h_spB")
    dma(0, 0)
    dma(1, 1); dma(2, 2)
    for x in deferred: a(x)
    SM = 80
    nsy = [0]
    def sync(c):
        vm.wait(c)
        a("s_mov_b64 exec, 1"); a("ds_add_u32 v14, v1 offset:12"); a("s_mov_b64 exec, -1")
        nsy[0] += 1
        lds_spin(a, 14, 4, 4 * nsy[0], off=12)
    def grab(c, slot):
        for ks in range(8):
            for h in range(2): a(f"ds_read_b64_tr_b16 {pr(W1R+32*c+4*ks+2*h)}, v{12+slot//2} offset:{(slot%2)*32768+4096*ks+512*h}")
    def sums(c):
        for k in range(32): a(f"v_dot2_f32_bf16 v{SM+k%4}, v{W1R+32*c+k}, s21, {('v%d' % (SM+k%4)) if (c or k >= 4) else 0}")
    stamp(a, 7)
    sync(1); grab(0, 0); grab(1, 1)
    stamp(a, 19)
    sync(2); dma(3, 0); grab(2, 2)
    stamp(a, 8)
    a("s_branch h_spJ")
    a("h_spB:")
    if WARM2: warm2(a)
    for x in deferred: a(x)
    a("h_spJ:")
    stamp(a, 9)
    a("s_setprio 2")
    a("s_barrier")
    stamp(a, 10)
    R = 16; U = 32
    for w in range(4): a(f"ds_read_b128 {q4(R+4*w)}, v240 offset:{4096*w}")
    for ch in range(2):
        a(f"s_waitcnt lgkmcnt({2*(1-ch)})")
        for hlf in range(2):
            for p in range(4):
                a(f"v_lshlrev_b32 v{U+8*hlf+2*p}, 16, v{R+8*ch+4*hlf+p}"); a(f"v_and_b32 v{U+8*hlf+2*p+1}, s4, v{R+8*ch+4*hlf+p}")
        for p in range(4): a(f"v_pk_add_f32 {pr(U+2*p)}, {pr(U+2*p)}, {pr(U+8+2*p)}")
        for p in range(4): a(f"v_pk_add_f32 {pr(U+2*p)}, {pr(U+2*p)}, {pr(XF+8*ch+2*p)}")
        for p in range(4): a(f"v_cvt_pk_bf16_f32 v{48+4*ch+p}, v{U+2*p}, v{U+2*p+1}")
        a(f"global_store_dwordx4 v241, {q4(48+4*ch)}, {sp(sWS)} offset:{64*ch} sc1"); vm.add("s")
    stamp(a, 11)
    a("s_cmp_eq_u32 s15, 7"); a("s_cbranch_scc1 h_spare")
    sync(3); grab(3, 0); sums(0); sums(1)
    a("s_waitcnt vmcnt(0)"); flag_store(a, "s22", 8); stamp(a, 12)
    a("s_waitcnt lgkmcnt(0)")
    a("s_barrier")
    sums(2); sums(3)
    a(f"v_pk_add_f32 {pr(SM)}, {pr(SM)}, {pr(SM+2)}"); a(f"v_add_f32 v{SM}, v{SM}, v{SM+1}"); a(f"v_mov_b32 v{SM+1}, v{SM}")
    a(f"v_permlane32_swap_b32 v{SM}, v{SM+1}"); a(f"v_add_f32 v{SM}, v{SM}, v{SM+1}"); a(f"v_mul_f32 v{SM}, {f2u(-1/512)}, v{SM}")
    a("s_mov_b32 s8, 0x00003f80"); a("s_mov_b32 s9, 0x3f800000")
KORD = [8 * (n & 3) + (n >> 2) for n in range(32)]
def center(ks):
    SM = 80; T = 224 + 8 * (KORD.index(ks) & 1); L = []
    for j in range(4):
        L.append(f"v_dot2_f32_bf16 v{T+2*j}, v{W1R+4*ks+j}, s8, v{SM}"); L.append(f"v_dot2_f32_bf16 v{T+2*j+1}, v{W1R+4*ks+j}, s9, v{SM}")
    M = [f"v_cvt_pk_bf16_f32 v{W1R+4*ks+j}, v{T+2*j}, v{T+2*j+1}" for j in range(4)]
    return L, M
def h_addr(a):
    a("v_bfe_u32 v6, v2, 2, 2"); a("v_lshrrev_b32 v8, 5, v2"); a("v_lshl_add_u32 v6, v8, 3, v6"); a("v_lshlrev_b32 v6, 6, v6")
    a("v_bfe_u32 v7, v2, 4, 1"); a("v_lshl_add_u32 v6, v7, 5, v6"); a("v_and_b32 v7, 3, v2"); a("v_lshl_add_u32 v12, v7, 3, v6")
    a("v_add_u32 v13, 65536, v12")
def h_phaseC(a):
    pend = []
    for n in range(32):
        L, M = center(KORD[n])
        for x in L[:4] + pend + L[4:]: a(x)
        pend = M
    for x in pend: a(x)
    a("s_lshl_b32 s5, s12, 2"); a("s_mul_i32 s5, s5, 112"); a("s_lshl_b32 s6, s13, 2"); a("s_add_u32 s5, s5, s6"); a("s_add_u32 s5, s5, s11")
    a("s_lshl_b32 s5, s5, 11"); a(f"s_add_u32 s5, s5, {hex(HF)}"); srd(a, 60, "s5", 4 * 229376)
    a("s_mul_i32 s22, s12, 28"); a("s_add_u32 s22, s22, s13"); a("s_lshl_b32 s22, s22, 2"); a("s_add_u32 s22, s22, s11")
    a("s_lshl_b32 s22, s22, 4"); a(f"s_add_u32 s22, s22, {hex(F3)}")
    stamp(a, 13)
    ACC = [16, 32]; BF = 48; NB = 8; PK = 80; LEAD = HLEAD
    def acc(i): return f"v[{ACC[i]}:{ACC[i]+15}]"
    def bread(g):
        j, n = divmod(g, 32); sl = 1 + (j & 1); r = BF + 4 * (g % NB)
        for h in range(2): a(f"ds_read_b64_tr_b16 {pr(r+2*h)}, v{12+sl//2} offset:{(sl%2)*32768+1024*KORD[n]+256*h}")
    def epi(ai):
        b = ACC[ai]; L = []
        for q in range(4):
            if EPK: L.append(f"v_pk_mul_f32 {pr(b+2*q)}, {pr(b+2*q)}, {pr(b+8+2*q)}")
            else: L.append(f"v_mul_f32 v{b+2*q}, v{b+2*q}, v{b+8+2*q}\nv_mul_f32 v{b+2*q+1}, v{b+2*q+1}, v{b+9+2*q}")
        L.append("s_and_b32 s5, s49, 7\ns_lshr_b32 s6, s5, 1\ns_mul_i32 s6, s6, 229376")
        for q in range(4): L.append(f"v_cvt_pk_bf16_f32 v{PK+q}, v{b+2*q}, v{b+2*q+1}")
        L.append("s_and_b32 s5, s5, 1\ns_lshl_b32 s5, s5, 10\ns_add_u32 s5, s5, s6\ns_lshr_b32 s49, s49, 4")
        L.append(f"buffer_store_dwordx4 {q4(PK)}, v3, s[60:63], s5 offen sc1")
        return L
    a("s_barrier")
    stamp(a, 14)
    BARN = 32 - BLEAD
    avail = 12; rd = 0
    while rd < LEAD: bread(rd); rd += 1
    for g in range(256):
        j, n = divmod(g, 32)
        bar = (g == 12 - BLEAD) or (n == BARN and j < 7)
        if bar:
            key = {12 - BLEAD: 20, BARN: 22, 128 + BARN: 24, 160 + BARN: 26}.get(g)
            assert rd == avail
            if g != 12 - BLEAD: a("s_waitcnt lgkmcnt(0)")
            if key and os.environ.get("BST"): stamp(a, key)
            a("s_barrier")
            if key and os.environ.get("BST"): stamp(a, key + 1)
            avail = 32 if g < 12 else avail + 32
        a(f"s_waitcnt lgkmcnt({2*(rd-g-1)})")
        a(f"v_mfma_f32_32x32x16_bf16 {acc(j&1)}, {q4(W1R+4*KORD[n])}, {q4(BF+4*(g%NB))}, {acc(j&1) if n else 0}")
        for k in range(2):
            if rd < min(avail, g + 1 + LEAD): bread(rd); rd += 1
        if j and 3 <= n < 13: a(epi((j - 1) & 1)[n - 3])
        if j and n == (STN if j < 7 else max(13, FLAGA + 1)): a(epi((j - 1) & 1)[10])
        if j == 7 and n == FLAGA:
            a("s_waitcnt vmcnt(0)"); flag_store(a, "s22", 5)
        if n == 31 and j in (0, 3): stamp(a, 15 if j == 0 else 16)
    stamp(a, 17)
    for x in epi(1): a(x)
    a("s_add_u32 s22, s22, 0x8000")
    a("s_waitcnt vmcnt(0)"); flag_store(a, "s22", 5)
    stamp(a, 18)
def h_var(a):
    a("s_waitcnt vmcnt(0)"); flag_store(a, "s22", 8)
    a("s_cmp_ge_u32 s11, 2"); a("s_cbranch_scc1 k_done")
    h_addr(a)
    a("s_barrier"); a("s_barrier"); a("s_barrier")
    a("s_cmp_eq_u32 s11, 0"); a("s_cbranch_scc1 v_a")
    a("s_barrier")
    a("v_a:")
    a("s_lshl_b32 s5, s11, 15"); a(f"s_add_u32 s5, s5, {SL[1]}"); a("v_add_u32 v12, s5, v12")
    for n in range(32):
        for h in range(2): a(f"ds_read_b64_tr_b16 {pr(W1R+4*n+2*h)}, v12 offset:{1024*n+256*h}")
    a("s_waitcnt lgkmcnt(0)")
    a("s_cmp_lg_u32 s11, 0"); a("s_cbranch_scc1 v_b")
    a("s_barrier")
    a("v_b:")
    for k in range(128):
        a(f"v_dot2_f32_bf16 v{16+k%2}, v{W1R+k}, s21, {('v%d' % (16+k%2)) if k >= 2 else 0}")
        a(f"v_dot2_f32_bf16 v{18+k%2}, v{W1R+k}, v{W1R+k}, {('v%d' % (18+k%2)) if k >= 2 else 0}")
    a("v_add_f32 v16, v16, v17"); a("v_add_f32 v18, v18, v19"); a("v_mov_b32 v17, v16"); a("v_mov_b32 v19, v18")
    a("v_permlane32_swap_b32 v16, v17"); a("v_permlane32_swap_b32 v18, v19"); a("v_add_f32 v16, v16, v17"); a("v_add_f32 v18, v18, v19")
    ln_final(a, 16, 18, 20, 22, 24)
    a("v_mul_f32 v22, v22, v22"); a("v_rcp_f32 v22, v22"); a(f"v_mov_b32 v23, s{sNON}")
    a("s_lshl_b32 s5, s14, 1"); a("s_add_u32 s5, s5, s11"); a("s_lshl_b32 s5, s5, 8"); a(f"s_add_u32 s5, s5, {hex(R2G)}")
    a("v_and_b32 v5, 31, v2"); a("v_lshl_add_u32 v5, v5, 3, s5")
    a("s_mov_b32 exec_hi, 0")
    a(f"global_store_dwordx2 v5, v[22:23], {sp(sWS)} sc1")

W1FL = os.environ.get("W1FL", "sc1"); NT = os.environ.get("NT", "nt"); W1DLY = int(os.environ.get("W1DLY", 0))
CPF = int(os.environ.get("CPF", 1))
XPRE = int(os.environ.get("XPRE", 7)); IDLEPRE = int(os.environ.get("IDLEPRE", 42)); W2B = int(os.environ.get("W2B", 5))
W2SCH = [int(c) for c in os.environ.get("W2SCH", "111111")]; ORDER = int(os.environ.get("ORDER", 1)); BLEAD = int(os.environ.get("BLEAD", 4)); HLEAD = int(os.environ.get("HLEAD", 7)); STN = int(os.environ.get("STN", 13)); EPK = int(os.environ.get("EPK", 0)); BPRIO = int(os.environ.get("BPRIO", 3)); WDLY = int(os.environ.get("WDLY", 8)); B3AT = int(os.environ.get("B3AT", 2)); FLAG1ST = int(os.environ.get("FLAG1ST", 1))
WARM = int(os.environ.get("WARM", 1)); WARM2 = int(os.environ.get("WARM2", 1)); WNT = os.environ.get("WNT", "nt"); MAP3 = int(os.environ.get("MAP3", 1)); DNT = os.environ.get("DNT", "")
DSGAP = int(os.environ.get("DSGAP", 5)); FLAGA = int(os.environ.get("FLAGA", 2))
P1PRE = int(os.environ.get("P1PRE", 0)); P2PRE = int(os.environ.get("P2PRE", 0)); P3PRE = int(os.environ.get("P3PRE", 14))
W2PRE = int(os.environ.get("W2PRE", 4)); HDEP = int(os.environ.get("HDEP", 6)); OUTFL = os.environ.get("OUTFL", "")

def kernel():
    a = Asm()
    a("s_cmp_ge_u32 s2, 256"); a("s_cbranch_scc1 k_done")
    if PROF:
        a("v_mov_b32 v255, 0")
        a("s_memrealtime s[100:101]"); a("s_waitcnt lgkmcnt(0)"); a("v_writelane_b32 v255, s100, 30")
        stamp(a, 0)
    a("s_load_dwordx16 s[16:31], s[0:1], 0")
    a("s_load_dwordx16 s[32:47], s[0:1], 64")
    a("s_memrealtime s[92:93]")
    if CPF:
        a("s_getpc_b64 s[90:91]")
        a("k_pc:")
        a("s_bfe_u32 s5, s2, 0x30003"); a("s_mul_i32 s5, s5, 5"); a("s_lshr_b32 s5, s5, 3"); a("s_lshl_b32 s5, s5, 13")
        a("v_lshrrev_b32 v1, 3, v0"); a("v_lshl_add_u32 v1, v1, 7, s5")
        a("v_min_u32 v1, k_end-k_pc-4, v1")
        a("global_load_dword v254, v1, s[90:91]")
    a("v_lshrrev_b32 v1, 6, v0")
    a("v_readfirstlane_b32 s10, v1")
    a("v_and_b32 v0, 255, v0")
    common_ids(a)
    a("s_and_b32 s11, s10, 3")
    a("s_cmp_ge_u32 s10, 4"); a("s_cbranch_scc1 e_h")
    m_entry(a)
    a("s_branch m_main")
    a("e_h:")
    a("s_setprio 2")
    a("s_cmp_lt_u32 s2, 128"); a("s_cbranch_scc1 e_x")
    warm1(a)
    a(f"s_sleep {IDLEPRE}")
    get_nonce(a, 6)
    a("s_branch h_join")
    a("e_x:")
    a("s_mov_b32 s5, s2")
    x_entry(a)
    h_xrole(a)
    a("h_join:")
    h_phaseB(a, h_u(a)); h_addr(a)
    h_phaseC(a)
    stamp_out(a)
    a("s_endpgm")
    a("m_main:")
    m_kgen(a); m_conv(a)
    m_phaseD(a, *m_phaseC(a))
    stamp_out(a)
    a("s_endpgm")
    a("h_spare:")
    h_var(a)
    a("k_done:")
    a("s_endpgm")
    a("k_end:")
    return a
def probe_kernel():
    w, st, nwg, mode, K = PROBE
    a = Asm()
    a("s_cmp_ge_u32 s2, 1"); a("s_cbranch_scc1 pr_done")
    a("s_load_dwordx2 s[46:47], s[0:1], 120")
    a("v_lshlrev_b32 v1, 10, v0"); a(f"v_add_u32 v1, {hex(PBUF)}, v1")
    a("s_waitcnt lgkmcnt(0)")
    n = nwg // 32
    for i in range(8):
        a(f"global_load_dword v{8+i}, v1, s[46:47]");
        if i < n: a(f"global_load_dword v{16+i}, v1, s[46:47] offset:{w*128+st*4}")
        a("v_add_u32 v1, 32768, v1")
    a("s_waitcnt vmcnt(0)")
    for i in range(1, 8): a(f"v_min_u32 v8, v8, v{8+i}")
    a("s_mov_b32 s10, -1")
    for l in range(32): a(f"v_readlane_b32 s11, v8, {l}"); a("s_min_u32 s10, s10, s11")
    for i in range(n): a(f"v_subrev_u32 v{16+i}, s10, v{16+i}")
    for i in range(1, n): a(f"{'v_add_u32' if mode else 'v_max_u32'} v16, v16, v{16+i}")
    a("s_mov_b32 s12, 0")
    for l in range(32): a(f"v_readlane_b32 s11, v16, {l}"); a(f"{'s_add_u32' if mode else 's_max_u32'} s12, s12, s11")
    a(f"s_mul_i32 s12, s12, {K}")
    if mode: a(f"s_mul_hi_u32 s12, s12, {hex((1<<32)//nwg)}")
    a("s_min_u32 s12, s12, 200000")
    a("s_memrealtime s[14:15]"); a("s_waitcnt lgkmcnt(0)")
    a("pr_l:")
    a("s_memrealtime s[16:17]"); a("s_waitcnt lgkmcnt(0)"); a("s_sub_u32 s16, s16, s14"); a("s_cmp_lt_u32 s16, s12"); a("s_cbranch_scc1 pr_l")
    a("pr_done:"); a("s_endpgm")
    return a
if __name__ == "__main__":
    a = kernel()
    kn = NAME + "_kernel"
    if PROBE:
        s = f"; @launch kernel={kn} grid=(256,1,1) block=(512,1,1) lds={LDS_TOTAL}\n; @launch kernel=probe_kernel grid=(1,1,1) block=(32,1,1) lds=0\n"
        s += '.amdgcn_target "amdgcn-amd-amdhsa--gfx950"\n.text\n' + head(kn) + a.text(True) + head("probe_kernel") + probe_kernel().text() + '.section .rodata,"a"\n' + kd(kn, 256) + kd("probe_kernel", 32)
    else:
        s = f"; @launch grid=(256,1,1) block=(512,1,1) lds={LDS_TOTAL}\n"
        s += '.amdgcn_target "amdgcn-amd-amdhsa--gfx950"\n.text\n' + head(kn) + a.text(True) + '.section .rodata,"a"\n' + kd(kn, 256)
    open(sys.argv[1] if len(sys.argv) > 1 else "f.s", "w").write(s)
```

```python
import sys, os, struct
from asmlib import *
NAME = "sequential_preLN__ssm_conv_s4__glu_gated_bilinear__prompt"
PROF = bool(os.environ.get("PROF"))
PROBE = [int(x) for x in os.environ["PROBE"].split(",")] if os.environ.get("PROBE") else None
G1 = 0x0; F2 = 0x4000; R2G = 0x8000; EPO = 0xC000; F3 = 0x20000
XT = 0x100000; HB = 0x300000; HF = 0x500000
PBUF = 0x2000000
sX, sARE, sAIM, sBRE, sBIM, sCRE, sCIM, sLDT, sDSK, sWG, sWU, sWD, sOUT, sDBG, sWS = \
    16, 18, 20, 22, 24, 26, 28, 30, 32, 36, 38, 40, 42, 44, 46
sNON = 48
SL = [0, 32768, 65536, 98304]; RING = 131072; RD = 7; MISC = 159744; LDS_TOTAL = 163840
CSTR = 11 * 512 + 32; TCH = 8 * CSTR; TAB = 0; TOE = SL[3]; TCP = 4160; UU = TOE + 8 * TCP; UCH = 4608; YY = UU + 2 * UCH
assert YY + 16384 <= MISC and 2 * TCH <= SL[3]
CNT = MISC + 4032
RES = SL[1]; RED = SL[1] + 8192; UP = 131072
DPP = "row_mask:0xf bank_mask:0xf"
SPIN = 1 << 16
def sp(b): return f"s[{b}:{b+1}]"
def pr(b): return f"v[{b}:{b+1}]"
def q4(b): return f"v[{b}:{b+3}]"
def f2u(x): return "0x%08x" % struct.unpack("<I", struct.pack("<f", x))[0]
def wsptr(a, dst, off):
    a(f"s_add_u32 s{dst}, s{sWS}, {hex(off) if isinstance(off, int) else off}"); a(f"s_addc_u32 s{dst+1}, s{sWS+1}, 0")
def srd(a, d, off, size):
    wsptr(a, d, off)
    a(f"s_and_b32 s{d+1}, s{d+1}, 0xffff"); a(f"s_mov_b32 s{d+2}, {hex(size)}"); a(f"s_mov_b32 s{d+3}, 0x00020000")
_st = {}
def stamp(a, i):
    if PROF:
        if PROBE and i not in (0, 29, PROBE[1]): return
        a(("s_memrealtime" if (PROBE or os.environ.get("RT")) else "s_memtime") + " s[100:101]"); a("s_waitcnt lgkmcnt(0)"); a(f"v_writelane_b32 v255, s100, {i}")
def stamp_out(a):
    if not PROF: return
    a("s_waitcnt vmcnt(0)")
    stamp(a, 29)
    a("s_memrealtime s[100:101]"); a("s_waitcnt lgkmcnt(0)"); a("v_writelane_b32 v255, s100, 31")
    a("s_lshl_b32 s3, s2, 3"); a("s_add_u32 s3, s3, s10"); a("s_lshl_b32 s3, s3, 7"); a(f"s_add_u32 s3, s3, {hex(PBUF)}")
    a("v_mbcnt_lo_u32_b32 v1, -1, 0"); a("v_lshl_add_u32 v1, v1, 2, s3")
    a("s_mov_b32 exec_hi, 0")
    a(f"global_store_dword v1, v255, {sp(sWS)}")
_lab = [0]
def poll(a, loads, checks, sleep=2, pre=0):
    _lab[0] += 1; n = _lab[0]
    a("s_mov_b64 s[98:99], exec")
    a("s_mov_b32 s97, 0")
    if pre: a(f"s_sleep {pre}")
    a(f"poll{n}:")
    for x in loads: a(x)
    a("s_add_u32 s97, s97, 1")
    a("s_waitcnt vmcnt(0)")
    if len(checks) == 1:
        a(f"v_cmp_ne_u32 vcc, s{sNON}, v{checks[0]}")
    else:
        a(f"v_cmp_ne_u32 vcc, s{sNON}, v{checks[0]}")
        for c in checks[1:]:
            a(f"v_cmp_ne_u32 s[94:95], s{sNON}, v{c}"); a("s_nop 0"); a("s_or_b64 vcc, vcc, s[94:95]")
    a("s_and_b64 exec, exec, vcc")
    a(f"s_cbranch_execz pollx{n}")
    a(f"s_cmp_ge_u32 s97, {SPIN}"); a(f"s_cbranch_scc1 pollx{n}")
    if sleep: a(f"s_sleep {sleep}")
    a(f"s_branch poll{n}")
    a(f"pollx{n}:")
    a("s_mov_b64 exec, s[98:99]")
def epoch_load(a): a(f"s_load_dword s{sNON}, {sp(sWS)}, {hex(EPO)}")
def epoch_mix(a):
    a(f"s_mul_i32 s{sNON}, s{sNON}, 0x9e3779b1"); a(f"s_add_u32 s{sNON}, s{sNON}, 0x7f4a7c15")
def lds_spin(a, vaddr, vt, target, off=0):
    _lab[0] += 1; n = _lab[0]
    a("s_mov_b32 s97, 0")
    a(f"lsp{n}:")
    a(f"ds_read_b32 v{vt}, v{vaddr} offset:{off}")
    a("s_add_u32 s97, s97, 1")
    a("s_waitcnt lgkmcnt(0)")
    a(f"v_readfirstlane_b32 s96, v{vt}")
    a(f"s_cmp_ge_u32 s97, {SPIN*8}"); a(f"s_cbranch_scc1 lsx{n}")
    a(f"s_cmp_lt_u32 s96, {target}"); a(f"s_cbranch_scc1 lsp{n}")
    a(f"lsx{n}:")
def check_or_poll(a, load, reg, sleep=2):
    _lab[0] += 1; n = _lab[0]
    a(f"v_cmp_ne_u32 vcc, s{sNON}, v{reg}")
    a(f"s_cbranch_vccz cok{n}")
    poll(a, [load], [reg], sleep=sleep)
    a(f"cok{n}:")
def flag_store(a, soff, vt):
    a(f"v_mov_b32 v{vt}, {soff}"); a(f"v_mov_b32 v{vt+1}, s{sNON}")
    a("s_mov_b64 exec, 1")
    a(f"global_store_dword v{vt}, v{vt+1}, {sp(sWS)} sc1")
    a("s_mov_b64 exec, -1")
def ln_final(a, S, Q, M, SD, T):
    a(f"v_mul_f32 v{T}, {f2u(1/512)}, v{S}")
    a(f"v_mul_f32 v{T+1}, {f2u(1/512)}, v{Q}")
    a(f"v_fma_f32 v{T+1}, -v{T}, v{T}, v{T+1}")
    a(f"v_max_f32 v{T+1}, 0, v{T+1}")
    a(f"v_cvt_pk_bf16_f32 v{T}, v{T}, v{T+1}")
    a(f"v_lshlrev_b32 v{M}, 16, v{T}")
    a(f"v_and_b32 v{T+1}, 0xffff0000, v{T}")
    a(f"v_add_f32 v{T+1}, {f2u(1e-5)}, v{T+1}")
    a(f"v_cvt_pk_bf16_f32 v{T+1}, v{T+1}, v{T+1}")
    a(f"v_lshlrev_b32 v{T+1}, 16, v{T+1}")
    a(f"v_sqrt_f32 v{T+1}, v{T+1}")
    a(f"v_cvt_pk_bf16_f32 v{T+1}, v{T+1}, v{T+1}")
    a(f"v_lshlrev_b32 v{SD}, 16, v{T+1}")
def cmul_batch(a, jobs):
    for d, x, y in jobs: a(f"v_pk_mul_f32 {pr(d)}, {pr(x)}, {pr(y)} op_sel:[0,0] op_sel_hi:[1,0]")
    for d, x, y in jobs: a(f"v_pk_fma_f32 {pr(d)}, {pr(x)}, {pr(y)}, {pr(d)} op_sel:[1,1,0] op_sel_hi:[0,1,1] neg_lo:[1,0,0]")

def common_ids(a):
    a("s_and_b32 s14, s2, 7"); a("s_lshl_b32 s3, s14, 5"); a("s_lshr_b32 s5, s2, 3"); a("s_add_u32 s3, s3, s5")
    a("s_mov_b32 s4, 0xffff0000")
def late_ids(a):
    a("s_and_b32 s50, s2, 3")
    a("s_lshr_b32 s15, s2, 5")
    a("s_bfe_u32 s34, s2, 0x20003")
    a("s_and_b32 s12, s2, 4"); a("s_add_u32 s12, s12, s34")
    a("s_mul_i32 s13, s50, 7"); a("s_add_u32 s13, s13, s15")
    a("s_mov_b32 s49, s15")
    a("s_and_b32 s5, s15, 3"); a("s_cmp_eq_u32 s5, 3"); a("s_cselect_b32 s5, 4, 0"); a("s_xor_b32 s15, s15, s5")
    a("s_and_b32 s49, s49, 3")
    def order(lst): return hex(sum(t << (4 * i) for i, t in enumerate(lst)))
    tab = [order([t for q in PORD[c] for t in (2 * q, 2 * q + 1)]) for c in range(4)]
    a("s_cmp_eq_u32 s49, 1"); a(f"s_mov_b32 s5, {tab[0]}"); a(f"s_cselect_b32 s5, {tab[1]}, s5")
    a("s_cmp_eq_u32 s49, 2"); a(f"s_cselect_b32 s5, {tab[2]}, s5")
    a("s_cmp_eq_u32 s49, 3"); a(f"s_cselect_b32 s49, {tab[3]}, s5")
    a("s_mul_i32 s5, s50, 0x22222222"); a("s_add_u32 s5, s5, 0x10101010")
    a("s_cmp_eq_u32 s15, 3"); a("s_cselect_b32 s49, s5, s49"); a("s_cselect_b32 s13, 0, s13")
    a("s_lshl_b32 s14, s12, 2"); a("s_add_u32 s14, s14, s50")

PR = 8; WA = 240
def m_entry(a):
    a("s_lshl_b32 s5, s3, 9")
    a("v_lshl_add_u32 v2, v0, 1, s5")
    a("s_lshl_b32 s5, s3, 2")
    for i in range(6): a(f"v_mov_b32 v{PR+i}, 0")
    a(f"v_mov_b32 v6, {CNT}"); a(f"ds_write_b128 v6, {q4(PR)}")
    a("s_waitcnt lgkmcnt(0)")
    stamp(a, 23)
    for i, p in enumerate((sARE, sAIM, sBRE, sBIM, sCRE, sCIM)):
        a(f"global_load_short_d16_hi v{PR+i}, v2, {sp(p)} {NT}")
    a(f"s_load_dword s6, {sp(sLDT)}, s5")
    epoch_load(a)
    a("s_barrier")
def m_kgen(a):
    a("v_lshrrev_b32 v6, 5, v0"); a(f"v_mul_u32_u24 v6, {UCH}, v6"); a("v_and_b32 v7, 31, v0")
    a("v_lshl_add_u32 v6, v7, 4, v6"); a(f"v_add_u32 v6, {UU}, v6")
    a("v_bfe_u32 v7, v0, 1, 3"); a(f"v_mul_u32_u24 v7, {TCP}, v7"); a("v_and_b32 v40, 1, v0")
    a("v_lshl_add_u32 v7, v40, 4, v7"); a(f"v_add_u32 v7, {TOE}, v7")
    a("v_cmp_gt_u32 vcc, 64, v0")
    for i in range(4): a(f"v_mov_b32 v{36+i}, 0")
    a("v_cndmask_b32 v6, v7, v6, vcc")
    a("ds_write_b128 v6, v[36:39]")
    late_ids(a)
    a("s_lshr_b32 s7, s10, 1")
    a(f"s_mul_i32 s8, s7, {TCH}")
    a("v_and_b32 v7, 127, v0"); a(f"v_lshl_add_u32 v{WA}, v7, 2, s8")
    for c in range(1, 8): a(f"v_add_u32 v{WA+c}, {c*CSTR}, v{WA}")
    a("v_and_b32 v2, 15, v0"); a("v_bfe_u32 v3, v0, 4, 2")
    a(f"s_mul_i32 s9, s7, {4*TCP}"); a(f"s_add_u32 s9, s9, {TOE}")
    a("v_lshl_add_u32 v4, v3, 4, s8")
    def adr(dst, cls, idx):
        a(f"v_mul_u32_u24 v{dst}, {CSTR}, v{cls}"); a(f"v_lshl_add_u32 v{dst}, v{idx}, 9, v{dst}"); a(f"v_add_u32 v{dst}, v{dst}, v4")
    a("v_and_b32 v26, 7, v2"); a("v_lshrrev_b32 v15, 3, v2"); adr(16, 26, 15)
    a("v_and_b32 v6, 3, v2"); a("v_bfe_u32 v7, v2, 2, 1")
    a("v_lshl_add_u32 v20, v2, 5, s9")
    a("v_lshl_add_u32 v21, v3, 9, v20"); a("v_add_u32 v21, 2048, v21")
    a("v_lshrrev_b32 v22, 1, v3"); a("v_lshl_add_u32 v20, v22, 9, v20")
    a("v_and_b32 v22, 1, v3"); a("v_lshl_add_u32 v20, v22, 4, v20")
    a("s_bitcmp1_b32 s10, 0"); a("s_cbranch_scc1 m_adrY")
    a("v_lshl_add_u32 v26, v7, 3, v6")
    a("v_subrev_u32 v27, 1, v6"); a("v_max_i32 v27, 0, v27"); a("v_lshl_add_u32 v27, v7, 2, v27")
    a("v_cmp_eq_u32 vcc, 1, v15")
    a("v_lshlrev_b32 v28, 1, v15"); a("v_sub_u32 v28, 4, v28")
    a("v_cndmask_b32 v26, v26, v27, vcc")
    for t in range(3):
        a("v_and_b32 v27, 3, v26"); a("v_lshl_add_u32 v27, v15, 2, v27"); a("v_lshrrev_b32 v29, 2, v26"); a("v_add_u32 v29, 2, v29")
        adr(17 + t, 27, 29)
        if t < 2: a("v_add_u32 v26, v26, v28")
    a("s_branch m_adrJ")
    a("m_adrY:")
    a("v_lshl_add_u32 v26, v7, 1, v6")
    a("v_and_b32 v27, 3, v26"); a("v_lshl_add_u32 v27, v15, 2, v27")
    a("v_lshrrev_b32 v29, 2, v26"); a("v_lshlrev_b32 v28, 1, v15"); a("v_sub_u32 v29, v29, v28"); a("v_add_u32 v29, 7, v29")
    adr(17, 27, 29)
    a("v_lshl_add_u32 v27, v15, 2, v6"); a("v_sub_u32 v29, v7, v28"); a("v_add_u32 v29, 9, v29")
    adr(18, 27, 29)
    a("v_add_u32 v20, 1024, v20")
    a("m_adrJ:")
    a("v_add_u32 v4, 1, v2")
    a("v_and_b32 v5, 3, v4"); a(f"v_mul_u32_u24 v5, {TCP}, v5")
    a("v_lshrrev_b32 v4, 2, v4"); a("v_lshl_add_u32 v5, v4, 3, v5")
    a("v_lshlrev_b32 v4, 4, v3"); a("v_sub_u32 v5, v5, v4")
    a("s_and_b32 s8, s10, 1"); a("s_lshl_b32 s8, s8, 8")
    a("s_add_u32 s9, s9, s8"); a("s_add_u32 s9, s9, 48")
    a("v_add_u32 v23, s9, v5")
    a(f"s_mul_i32 s9, s7, {UCH}"); a(f"s_add_u32 s9, s9, {UU+480-192}"); a("s_sub_u32 s9, s9, s8")
    a("v_lshl_add_u32 v24, v2, 5, v4"); a("v_add_u32 v24, s9, v24")
    a("v_lshrrev_b32 v4, 1, v3"); a("v_bfe_u32 v5, v2, 2, 1"); a("v_xor_b32 v4, v4, v5"); a("v_lshl_add_u32 v4, v2, 1, v4")
    a("v_and_b32 v5, 1, v3"); a("v_lshlrev_b32 v5, 3, v5"); a("v_lshl_add_u32 v25, v4, 4, v5")
    a("s_lshl_b32 s8, s10, 12"); a(f"s_add_u32 s8, s8, {YY}"); a("v_add_u32 v25, s8, v25")
    stamp(a, 24)
    a("s_waitcnt lgkmcnt(0)")
    a("s_lshl_b32 s8, s6, 16"); a("s_and_b32 s9, s6, 0xffff0000")
    a("s_cmp_ge_u32 s10, 2"); a("s_cselect_b32 s8, s9, s8")
    a(f"v_mov_b32 v7, {f2u(1.4426950408889634)}")
    a("v_mul_f32 v40, s8, v7")
    a("v_exp_f32 v40, v40")
    a("v_cvt_pk_bf16_f32 v40, v40, v40")
    a("v_lshlrev_b32 v40, 16, v40")
    a("s_waitcnt vmcnt(0)")
    stamp(a, 1)
    a(f"v_mul_f32 v41, v40, v{PR}"); a(f"v_mul_f32 v42, v40, v{PR+1}")
    a("v_mul_f32 v41, v41, v7")
    a("v_mul_f32 v42, 0.15915494, v42")
    a(f"v_mul_f32 v{PR+2}, v40, v{PR+2}"); a(f"v_mul_f32 v{PR+3}, v40, v{PR+3}")
    S = {i: 44 + 2 * (i - 1) for i in range(1, 19)}
    E = {p: 80 + 2 * i for i, p in enumerate((32, 64, 128, 256, 512, 768, 1024, 1280, 1536, 1792))}
    C = {j: 100 + 2 * j for j in range(16)}
    T = 132; CV = 160
    V = []
    cvi = [0]
    def put(kind, k, reg):
        if kind == 'c': cls, idx = k & 7, k >> 3
        elif kind == 'r1': cls, idx = k & 3, 2 + (k >> 2)
        elif kind == 'r2': cls, idx = 4 + (k & 3), 2 + (k >> 2)
        elif kind == 'r4': cls, idx = 4 * k[0] + (k[1] & 3), 7 - 2 * k[0] + (k[1] >> 2)
        else: cls, idx = 4 * (k[0] >> 1) + k[1], 9 - 2 * (k[0] >> 1) + (k[0] & 1)
        t = CV + cvi[0]; cvi[0] += 1
        if reg is None: V.append(f"v_mov_b32 v{t}, 0x00003f80")
        else: V.append(f"v_cvt_pk_bf16_f32 v{t}, v{reg}, {'-' if kind == 'c' else ''}v{reg+1}")
        V.append(('put', cls, idx, t))
    class A2:
        def __call__(self, x): V.append(x)
    v = A2()
    D = [(S[1], 1.0), (S[16], 16.0), (E[256], 256.0)]
    for i, (d, p) in enumerate(D):
        if p == 1.0:
            v(f"v_exp_f32 v{T+3*i}, v41"); v(f"v_fract_f32 v{T+3*i+1}, v42")
        else:
            v(f"v_mul_f32 v{T+3*i}, {f2u(p)}, v41"); v(f"v_mul_f32 v{T+3*i+1}, {f2u(p)}, v42")
            v(f"v_exp_f32 v{T+3*i}, v{T+3*i}"); v(f"v_fract_f32 v{T+3*i+1}, v{T+3*i+1}")
    for i, (d, p) in enumerate(D):
        v(f"v_cos_f32 v{d}, v{T+3*i+1}"); v(f"v_sin_f32 v{d+1}, v{T+3*i+1}")
    cmul_batch(v, [(C[0], PR + 4, PR + 2)])
    put('r1', 0, None)
    for i, (d, p) in enumerate(D):
        v(f"v_mul_f32 v{d}, v{d}, v{T+3*i}"); v(f"v_mul_f32 v{d+1}, v{d+1}, v{T+3*i}")
    put('c', 0, C[0])
    cmul_batch(v, [(S[2], S[1], S[1]), (E[32], S[16], S[16]), (E[512], E[256], E[256]), (C[1], C[0], S[16]), (S[17], S[16], S[1])])
    put('r1', 1, S[1]); put('r1', 16, S[16]); put('r2', 0, E[256])
    cmul_batch(v, [(S[4], S[2], S[2]), (E[64], E[32], E[32]), (E[1024], E[512], E[512]), (S[3], S[2], S[1])])
    put('r1', 17, S[17]); put('r4', (0, 0), E[512]); put('r1', 2, S[2]); put('c', 1, C[1])
    cmul_batch(v, [(E[768], E[512], E[256]), (C[2], C[0], E[32]), (C[3], C[1], E[32]), (S[18], S[16], S[2])])
    put('r1', 4, S[4]); put('r8', (0, 0), E[1024]); put('r1', 3, S[3])
    cmul_batch(v, [(S[8], S[4], S[4]), (E[128], E[64], E[64]), (S[5], S[4], S[1]), (S[6], S[4], S[2])])
    put('r4', (1, 0), E[768]); put('c', 2, C[2]); put('c', 3, C[3]); put('r1', 18, S[18])
    jobs = [((S[7], S[4], S[3]), ('r1', 7)), ((E[1280], E[1024], E[256]), ('r8', (1, 0))), ((E[1536], E[1024], E[512]), ('r8', (2, 0))),
            ((E[1792], E[1024], E[768]), ('r8', (3, 0)))]
    jobs += [((C[4 + i], C[i], E[64]), ('c', 4 + i)) for i in range(4)]
    jobs += [((S[8 + i], S[8], S[i]), ('r1', 8 + i)) for i in range(1, 8)]
    jobs += [((T + 2 * (i - 1), E[256], S[2 * i]), ('r2', i)) for i in (1, 2, 3, 4, 8, 9)]
    jobs += [((C[8 + i], C[i], E[128]), ('c', 8 + i)) for i in range(8)]
    jobs += [((T + 2 * (i - 1), E[256], S[2 * i]), ('r2', i)) for i in (5, 6, 7)]
    jobs += [((C[4 * b + i - 1], E[512 + 256 * b], S[4 * i]), ('r4', (b, i))) for b in range(2) for i in range(1, 5)]
    jobs += [((C[8 + 2 * g + i - 1], E[1024 + 256 * g], S[8 * i]), ('r8', (g, i))) for g in range(4) for i in range(1, 3)]
    pend = [((S[8],), ('r1', 8)), ((S[5],), ('r1', 5)), ((S[6],), ('r1', 6))]
    for b0 in range(0, len(jobs), 4):
        bt = jobs[b0:b0+4]
        cmul_batch(v, [j[0] for j in bt])
        for j in pend: put(j[1][0], j[1][1], j[0][0])
        pend = bt
    for j in pend: put(j[1][0], j[1][1], j[0][0])
    assert cvi[0] == 67
    waiting = {}; ready = []; since = 0
    for x in V:
        if isinstance(x, tuple):
            _, cls, idx, t = x
            if cls in waiting:
                i0, t0 = waiting.pop(cls); ready.append(f"ds_write2st64_b32 v{WA+cls}, v{t0}, v{t} offset0:{2*i0} offset1:{2*idx}")
            else: waiting[cls] = (idx, t)
            continue
        a(x); since += 1
        if ready and since >= DSGAP:
            y = ready.pop(0); since = 0
            if not os.environ.get("NODS"): a(y)
    stamp(a, 25)
    for x in ready: a(x)
    for cls, (idx, t) in waiting.items(): a(f"ds_write_b32 v{WA+cls}, v{t} offset:{512*idx}")
    a(f"s_lshl_b32 s8, s7, 2"); a(f"s_add_u32 s8, s8, {CNT+4}"); a("v_mov_b32 v26, s8"); a("v_mov_b32 v27, 1")
    a("s_mov_b64 exec, 1"); a("ds_add_u32 v26, v27"); a("s_mov_b64 exec, -1")
    stamp(a, 2)
    lds_spin(a, 26, 27, 2)
    stamp(a, 3)
    BF = 44; AF = 76; ACC = 172
    def copies(vals, dst, off, tmp):
        for c in range(4):
            for p in range(4): a(f"v_cvt_pk_bf16_f32 v{tmp+4*c+p}, v{vals[c+2*p]}, v{vals[c+2*p+1]}")
            a(f"ds_write_b128 v{dst}, {q4(tmp+4*c)} offset:{32+c*TCP+off}")
    def genmm(nt):
        for ks in range(8):
            a(f"ds_read_b128 {q4(BF+4*ks)}, v16 offset:{64*ks}")
            for t in range(nt): a(f"ds_read_b128 {q4(AF+4*(nt*ks+t))}, v{17+t} offset:{64*ks}")
        for ks in range(8):
            a(f"s_waitcnt lgkmcnt({min(15, (nt+1)*(7-ks))})")
            for t in range(nt):
                a(f"v_mfma_f32_16x16x32_bf16 {q4(ACC+4*t)}, {q4(AF+4*(nt*ks+t))}, {q4(BF+4*ks)}, {q4(ACC+4*t) if ks else 0}")
    a("s_bitcmp1_b32 s10, 0"); a("s_cbranch_scc1 m_waveY")
    genmm(3)
    stamp(a, 4)
    a("s_nop 7")
    a("s_mov_b32 exec_lo, 0x80000000"); a("s_mov_b32 exec_hi, 0")
    a(f"v_mov_b32 v{ACC+9}, v{ACC+8}")
    a("s_mov_b32 exec_lo, 0"); a("s_mov_b32 exec_hi, 0x80000000")
    a(f"v_mov_b32 v{ACC+10}, v{ACC+9}")
    a("s_mov_b64 exec, -1")
    copies([ACC + i for i in range(11)], 20, 0, AF)
    a(f"v_cvt_pk_bf16_f32 v13, 0, v{ACC}")
    a("s_mov_b64 exec, 1")
    a(f"ds_write_b32 v20, v13 offset:{1*TCP+28}")
    a(f"ds_write_b32 v20, v{AF} offset:{2*TCP+28}")
    a(f"ds_write_b32 v20, v13 offset:{3*TCP+24}")
    a(f"ds_write_b32 v20, v{AF+4} offset:{3*TCP+28}")
    a("s_mov_b64 exec, -1")
    a("s_branch m_join")
    a("m_waveY:")
    genmm(2)
    stamp(a, 4)
    copies([ACC + i for i in (0, 0, 0, 1, 1, 1, 2, 2, 2, 2, 2)], 20, 0, AF)
    v8 = [ACC + 4 + i for i in [0] * 5 + [1] * 7 + [2] * 7]
    copies(v8[0:11], 21, 0, AF + 16); copies(v8[8:19], 21, 16, AF + 32)
    a("m_join:")
    m_setup(a)
    a("s_waitcnt lgkmcnt(0)")
    stamp(a, 5)
    a("s_barrier")
    stamp(a, 6)
def m_conv(a):
    Y = 32; FA = [64, 128]; FB = [96, 160]
    def reads(r):
        s = r & 1; L = []
        for p in range(8):
            L.append(f"ds_read_b64 {pr(FA[s]+4*p)}, v23 offset:{64*(8*p+r)}")
            L.append(f"ds_read_b64 {pr(FA[s]+4*p+2)}, v23 offset:{64*(8*p+r)+8}")
            L.append(f"ds_read_b128 {q4(FB[s]+4*p)}, v24 offset:{512*p+64*(3-r)}")
        return L
    for x in reads(0): a(x)
    order = sorted([(p, c2) for p in range(8) for c2 in range(8 - p)], key=lambda x: (max(x), x))
    for r in range(4):
        s = r & 1
        nxt = reads(r + 1) if r < 3 else []
        first = set(); have = -1; issued = 0
        if r > 0: a("s_waitcnt lgkmcnt(0)")
        for i, (p, c2) in enumerate(order):
            c = p + c2
            if r == 0 and max(p, c2) > have:
                have = max(p, c2)
                a(f"s_waitcnt lgkmcnt({min(15, 3*(7-have) + issued)})")
            src = q4(Y + 4 * c) if (r > 0 or c in first) else "0"
            first.add(c)
            a(f"v_mfma_f32_16x16x32_bf16 {q4(Y+4*c)}, {q4(FA[s]+4*p)}, {q4(FB[s]+4*c2)}, {src}")
            k = i - (8 if r == 0 else 0)
            if 0 <= k < len(nxt): a(nxt[k]); issued += 1
    stamp(a, 7)
    for c in (0, 1, 2, 3, 4, 5, 6, 7):
        a(f"v_cvt_pk_bf16_f32 v{64+2*c}, v{Y+4*c}, v{Y+4*c+1}"); a(f"v_cvt_pk_bf16_f32 v{65+2*c}, v{Y+4*c+2}, v{Y+4*c+3}")
        a(f"ds_write_b64 v25, {pr(64+2*c)} offset:{512*c}")
    a("s_waitcnt lgkmcnt(0)")
    a("s_barrier")
    stamp(a, 8)
SO = 64
def so(i): return f"s{SO+i}"
def warm1(a):
    a("s_lshr_b32 s5, s2, 3"); a("s_and_b32 s5, s5, 15"); a("s_lshl_b32 s5, s5, 1"); a("s_lshr_b32 s7, s11, 1"); a("s_add_u32 s5, s5, s7")
    a("s_mul_i32 s5, s5, 57344")
    if MAP3:
        a("s_mul_i32 s6, s14, 28"); a("s_lshr_b32 s6, s6, 3")
        a("v_and_b32 v28, 3, v0"); a("v_add_u32 v28, s6, v28"); a("v_min_u32 v28, 27, v28"); a("v_bfe_u32 v29, v0, 2, 4")
    else:
        a("s_and_b32 s6, s14, 3"); a("s_mul_i32 s6, s6, 7")
        a("v_and_b32 v28, 7, v0"); a("v_min_u32 v28, 6, v28"); a("v_add_u32 v28, s6, v28"); a("v_bfe_u32 v29, v0, 3, 3")
    a("v_mul_u32_u24 v29, 3584, v29"); a("v_lshl_add_u32 v28, v28, 7, v29"); a("v_add_u32 v28, s5, v28"); a("v_add_u32 v29, 28672, v28")
    a("s_waitcnt lgkmcnt(0)")
    a("s_bitcmp1_b32 s11, 0"); a(f"s_cselect_b32 s8, s{sWU}, s{sWG}"); a(f"s_cselect_b32 s9, s{sWU+1}, s{sWG+1}")
    epoch_load(a)
    a("s_barrier")
    if WDLY: a(f"s_sleep {WDLY}")
    if WARM: a(f"global_load_dword v253, v28, s[8:9] {WNT}")
    if WARM and not MAP3: a(f"global_load_dword v252, v29, s[8:9] {WNT}")
def warm2(a):
    a("s_lshl_b32 s5, s14, 2"); a("s_add_u32 s5, s5, s11"); a("s_mul_i32 s5, s5, 14336")
    a("v_lshl_add_u32 v28, v2, 7, s5"); a(f"global_load_dword v252, v28, {sp(sWD)}")
    a("v_min_u32 v28, 47, v2"); a("s_add_u32 s5, s5, 8192"); a("v_lshl_add_u32 v28, v28, 7, s5"); a(f"global_load_dword v253, v28, {sp(sWD)}")
def m_setup(a):
    epoch_mix(a)
    tb = []; ts = []
    for p in range(4):
        bl = [(b, st) for st in range(4) for b in range(7) if PORD[b & 3][st] == p]
        tb.append(hex(sum(b << (4 * i) for i, (b, st) in enumerate(bl)))); ts.append(hex(sum(st << (4 * i) for i, (b, st) in enumerate(bl))))
    a(f"s_mov_b32 s51, {tb[0]}"); a(f"s_mov_b32 s35, {ts[0]}")
    for p in range(1, 4):
        a(f"s_cmp_eq_u32 s50, {p}"); a(f"s_cselect_b32 s51, {tb[p]}, s51"); a(f"s_cselect_b32 s35, {ts[p]}, s35")
    a("s_lshl_b32 s8, s34, 11")
    for b in range(7):
        a(f"s_bfe_u32 s6, s51, {hex(0x40000 + 4 * b)}"); a(f"s_lshl_b32 {so(4*b)}, s6, 13")
        if XST: a(f"s_or_b32 {so(4*b)}, {so(4*b)}, s8")
        for t in range(1, 4): a(f"s_xor_b32 {so(4*b+t)}, {so(4*b)}, {2048*t}")
    a("s_lshl_b32 s5, s12, 18"); a(f"s_add_u32 s5, s5, {hex(HB)}"); srd(a, 52, "s5", 0x40000)
    a("s_mul_i32 s5, s11, 458752"); a("s_lshl_b32 s6, s15, 7"); a("s_add_u32 s5, s5, s6")
    a(f"s_add_u32 s56, s{sWD}, s5"); a(f"s_addc_u32 s57, s{sWD+1}, 0"); a("s_and_b32 s57, s57, 0xffff"); a(f"s_mov_b32 s58, {458752-896}"); a("s_mov_b32 s59, 0x00020000")
    a("s_mul_i32 s6, s14, 112"); a("s_mul_i32 s5, s11, 28"); a("s_add_u32 s6, s6, s5"); a("s_lshl_b32 s6, s6, 11"); a(f"s_add_u32 s6, s6, {hex(HF)}")
    srd(a, 60, "s6", 57344)
    a("s_add_u32 s16, s11, s34"); a("s_and_b32 s16, s16, 3")
    a("s_lshl_b32 s17, s16, 13")
    a("v_and_b32 v2, 63, v0")
    w1_setup(a, 24, 242); w1_soff(a, 20, 3)
NREG = 16; W2R = 96
class VM:
    def __init__(self, a): self.a = a; self.q = []
    def add(self, tag, n=1): self.q.extend([tag] * n); assert len(self.q) <= 63
    def wait(self, tag, upto=None):
        ks = [j for j, x in enumerate(self.q) if x == tag]
        if not ks: return
        k = ks[-1] if upto is None else ks[upto - 1]
        self.a(f"s_waitcnt vmcnt({len(self.q)-1-k})"); del self.q[:k+1]
    def drained(self): self.q = []
FLD = "global_load_dword v250, v248, s[46:47] sc1"
def faddr(a):
    a("v_min_u32 v249, 6, v2"); a("v_lshlrev_b32 v249, 2, v249")
    a("v_lshrrev_b32 v248, v249, s51"); a("v_and_b32 v248, 15, v248"); a("v_lshl_add_u32 v248, v248, 7, s22")
    a("v_lshrrev_b32 v249, v249, s35"); a("v_and_b32 v249, 15, v249"); a("v_lshl_add_u32 v248, v249, 15, v248")
def fload(a, vm, lo, hi):
    a(f"s_mov_b64 exec, {hex(((1 << hi) - 1) & ~((1 << lo) - 1))}"); a(FLD); a("s_mov_b64 exec, -1"); vm.add("f")
def m_phaseC(a):
    vm = VM(a)
    if B3B: a("s_barrier")
    a("s_cmp_eq_u32 s15, 3"); a("s_cbranch_scc1 m_now1")
    w1_dma(a, 24, 242, 20, SL[3])
    a("m_now1:")
    a("v_lshlrev_b32 v3, 4, v2")
    a("v_lshrrev_b32 v5, 3, v2"); a("v_bfe_u32 v6, v2, 4, 1"); a("v_lshlrev_b32 v6, 2, v6"); a("v_and_b32 v4, 7, v2"); a("v_xor_b32 v4, v4, v6")
    a("v_lshlrev_b32 v4, 4, v4"); a("v_lshl_add_u32 v4, v5, 10, v4")
    AREA = [UP, UP + 4096, SL[3], SL[3] + 4096]
    where = {}
    def w2dma(st, base):
        for i in range(2):
            a(f"s_lshl_b32 s5, {so(2*st+i)}, 3"); a(f"s_add_u32 m0, s18, {base+2048*i}"); a("s_add_u32 s6, s5, 7168")
            a(f"buffer_load_dwordx4 v4, s[56:59], s5 offen lds"); a(f"buffer_load_dwordx4 v4, s[56:59], s6 offen offset:1024 lds")
        vm.add(f"w{st}", 4); where[st] = base
    a("v_bfe_u32 v5, v2, 2, 2"); a("v_lshrrev_b32 v6, 5, v2"); a("v_lshl_add_u32 v6, v6, 2, v5"); a("v_lshlrev_b32 v8, 7, v6")
    a("v_lshrrev_b32 v5, 1, v5"); a("s_and_b32 s5, s11, 1"); a("v_xor_b32 v5, s5, v5"); a("v_lshl_add_u32 v8, v5, 6, v8")
    a("v_and_b32 v5, 1, v2"); a("v_lshl_add_u32 v8, v5, 5, v8"); a("v_bfe_u32 v5, v2, 4, 1"); a("v_lshl_add_u32 v8, v5, 4, v8")
    a("v_bfe_u32 v5, v2, 1, 1"); a("v_lshl_add_u32 v8, v5, 3, v8"); a("v_add_u32 v8, s18, v8")
    a("v_xor_b32 v9, 64, v8")
    a(f"v_add_u32 v12, {SL[3]}, v8"); a(f"v_add_u32 v13, {SL[3]}, v9")
    a("s_lshr_b32 s5, s11, 1"); a("s_lshl_b32 s5, s5, 10"); a("v_add_u32 v10, s5, v3"); a("v_xor_b32 v11, 1024, v10")
    a("s_lshr_b32 s5, s12, 1"); a("s_lshl_b32 s5, s5, 12"); a("s_lshl_b32 s6, s16, 10"); a("s_add_u32 s5, s5, s6"); a(f"s_add_u32 s5, s5, {hex(F2)}")
    a("v_add_u32 v5, s5, v3")
    def w2read(dst, base, i):
        hi = base >= SL[3]; o = base - (SL[3] if hi else 0) + 2048 * i
        for d in range(2):
            for h in range(2): a(f"ds_read_b64_tr_b16 {pr(dst+4*d+2*h)}, v{(12 if hi else 8)+d} offset:{o+1024*h}")
    freeA = list(AREA); st = {"f": 0, "g": 0}
    def w2grab():
        g = st["g"]; st["g"] += 1
        vm.wait(f"w{g}")
        for i in range(2): w2read(W2R + 8 * (2 * g + i), where[g], i)
        a("s_waitcnt lgkmcnt(0)")
        freeA.append(where[g])
    def w2step():
        if st["f"] >= 12: return
        if not freeA: w2grab()
        w2dma(st["f"], freeA.pop(0)); st["f"] += 1
    a("s_waitcnt vmcnt(0)")
    a("s_barrier")
    assert W2PRE <= 2
    for k in range(W2PRE): w2step()
    stamp(a, 9)
    poll(a, [f"global_load_dword v6, v5, {sp(sWS)} sc1"], [6], sleep=2, pre=P2PRE)
    vm.drained()
    stamp(a, 10)
    def hdma(j, lo=0, hi=8):
        if lo == 0: a("s_and_b32 s19, s49, 7"); a("s_lshl_b32 s19, s19, 15"); a("s_add_u32 s19, s19, s17"); a("s_lshr_b32 s49, s49, 4"); a("s_add_u32 s20, s19, 4096")
        for i in range(lo, hi):
            if i == lo or i == 4: a(f"s_add_u32 m0, s18, {SL[(j+1)%3]+4096*(i//4)}")
            a(f"buffer_load_dwordx4 v3, s[52:55], s{19+i//4} offen offset:{1024*(i%4)} sc1 lds")
        vm.add(f"h{j}", hi - lo)
    hdma(0)
    vm.wait("h0", upto=T0N); a("s_barrier")
    stamp(a, 11)
    hdma(1, 0, 3)
    vm.wait("h0"); a("s_barrier")
    hdma(1, 3, 8)
    a("s_mul_i32 s5, s12, 28"); a("s_mul_i32 s6, s11, 7"); a("s_add_u32 s5, s5, s6"); a("s_lshl_b32 s22, s5, 7"); a(f"s_add_u32 s22, s22, {hex(F3)}")
    faddr(a)
    sv = (list(vm.q), list(freeA), dict(st), dict(where))
    a("s_cmp_eq_u32 s15, 3"); a("s_cbranch_scc1 m_spC")
    H2 = False
    for j in range(1, 8):
        if j == 1:
            if EARLY2: hdma(2, 0, EARLY2)
        else:
            if j == 2 and EARLY2 < 8: hdma(2, EARLY2, 8)
            if j + 1 < 8: hdma(j + 1)
            for k in range(W2SCH[j - 2]): w2step()
            while st["g"] < min(8, st["f"] - W2SCH[j - 2]): w2grab()
        if j == 7:
            while st["f"] < 12: w2step()
            while st["g"] < 8: w2grab()
            w2dma(12, SL[0]); w2dma(13, SL[0] + 4096)
            fload(a, vm, 0, FBN[0])
        vm.wait(f"h{j}"); a("s_barrier")
        if j == 4: stamp(a, 12)
    a("s_branch m_spJ")
    a("m_spC:")
    fin = dict(where); finq = list(vm.q)
    vm.q[:] = sv[0]; freeA[:] = sv[1]; st.update(sv[2]); where.clear(); where.update(sv[3])
    vm.wait("h1"); a("s_barrier")
    while st["f"] < 12: w2step()
    while st["g"] < 8: w2grab()
    w2dma(12, SL[0]); w2dma(13, SL[0] + 4096)
    for k in range(int(os.environ.get("SPS", 1))): a("s_sleep 100")
    fload(a, vm, 0, FBN[0])
    assert all(fin[k] == where[k] for k in range(8, 14)), (fin, where)
    assert vm.q[-1:] == finq[-1:] == ["f"]
    a("m_spJ:")
    stamp(a, 16)
    return vm, where, w2read
def m_phaseD(a, vm, where, w2read):
    ACC = 16; RG = [80, 88, 224, 232, 240]
    def need(b):
        _lab[0] += 1; n = _lab[0]
        a(f"v_readlane_b32 s6, v250, {b}")
        a(f"s_cmp_eq_u32 s6, s{sNON}"); a(f"s_cbranch_scc1 nok{n}")
        a(f"s_mov_b64 exec, {1 << b}")
        poll(a, [FLD], [250], sleep=FSLEEP)
        a("s_mov_b64 exec, -1")
        a(f"nok{n}:")
    vm.wait("f"); need(0)
    stamp(a, 17)
    slot = {}; free = list(RG); WL = {}
    def hload(i):
        b = free.pop(0); slot[i] = b
        a(f"buffer_load_dwordx4 {q4(b)}, v10, s[60:63], {so(i)} offen sc1")
        a(f"buffer_load_dwordx4 {q4(b+4)}, v11, s[60:63], {so(i)} offen sc1")
        vm.add(i, 2)
    nxt = 0
    def hnext():
        nonlocal nxt
        if nxt and nxt % 4 == 0:
            b = nxt // 4
            if b in FBN: vm.wait("f")
            need(b)
            if b + 1 in FBN[:-1]: fload(a, vm, b + 1, FBN[FBN.index(b + 1) + 1])
        hload(nxt); nxt += 1
    for i in range(5): hnext()
    a("s_lshl_b32 s6, s14, 1"); a("s_lshr_b32 s7, s11, 1"); a("s_add_u32 s19, s6, s7")
    a("s_lshl_b32 s20, s15, 6"); a("s_and_b32 s7, s11, 1"); a("s_lshl_b32 s7, s7, 5"); a("s_add_u32 s20, s20, s7")
    a("s_lshl_b32 s5, s19, 15"); a("s_lshl_b32 s7, s20, 6"); a("s_add_u32 s5, s5, s7"); a(f"s_add_u32 s5, s5, {hex(HB)}")
    srd(a, 52, "s5", 2048)
    a("s_lshl_b32 s21, s11, 11"); a(f"s_add_u32 s21, s21, {RES}")
    a("v_bfe_u32 v14, v2, 2, 2"); a("v_lshrrev_b32 v7, 5, v2"); a("v_lshl_add_u32 v14, v7, 4, v14"); a("v_lshlrev_b32 v14, 6, v14")
    a("v_bfe_u32 v7, v2, 4, 1"); a("v_lshl_add_u32 v14, v7, 5, v14"); a("v_and_b32 v7, 3, v2"); a("v_lshl_add_u32 v14, v7, 3, v14")
    a("v_add_u32 v14, s21, v14")
    a("s_lshl_b32 s5, s19, 8"); a(f"s_add_u32 s5, s5, {hex(R2G)}")
    a("v_and_b32 v15, 31, v2"); a("v_lshl_add_u32 v15, v15, 3, s5")
    a("s_lshl_b32 s5, s19, 15"); a("s_lshl_b32 s7, s20, 1"); a("s_add_u32 s5, s5, s7")
    a("v_and_b32 v4, 15, v2"); a("v_lshlrev_b32 v4, 10, v4"); a("v_lshrrev_b32 v7, 4, v2"); a("v_lshl_add_u32 v4, v7, 4, v4"); a("v_add_u32 v4, s5, v4")
    HR = W2R + 32; HP = W2R + 48; SR = W2R + 56
    for i in range(28):
        vm.wait(i)
        if i >= NREG: a(f"s_waitcnt lgkmcnt({4 if i + 1 < 28 else 0})")
        wb = W2R + 8 * i if i < NREG else WL[i]
        for j in range(4):
            c = f"v[{ACC+16*j}:{ACC+16*j+15}]"
            a(f"v_mfma_f32_32x32x16_bf16 {c}, {q4(wb+4*(j&1))}, {q4(slot[i]+4*(j>>1))}, {c if i else 0}")
        free.append(slot[i])
        if not (4 <= i < 8): free.append(wb)
        if i == B9AT:
            a("s_barrier")
            a("s_mov_b32 m0, s21")
            a("buffer_load_dwordx4 v3, s[52:55], 0 offen sc1 lds"); a("buffer_load_dwordx4 v3, s[52:55], 0 offen offset:1024 sc1 lds"); vm.add("r", 2)
            a(f"global_load_dwordx2 {pr(SR)}, v15, {sp(sWS)} sc1"); vm.add("g")
        if i + 2 >= NREG and i + 2 < 28:
            b = free.pop(0); WL[i + 2] = b; w2read(b, where[(i + 2) // 2], (i + 2) % 2)
        want = min(28, i + 1 + HDEP)
        while nxt < want and free:
            hnext()
        if i in (3, 8, 12, 16, 20, 24): stamp(a, {3: 13, 8: 14, 12: 15, 16: 18, 20: 26, 24: 27}[i])
    stamp(a, 19)
    vm.wait("g")
    for k in range(4): a(f"ds_read_b64_tr_b16 {pr(HP+2*k)}, v14 offset:{256*k}")
    for j in range(1, 4):
        a(f"s_xor_b32 s6, s11, {j}"); a("s_mul_i32 s6, s6, 12288"); a(f"s_add_u32 s6, s6, {RED}"); a("v_add_u32 v12, s6, v3")
        for q in range(4): a(f"ds_write_b128 v12, {q4(ACC+16*j+4*q)} offset:{4096*(j-1)+1024*q}")
    a("s_mul_i32 s6, s11, 12288"); a(f"s_add_u32 s6, s6, {RED}"); a("v_add_u32 v13, s6, v3")
    a("v_add_u32 v7, 16384, v4")
    check_or_poll(a, f"global_load_dwordx2 {pr(SR)}, v15, {sp(sWS)} sc1", SR + 1, sleep=1)
    a("s_waitcnt lgkmcnt(12)")
    for k in range(8): a(f"v_lshlrev_b32 v{HR+2*k}, 16, v{HP+k}"); a(f"v_and_b32 v{HR+2*k+1}, s4, v{HP+k}")
    a("s_waitcnt lgkmcnt(0)"); a("s_barrier")
    stamp(a, 20)
    O = ACC; P = 160
    for j in range(3):
        for q in range(4): a(f"ds_read_b128 {q4(P+16*j+4*q)}, v13 offset:{4096*j+1024*q}")
    for j in range(3):
        a(f"s_waitcnt lgkmcnt({4*(2-j)})")
        for p in range(8): a(f"v_pk_add_f32 {pr(O+2*p)}, {pr(O+2*p)}, {pr(P+16*j+2*p)}")
    for p in range(8): a(f"v_pk_fma_f32 {pr(O+2*p)}, {pr(O+2*p)}, {pr(SR)}, {pr(HR+2*p)} op_sel:[0,0,0] op_sel_hi:[1,0,1]")
    for p in range(8): a(f"v_cvt_pk_bf16_f32 v{80+p}, v{O+2*p}, v{O+2*p+1}")
    for p in range(4): a(f"v_permlane16_swap_b32 v{80+p}, v{84+p}")
    a(f"global_store_dwordx4 v4, {q4(80)}, {sp(sOUT)} {OUTFL}")
    a(f"global_store_dwordx4 v7, {q4(84)}, {sp(sOUT)} {OUTFL}")
    stamp(a, 21)
    a("s_or_b32 s5, s2, s11"); a("s_cmp_lg_u32 s5, 0"); a("s_cbranch_scc1 m_noep")
    a(f"s_mov_b32 s5, {hex(EPO)}"); flag_store(a, "s5", 8)
    a("m_noep:")

def x_entry(a):
    T = 16
    a("v_and_b32 v2, 63, v0")
    a("s_lshl_b32 s6, s5, 14")
    a("v_lshrrev_b32 v5, 4, v2"); a("v_and_b32 v9, 15, v2")
    a("v_lshlrev_b32 v3, 12, v5"); a("v_lshl_add_u32 v3, v9, 4, v3")
    a("s_lshl_b32 s7, s11, 8"); a("s_add_u32 s7, s7, s6"); a("v_add_u32 v3, s7, v3")
    a("s_waitcnt lgkmcnt(0)")
    stamp(a, 23)
    for i in range(4): a(f"global_load_dwordx4 {q4(T+4*i)}, v3, {sp(sX)} offset:{1024*i} {NT}")
    epoch_load(a)
    a("s_barrier")
    stamp(a, 24)
def h_xrole(a):
    T = 16; F = 48; R = 64
    a("v_lshlrev_b32 v4, 8, v9"); a("v_lshl_add_u32 v4, v5, 4, v4")
    a("s_lshl_b32 s7, s11, 12"); a("s_add_u32 s7, s7, s6"); a(f"s_add_u32 s7, s7, {hex(XT)}"); a("v_add_u32 v4, s7, v4")
    a("s_lshl_b32 s7, s11, 7"); a(f"s_add_u32 s7, s7, {MISC}"); a("v_lshl_add_u32 v10, v2, 1, s7")
    a("v_and_b32 v8, 7, v2"); a("v_lshlrev_b32 v8, 4, v8"); a(f"v_add_u32 v11, {MISC}, v8")
    a(f"v_mov_b32 v12, {CNT}"); a("v_mov_b32 v13, 1"); a("v_mov_b32 v7, 0")
    a("s_lshl_b32 s6, s5, 7"); a(f"s_add_u32 s6, s6, {hex(G1)}")
    a("v_add_u32 v8, s6, v8")
    a("s_waitcnt vmcnt(0)")
    stamp(a, 27)
    for i in range(4):
        for e in range(i + 1, 4): a(f"v_swap_b32 v{T+4*i+e}, v{T+4*e+i}")
        a(f"global_store_dwordx4 v4, {q4(T+4*i)}, {sp(sWS)} offset:{64*i} sc1")
    stamp(a, 1)
    a("s_mov_b32 s7, 0x3f803f80")
    for j in range(4):
        for r in range(4):
            o = R + 4 * (r >> 1) + (r & 1)
            a(f"v_dot2_f32_bf16 v{o}, v{T+4*j+r}, s7, {('v%d' % o) if j else 0}")
            a(f"v_dot2_f32_bf16 v{o+2}, v{T+4*j+r}, v{T+4*j+r}, {('v%d' % (o+2)) if j else 0}")
    for k in range(4): a(f"v_add_f32_dpp v{R+k}, v{R+k}, v{R+k} row_ror:8 row_mask:0xf bank_mask:0x3")
    for k in range(4): a(f"v_add_f32_dpp v{R+k}, v{R+4+k}, v{R+4+k} row_ror:8 row_mask:0xf bank_mask:0xc")
    for k in range(2): a(f"v_add_f32_dpp v{R+k}, v{R+k}, v{R+k} row_half_mirror row_mask:0xf bank_mask:0x5")
    for k in range(2): a(f"v_add_f32_dpp v{R+k}, v{R+2+k}, v{R+2+k} row_half_mirror row_mask:0xf bank_mask:0xa")
    for ctl in ("quad_perm:[1,0,3,2]", "quad_perm:[2,3,0,1]"):
        for k in range(2): a(f"v_add_f32_dpp v{R+k}, v{R+k}, v{R+k} {ctl} {DPP}")
    a("s_mov_b32 exec_lo, 0x11111111"); a("s_mov_b32 exec_hi, 0x11111111")
    a(f"ds_write_b64 v10, {pr(R)}")
    a("s_mov_b64 exec, 1")
    a("ds_add_u32 v12, v13")
    a("s_mov_b64 exec, -1")
    lds_spin(a, 12, 14, 4)
    for w in range(4): a(f"ds_read_b128 {q4(F+4*w)}, v11 offset:{128*w}")
    a("s_waitcnt lgkmcnt(0)")
    for k in range(2):
        a(f"v_pk_add_f32 {pr(F+2*k)}, {pr(F+2*k)}, {pr(F+4+2*k)}"); a(f"v_pk_add_f32 {pr(F+8+2*k)}, {pr(F+8+2*k)}, {pr(F+12+2*k)}")
    for k in range(2): a(f"v_pk_add_f32 {pr(F+2*k)}, {pr(F+2*k)}, {pr(F+8+2*k)}")
    b0 = Asm(); b1 = Asm()
    ln_final(b0, F, F + 2, 72, 76, 80); ln_final(b1, F + 1, F + 3, 73, 77, 82)
    for x, y in zip(b0.l, b1.l): a(x); a(y)
    a("v_rcp_f32 v76, v76"); a("v_rcp_f32 v77, v77")
    a("v_lshrrev_b32 v72, 16, v72"); a("v_or_b32 v78, v72, v73")
    stamp(a, 22)
    epoch_mix(a)
    a("s_waitcnt vmcnt(0)")
    a(f"v_mov_b32 v79, s{sNON}")
    a("s_mov_b64 exec, 1")
    a("ds_add_rtn_u32 v14, v12, v13")
    a("s_waitcnt lgkmcnt(0)")
    a("v_readfirstlane_b32 s7, v14")
    a("s_mov_b64 exec, 0xff")
    a("s_cmp_lg_u32 s7, 7"); a("s_cbranch_scc1 x_nost")
    a(f"global_store_dwordx4 v8, v[76:79], {sp(sWS)} sc1")
    a("x_nost:")
    a("s_mov_b64 exec, -1")
    stamp(a, 2)
    if XPRE: a(f"s_sleep {XPRE}")
def w1_setup(a, sb, vb):
    a("s_lshl_b32 s5, s13, 7")
    for m, p in enumerate((sWG, sWU)):
        d = sb + 4 * m
        a(f"s_add_u32 s{d}, s{p}, s5"); a(f"s_addc_u32 s{d+1}, s{p+1}, 0")
        if m: a(f"s_sub_u32 s{d}, s{d}, 1024"); a(f"s_subb_u32 s{d+1}, s{d+1}, 0")
        a(f"s_and_b32 s{d+1}, s{d+1}, 0xffff")
        a(f"s_mov_b32 s{d+2}, {511*3584+128+1024*m}"); a(f"s_mov_b32 s{d+3}, 0x00020000")
    a("v_lshrrev_b32 v5, 3, v2"); a("v_mul_u32_u24 v5, 3584, v5"); a("v_bfe_u32 v6, v2, 4, 1"); a("v_lshlrev_b32 v6, 1, v6")
    a(f"v_and_b32 v{vb}, 7, v2"); a(f"v_xor_b32 v{vb}, v{vb}, v6"); a(f"v_xor_b32 v{vb+1}, 4, v{vb}")
    a(f"v_lshl_add_u32 v{vb}, v{vb}, 4, v5"); a(f"v_lshl_add_u32 v{vb+1}, v{vb+1}, 4, v5")
    a(f"v_add_u32 v{vb+2}, {28672-2048}, v{vb}"); a(f"v_add_u32 v{vb+3}, {28672-2048}, v{vb+1}")
    a("s_lshl_b32 s18, s11, 13"); a("s_mul_i32 s19, s11, 114688")
def w1_soff(a, dst, c):
    a(f"s_add_u32 s5, s34, {c}"); a("s_and_b32 s5, s5, 3"); a("s_mul_i32 s5, s5, 458752"); a(f"s_add_u32 s{dst}, s5, s19"); a(f"s_add_u32 s{dst+1}, s{dst}, 57344")
def w1_dma(a, sb, vb, so, base):
    for h in range(2):
        a(f"s_add_u32 m0, s18, {base+4096*h}")
        for i in range(4): a(f"buffer_load_dwordx4 v{vb+i}, s[{sb+4*(i&1)}:{sb+4*(i&1)+3}], s{so+h} offen offset:{1024*i} lds")
XF = 224; W1R = 96
def h_u(a):
    GL = 112; GR = 128; XR = 144; W = 160; UPK = 184; MM = 192; RR = 200
    late_ids(a)
    a("v_and_b32 v2, 63, v0"); a("v_lshlrev_b32 v3, 4, v2")
    w1_setup(a, 52, 242)
    a("v_bfe_u32 v5, v2, 2, 2"); a("v_lshrrev_b32 v6, 4, v2"); a("v_lshlrev_b32 v12, 10, v6"); a("v_lshl_add_u32 v12, v5, 7, v12")
    a("v_lshrrev_b32 v5, 1, v5"); a("v_and_b32 v6, 1, v6"); a("v_lshl_add_u32 v5, v6, 1, v5"); a("v_xor_b32 v5, s11, v5"); a("v_lshl_add_u32 v12, v5, 5, v12")
    a("v_and_b32 v5, 3, v2"); a("v_lshl_add_u32 v12, v5, 3, v12"); a("v_add_u32 v13, 65536, v12")
    a("s_mov_b32 s21, 0x3f803f80")
    for c in range(3): w1_soff(a, 64 + 2 * c, c)
    a("v_lshrrev_b32 v5, 2, v2"); a("v_lshrrev_b32 v6, 4, v2"); a("v_xor_b32 v5, v5, v6")
    a("v_and_b32 v6, 1, v5"); a("v_cmp_eq_u32 vcc, 0, v6"); a("v_mov_b32 v7, 0xbb00bb00"); a("v_cndmask_b32 v84, 0, v7, vcc")
    for i in range(1, 4): a(f"v_mov_b32 v{84+i}, v84")
    a("v_and_b32 v6, 1, v2"); a("v_lshlrev_b32 v6, 4, v6"); a("v_mov_b32 v7, 0x3f80"); a("v_lshlrev_b32 v7, v6, v7")
    a("v_and_b32 v5, 3, v5"); a("v_bfe_u32 v6, v2, 1, 1"); a("v_lshl_or_b32 v5, v5, 1, v6")
    a("v_cmp_eq_u32 vcc, 0, v5"); a("v_mov_b32 v88, 0"); a("v_mov_b32 v89, 0"); a("v_cndmask_b32 v90, 0, v7, vcc")
    a("v_cmp_eq_u32 vcc, 1, v5"); a("v_mov_b32 v92, 0"); a("v_mov_b32 v93, 0"); a("v_cndmask_b32 v91, 0, v7, vcc")
    a("v_bfe_u32 v5, v0, 3, 1"); a("v_xor_b32 v5, v5, v0"); a("v_lshlrev_b32 v5, 4, v5"); a(f"v_add_u32 v240, {YY}, v5")
    a("v_lshrrev_b32 v6, 2, v0"); a("v_lshlrev_b32 v6, 15, v6"); a("v_and_b32 v7, 3, v0"); a("v_lshl_add_u32 v6, v7, 4, v6")
    a("s_lshl_b32 s5, s3, 7"); a(f"s_add_u32 s5, s5, {hex(HB)}"); a("v_add_u32 v241, s5, v6")
    a("s_lshl_b32 s22, s11, 12"); a("s_lshl_b32 s5, s3, 4"); a("s_add_u32 s22, s22, s5"); a(f"s_add_u32 s22, s22, {hex(F2)}")
    a("s_lshl_b32 s5, s11, 12"); a("v_add_u32 v5, s5, v3")
    a(f"v_add_u32 v8, {YY}, v5"); a(f"s_add_u32 s5, s5, {YY}"); a("v_lshl_add_u32 v9, v2, 6, s5")
    if G1: a(f"v_add_u32 v5, {hex(G1)}, v5")
    a("v_lshrrev_b32 v6, 1, v0"); a("v_lshlrev_b32 v6, 14, v6"); a("v_and_b32 v7, 1, v0"); a("v_lshl_add_u32 v6, v7, 5, v6")
    a("s_lshl_b32 s5, s3, 6"); a(f"s_add_u32 s5, s5, {hex(XT)}"); a("v_add_u32 v6, s5, v6")
    a("s_lshl_b32 s5, s3, 2")
    a(f"s_load_dword s7, {sp(sDSK)}, s5")
    a("v_lshlrev_b32 v15, 4, v0"); a(f"v_add_u32 v7, {UU+512}, v15")
    stamp(a, 3)
    poll(a, [f"global_load_dwordx4 {q4(GL+4*p)}, v5, {sp(sWS)} offset:{1024*p} sc1" for p in range(4)], [GL + 4 * p + 3 for p in range(4)], sleep=1, pre=P1PRE)
    stamp(a, 4)
    a(f"global_load_dwordx4 {q4(XR)}, v6, {sp(sWS)} sc1")
    a(f"global_load_dwordx4 {q4(XR+4)}, v6, {sp(sWS)} offset:16 sc1")
    for p in range(4): a(f"ds_write_b128 v8, {q4(GL+4*p)} offset:{1024*p}")
    for p in range(4): a(f"ds_read_b128 {q4(GR+4*p)}, v9 offset:{16*p}")
    a("s_waitcnt lgkmcnt(0)")
    a("s_lshl_b32 s72, s7, 16"); a("s_mov_b32 s73, s72"); a("s_and_b32 s74, s7, 0xffff0000"); a("s_mov_b32 s75, s74")
    for p in range(4):
        a(f"v_lshlrev_b32 v{MM+2*p}, 16, v{GR+4*p+2}"); a(f"v_and_b32 v{MM+2*p+1}, s4, v{GR+4*p+2}")
    for p in range(4): a(f"v_pk_mul_f32 {pr(MM+2*p)}, {pr(MM+2*p)}, {pr(GR+4*p)} neg_lo:[1,0] neg_hi:[1,0]")
    a("s_waitcnt vmcnt(0)")
    stamp(a, 5)
    for j in range(8):
        a(f"v_lshlrev_b32 v{XF+j}, 16, v{XR+j}"); a(f"v_and_b32 v{XF+8+j}, s4, v{XR+j}")
    cp = [(ch, p) for ch in range(2) for p in range(4)]
    for i, (ch, p) in enumerate(cp): a(f"v_pk_fma_f32 {pr(W+2*i)}, {pr(XF+8*ch+2*p)}, {pr(GR+4*p)}, {pr(MM+2*p)}")
    for i, (ch, p) in enumerate(cp):
        a(f"v_cvt_pk_bf16_f32 v{UPK+4*ch+3-p}, v{W+2*i+1}, v{W+2*i}")
        if p == 3: a(f"ds_write_b128 v7, {q4(UPK+4*ch)} offset:{UCH*ch}")
    a("s_waitcnt lgkmcnt(0)")
    stamp(a, 6)
    a("s_barrier")
    return [f"v_pk_fma_f32 {pr(XF+2*i)}, {pr(W+2*i)}, s[{72+2*ch}:{73+2*ch}], {pr(XF+2*i)}" for i, (ch, p) in enumerate(cp)]
def h_phaseB(a, deferred):
    vm = VM(a)
    a(f"s_setprio {BPRIO}")
    a("s_cmp_eq_u32 s15, 3"); a("s_cbranch_scc1 h_spB")
    for c in range(3): w1_dma(a, 52, 242, 64 + 2 * c, SL[c])
    SM = 80
    def grab(c, slot):
        for ks in range(8):
            for h in range(2): a(f"ds_read_b64_tr_b16 {pr(W1R+32*c+4*ks+2*h)}, v{12+slot//2} offset:{(slot%2)*32768+4096*ks+512*h}")
    def sums(c):
        for k in range(8): a(f"v_mfma_f32_16x16x32_bf16 {q4(SM)}, v[84:87], {q4(W1R+32*c+4*k)}, {q4(SM) if (c or k) else 0}")
    stamp(a, 7)
    a("s_branch h_spJ")
    a("h_spB:")
    if WARM2: warm2(a)
    a("h_spJ:")
    for x in deferred: a(x)
    a("s_waitcnt vmcnt(0)")
    stamp(a, 9)
    a("s_setprio 2")
    a("s_barrier")
    stamp(a, 10)
    R = 16; U = 32
    for w in range(4): a(f"ds_read_b128 {q4(R+4*w)}, v240 offset:{4096*w}")
    for ch in range(2):
        a(f"s_waitcnt lgkmcnt({2*(1-ch)})")
        for hlf in range(2):
            for p in range(4):
                a(f"v_lshlrev_b32 v{U+8*hlf+2*p}, 16, v{R+8*ch+4*hlf+p}"); a(f"v_and_b32 v{U+8*hlf+2*p+1}, s4, v{R+8*ch+4*hlf+p}")
        for p in range(4): a(f"v_pk_add_f32 {pr(U+2*p)}, {pr(U+2*p)}, {pr(U+8+2*p)}")
        for p in range(4): a(f"v_pk_add_f32 {pr(U+2*p)}, {pr(U+2*p)}, {pr(XF+8*ch+2*p)}")
        for p in range(4): a(f"v_cvt_pk_bf16_f32 v{48+4*ch+p}, v{U+2*p}, v{U+2*p+1}")
        a(f"global_store_dwordx4 v241, {q4(48+4*ch)}, {sp(sWS)} offset:{64*ch} sc1"); vm.add("s")
    stamp(a, 11)
    if B3B: a("s_barrier")
    a("s_cmp_eq_u32 s15, 3"); a("s_cbranch_scc1 h_spare")
    grab(0, 0); grab(1, 1)
    a("s_waitcnt lgkmcnt(15)"); grab(2, 2)
    sums(0)
    a("s_waitcnt vmcnt(0)"); flag_store(a, "s22", 8); stamp(a, 12)
    a("s_waitcnt lgkmcnt(0)")
    sums(1); sums(2)
    a("s_barrier")
    grab(3, 3)
    h_addr(a, after=True)
    for k in range(8):
        a(f"s_waitcnt lgkmcnt({14-2*k})")
        a(f"v_mfma_f32_16x16x32_bf16 {q4(SM)}, v[84:87], {q4(W1R+96+4*k)}, {q4(SM)}")
KORD = [8 * (n & 3) + (n >> 2) for n in range(32)]
def h_addr(a, after=False):
    a("v_bfe_u32 v6, v2, 2, 2"); a("v_lshrrev_b32 v8, 5, v2"); a("v_lshl_add_u32 v6, v8, 3, v6"); a("v_lshlrev_b32 v6, 6, v6")
    a("v_bfe_u32 v7, v2, 4, 1"); a("v_lshl_add_u32 v6, v7, 5, v6"); a("v_and_b32 v7, 3, v2"); a("v_lshl_add_u32 v12, v7, 3, v6")
    a("v_add_u32 v13, 65536, v12")
def h_phaseC(a):
    cen = []
    pre = Asm()
    pre("s_lshl_b32 s5, s12, 2"); pre("s_mul_i32 s5, s5, 112"); pre("s_lshl_b32 s6, s13, 2"); pre("s_add_u32 s5, s5, s6"); pre("s_add_u32 s5, s5, s11")
    pre("s_lshl_b32 s5, s5, 11"); pre(f"s_add_u32 s5, s5, {hex(HF)}"); srd(pre, 60, "s5", 4 * 229376)
    pre("s_mul_i32 s22, s12, 28"); pre("s_add_u32 s22, s22, s13")
    pre("s_lshl_b32 s22, s22, 7"); pre(f"s_add_u32 s22, s22, {hex(F3)}")
    pre("v_mov_b32 v5, s22"); pre(f"v_mov_b32 v6, s{sNON}")
    pre(f"v_mov_b32 v14, {SL[1]}"); pre("s_lshl_b32 s5, s11, 2"); pre("v_add_u32 v15, s5, v14")
    DB = 16; LAGC = 2
    a("s_nop 7")
    for n in range(32 + LAGC):
        if n < 32:
            d = DB + 8 * (n % 4); w = W1R + 4 * KORD[n]
            a(f"v_mfma_f32_16x16x32_bf16 {q4(d)}, v[90:93], {q4(w)}, v[80:83]")
        if n >= LAGC:
            d2 = DB + 8 * ((n - LAGC) % 4); w2 = W1R + 4 * KORD[n - LAGC]
            for j in range(2): a(f"v_cvt_pk_bf16_f32 v{w2+j}, v{d2+2*j}, v{d2+2*j+1}")
        if n < 32: a(f"v_mfma_f32_16x16x32_bf16 {q4(d+4)}, v[88:91], {q4(w)}, v[80:83]")
        if n >= LAGC:
            for j in range(2, 4): a(f"v_cvt_pk_bf16_f32 v{w2+j}, v{d2+2*j}, v{d2+2*j+1}")
        if n < len(pre.l): a(pre.l[n])
    assert len(pre.l) <= 32
    stamp(a, 13)
    ACC = [16, 32]; BF = 48; NB = 8; PK = 80; LEAD = HLEAD
    def acc(i): return f"v[{ACC[i]}:{ACC[i]+15}]"
    def bread(g):
        j, n = divmod(g, 32); sl = (j + 1) % 3; r = BF + 4 * (g % NB)
        for h in range(2): a(f"ds_read_b64_tr_b16 {pr(r+2*h)}, v{12+sl//2} offset:{(sl%2)*32768+1024*KORD[n]+256*h}")
    def epi(ai):
        b = ACC[ai]; L = []
        for q in range(4): L.append(f"v_mul_f32 v{b+2*q}, v{b+2*q}, v{b+8+2*q}\nv_mul_f32 v{b+2*q+1}, v{b+2*q+1}, v{b+9+2*q}")
        for q in range(0, 4, 2): L.append(f"v_cvt_pk_bf16_f32 v{PK+4*ai+q}, v{b+2*q}, v{b+2*q+1}\nv_cvt_pk_bf16_f32 v{PK+4*ai+q+1}, v{b+2*q+2}, v{b+2*q+3}")
        if ai == 0: L.append("s_bfe_u32 s5, s49, 0x20001\ns_mul_i32 s5, s5, 229376\ns_lshr_b32 s49, s49, 8")
        else: L.append(f"buffer_store_dwordx4 {q4(PK)}, v3, s[60:63], s5 offen sc1\nbuffer_store_dwordx4 {q4(PK+4)}, v3, s[60:63], s5 offen offset:1024 sc1")
        return L
    a("s_barrier")
    stamp(a, 14)
    BARN = 32 - BLEAD
    avail = 4 * T0N; rd = 0
    while rd < LEAD: bread(rd); rd += 1
    for g in range(256):
        j, n = divmod(g, 32)
        bar = (g == 4 * T0N - BLEAD) or (n == BARN and j < 7)
        if bar:
            key = 20 if g == 4 * T0N - BLEAD else ([1, 3, 5, 7, 9, 11, 22][j])
            assert rd == avail
            if g != 4 * T0N - BLEAD: a("s_waitcnt vmcnt(0) lgkmcnt(0)" if j in (3, 5) else "s_waitcnt lgkmcnt(0)")
            if key and os.environ.get("BST"): stamp(a, key)
            a("s_barrier")
            if key and os.environ.get("BST"): stamp(a, key + 1)
            avail = 32 if g < 4 * T0N else avail + 32
        a(f"s_waitcnt lgkmcnt({2*(rd-g-1)})")
        a(f"v_mfma_f32_32x32x16_bf16 {acc(j&1)}, {q4(W1R+4*KORD[n])}, {q4(BF+4*(g%NB))}, {acc(j&1) if n else 0}")
        for k in range(2):
            if rd < min(avail, g + 1 + LEAD): bread(rd); rd += 1
        if j == 0 and cen:
            k = -(-12 * CLATE // (30 - CLATE))
            for x in cen[:k]: a(x)
            del cen[:k]
        if j and 2 <= n < 8: a(epi((j - 1) & 1)[n - 2])
        if j and n == STN: a(epi((j - 1) & 1)[6])
        if j == 7 and n == FLAGA:
            a("s_waitcnt vmcnt(0)")
            a("s_mov_b64 exec, 1"); a("ds_write_b32 v15, v6 offset:16"); a("ds_read_b128 v[8:11], v14 offset:16"); a("s_mov_b64 exec, -1")
        if j == 7 and n == FLAGA + LEAD + 1:
            a("s_mov_b64 exec, 1")
            for k in range(4): a(f"v_cmpx_eq_u32 vcc, v6, v{8+k}")
            a("s_cbranch_execz hfa")
            a(f"global_store_dword v5, v6, {sp(sWS)} sc1")
            a("hfa:")
            a("s_mov_b64 exec, -1")
            a("v_add_u32 v5, 0x8000, v5")
        if j in (3, 5) and n == BARN:
            _lab[0] += 1
            a(f"s_cmp_lg_u32 s11, 0"); a(f"s_cbranch_scc1 hf{_lab[0]}")
            a("s_mov_b64 exec, 1"); a(f"global_store_dword v5, v6, {sp(sWS)} sc1"); a("s_mov_b64 exec, -1")
            a(f"hf{_lab[0]}:")
            a("v_add_u32 v5, 0x8000, v5")
        if n == 31 and j in (0, 3) and not os.environ.get('BST'): stamp(a, 15 if j == 0 else 16)
    stamp(a, 17)
    for x in epi(1): a(x)
    a("s_waitcnt vmcnt(0)")
    a("s_mov_b64 exec, 1")
    a("ds_write_b32 v15, v6"); a("ds_read_b128 v[8:11], v14"); a("s_waitcnt lgkmcnt(0)")
    for k in range(4): a(f"v_cmpx_eq_u32 vcc, v6, v{8+k}")
    a("s_cbranch_execz hfl")
    a(f"global_store_dword v5, v6, {sp(sWS)} sc1")
    a("hfl:")
    a("s_mov_b64 exec, -1")
    stamp(a, 18)
def h_var(a):
    a("s_waitcnt vmcnt(0)"); flag_store(a, "s22", 8)
    a("s_cmp_ge_u32 s11, 2"); a("s_cbranch_scc1 k_done")
    h_addr(a)
    a("s_barrier"); a("s_barrier"); a("s_barrier")
    a("s_cmp_eq_u32 s11, 0"); a("s_cbranch_scc1 v_a")
    a("s_barrier")
    a("v_a:")
    a("s_lshl_b32 s5, s11, 15"); a(f"s_add_u32 s5, s5, {SL[1]}"); a("v_add_u32 v12, s5, v12")
    for n in range(32):
        for h in range(2): a(f"ds_read_b64_tr_b16 {pr(W1R+4*n+2*h)}, v12 offset:{1024*n+256*h}")
    a("s_waitcnt lgkmcnt(0)")
    a("s_cmp_lg_u32 s11, 0"); a("s_cbranch_scc1 v_b")
    a("s_barrier")
    a("v_b:")
    for k in range(128):
        a(f"v_dot2_f32_bf16 v{16+k%2}, v{W1R+k}, s21, {('v%d' % (16+k%2)) if k >= 2 else 0}")
        a(f"v_dot2_f32_bf16 v{18+k%2}, v{W1R+k}, v{W1R+k}, {('v%d' % (18+k%2)) if k >= 2 else 0}")
    a("v_add_f32 v16, v16, v17"); a("v_add_f32 v18, v18, v19"); a("v_mov_b32 v17, v16"); a("v_mov_b32 v19, v18")
    a("v_permlane32_swap_b32 v16, v17"); a("v_permlane32_swap_b32 v18, v19"); a("v_add_f32 v16, v16, v17"); a("v_add_f32 v18, v18, v19")
    ln_final(a, 16, 18, 20, 22, 24)
    a("v_mul_f32 v22, v22, v22"); a("v_rcp_f32 v22, v22"); a(f"v_mov_b32 v23, s{sNON}")
    a("s_lshl_b32 s5, s14, 1"); a("s_add_u32 s5, s5, s11"); a("s_lshl_b32 s5, s5, 8"); a(f"s_add_u32 s5, s5, {hex(R2G)}")
    a("v_and_b32 v5, 31, v2"); a("v_lshl_add_u32 v5, v5, 3, s5")
    a("s_mov_b32 exec_hi, 0")
    a(f"global_store_dwordx2 v5, v[22:23], {sp(sWS)} sc1")

W1FL = os.environ.get("W1FL", "sc1"); NT = os.environ.get("NT", ""); W1DLY = int(os.environ.get("W1DLY", 0))
CPF = int(os.environ.get("CPF", 1))
XPRE = int(os.environ.get("XPRE", 7)); IDLEPRE = int(os.environ.get("IDLEPRE", 52)); W2B = int(os.environ.get("W2B", 5))
W2SCH = [int(c) for c in os.environ.get("W2SCH", "112222")]; ORDER = int(os.environ.get("ORDER", 2)); B9AT = int(os.environ.get("B9AT", 20)); FSLEEP = int(os.environ.get("FSLEEP", 4)); BLEAD = int(os.environ.get("BLEAD", 4)); HLEAD = int(os.environ.get("HLEAD", 7)); FBN = [int(c) for c in os.environ.get("FBN", "357")]; CLATE = int(os.environ.get("CLATE", 0)); B3B = int(os.environ.get("B3B", 1)); T0N = int(os.environ.get("T0N", 3)); XST = int(os.environ.get("XST", 1)); EARLY2 = int(os.environ.get("EARLY2", 8)); STN = int(os.environ.get("STN", 8)); EPK = int(os.environ.get("EPK", 0)); BPRIO = int(os.environ.get("BPRIO", 3)); WDLY = int(os.environ.get("WDLY", 8)); B3AT = int(os.environ.get("B3AT", 2)); FLAG1ST = int(os.environ.get("FLAG1ST", 1))
WARM = int(os.environ.get("WARM", 1)); WARM2 = int(os.environ.get("WARM2", 1)); WNT = os.environ.get("WNT", ""); MAP3 = int(os.environ.get("MAP3", 0)); DNT = os.environ.get("DNT", "")
DSGAP = int(os.environ.get("DSGAP", 5)); FLAGA = int(os.environ.get("FLAGA", 6))
P1PRE = int(os.environ.get("P1PRE", 0)); P2PRE = int(os.environ.get("P2PRE", 6)); P3PRE = int(os.environ.get("P3PRE", 0))
W2PRE = int(os.environ.get("W2PRE", 2)); HDEP = int(os.environ.get("HDEP", 6)); OUTFL = os.environ.get("OUTFL", "")

PORD = [[[(c + 1 + i) & 3 for i in range(4)] for c in range(4)], None, [[2, 3, 1, 0], [2, 3, 0, 1], [0, 1, 3, 2], [0, 1, 2, 3]]][ORDER]
def kernel():
    a = Asm()
    a("s_cmp_ge_u32 s2, 256"); a("s_cbranch_scc1 k_done")
    if PROF:
        a("v_mov_b32 v255, 0")
        a("s_memrealtime s[100:101]"); a("s_waitcnt lgkmcnt(0)"); a("v_writelane_b32 v255, s100, 30")
        stamp(a, 0)
    a("s_load_dwordx16 s[16:31], s[0:1], 0")
    a("s_load_dwordx16 s[32:47], s[0:1], 64")
    if CPF:
        a("s_getpc_b64 s[90:91]")
        a("k_pc:")
        a("s_bfe_u32 s5, s2, 0x30003"); a("s_mul_i32 s5, s5, 5"); a("s_lshr_b32 s5, s5, 3"); a("s_lshl_b32 s5, s5, 13")
        a("v_lshrrev_b32 v1, 3, v0"); a("v_lshl_add_u32 v1, v1, 7, s5")
        a("v_min_u32 v1, k_end-k_pc-4, v1")
        a("global_load_dword v254, v1, s[90:91]")
    a("v_lshrrev_b32 v1, 6, v0")
    a("v_readfirstlane_b32 s10, v1")
    a("v_and_b32 v0, 255, v0")
    common_ids(a)
    a("s_and_b32 s11, s10, 3")
    a("s_cmp_ge_u32 s10, 4"); a("s_cbranch_scc1 e_h")
    m_entry(a)
    a("s_branch m_main")
    a("e_h:")
    a("s_setprio 2")
    a("s_cmp_lt_u32 s2, 128"); a("s_cbranch_scc1 e_x")
    warm1(a)
    a(f"s_sleep {IDLEPRE}")
    a("s_waitcnt lgkmcnt(0)")
    epoch_mix(a)
    a("s_branch h_join")
    a("e_x:")
    a("s_mov_b32 s5, s2")
    x_entry(a)
    h_xrole(a)
    a("h_join:")
    h_phaseB(a, h_u(a))
    h_phaseC(a)
    stamp_out(a)
    a("s_endpgm")
    a("m_main:")
    m_kgen(a); m_conv(a)
    m_phaseD(a, *m_phaseC(a))
    stamp_out(a)
    a("s_endpgm")
    a("h_spare:")
    h_var(a)
    a("k_done:")
    a("s_endpgm")
    a("k_end:")
    return a
def probe_kernel():
    w, st, nwg, mode, K = PROBE
    a = Asm()
    a("s_cmp_ge_u32 s2, 1"); a("s_cbranch_scc1 pr_done")
    a("s_load_dwordx2 s[46:47], s[0:1], 120")
    a("v_lshlrev_b32 v1, 10, v0"); a(f"v_add_u32 v1, {hex(PBUF)}, v1")
    a("s_waitcnt lgkmcnt(0)")
    n = nwg // 32
    for i in range(8):
        a(f"global_load_dword v{8+i}, v1, s[46:47]");
        if i < n: a(f"global_load_dword v{16+i}, v1, s[46:47] offset:{w*128+st*4}")
        a("v_add_u32 v1, 32768, v1")
    a("s_waitcnt vmcnt(0)")
    for i in range(1, 8): a(f"v_min_u32 v8, v8, v{8+i}")
    a("s_mov_b32 s10, -1")
    for l in range(32): a(f"v_readlane_b32 s11, v8, {l}"); a("s_min_u32 s10, s10, s11")
    for i in range(n): a(f"v_subrev_u32 v{16+i}, s10, v{16+i}")
    for i in range(1, n): a(f"{'v_add_u32' if mode else 'v_max_u32'} v16, v16, v{16+i}")
    a("s_mov_b32 s12, 0")
    for l in range(32): a(f"v_readlane_b32 s11, v16, {l}"); a(f"{'s_add_u32' if mode else 's_max_u32'} s12, s12, s11")
    a(f"s_mul_i32 s12, s12, {K}")
    if mode: a(f"s_mul_hi_u32 s12, s12, {hex((1<<32)//nwg)}")
    a("s_min_u32 s12, s12, 200000")
    a("s_memrealtime s[14:15]"); a("s_waitcnt lgkmcnt(0)")
    a("pr_l:")
    a("s_memrealtime s[16:17]"); a("s_waitcnt lgkmcnt(0)"); a("s_sub_u32 s16, s16, s14"); a("s_cmp_lt_u32 s16, s12"); a("s_cbranch_scc1 pr_l")
    a("pr_done:"); a("s_endpgm")
    return a
if __name__ == "__main__":
    a = kernel()
    kn = NAME + "_kernel"
    if PROBE:
        s = f"; @launch kernel={kn} grid=(256,1,1) block=(512,1,1) lds={LDS_TOTAL}\n; @launch kernel=probe_kernel grid=(1,1,1) block=(32,1,1) lds=0\n"
        s += '.amdgcn_target "amdgcn-amd-amdhsa--gfx950"\n.text\n' + head(kn) + a.text(True) + head("probe_kernel") + probe_kernel().text() + '.section .rodata,"a"\n' + kd(kn, 256) + kd("probe_kernel", 32)
    else:
        s = f"; @launch grid=(256,1,1) block=(512,1,1) lds={LDS_TOTAL}\n"
        s += '.amdgcn_target "amdgcn-amd-amdhsa--gfx950"\n.text\n' + head(kn) + a.text(True) + '.section .rodata,"a"\n' + kd(kn, 256)
    open(sys.argv[1] if len(sys.argv) > 1 else "f.s", "w").write(s)
```

```python
import sys, os, struct
from asmlib import *
NAME = "sequential_preLN__ssm_conv_s4__glu_gated_bilinear__prompt"
PROF = bool(os.environ.get("PROF"))
PROBE = [int(x) for x in os.environ["PROBE"].split(",")] if os.environ.get("PROBE") else None
G1 = 0x0; F2 = 0x4000; R2G = 0x8000; EPO = 0xC000; F3 = 0x20000
XT = 0x100000; HB = 0x300000; HF = 0x500000
PBUF = 0x2000000
sX, sARE, sAIM, sBRE, sBIM, sCRE, sCIM, sLDT, sDSK, sWG, sWU, sWD, sOUT, sDBG, sWS = \
    16, 18, 20, 22, 24, 26, 28, 30, 32, 36, 38, 40, 42, 44, 46
sNON = 48
SL = [0, 32768, 65536, 98304]; RING = 131072; RD = 7; MISC = 159744; LDS_TOTAL = 163840
CSTR = 11 * 512 + 32; TCHN = 8 * CSTR; TAB = 0; TOE = SL[3]; TCP = 4160; UU = TOE + 8 * TCP; UCH = 4608; YY = UU + 2 * UCH
assert YY + 16384 <= MISC and 2 * TCHN <= SL[3]
CNT = MISC + 4032
RES = SL[1]; RED = SL[1] + 8192; UP = 131072
DPP = "row_mask:0xf bank_mask:0xf"
SPIN = 1 << 16
def sp(b): return f"s[{b}:{b+1}]"
def pr(b): return f"v[{b}:{b+1}]"
def q4(b): return f"v[{b}:{b+3}]"
def f2u(x): return "0x%08x" % struct.unpack("<I", struct.pack("<f", x))[0]
def wsptr(a, dst, off):
    a(f"s_add_u32 s{dst}, s{sWS}, {hex(off) if isinstance(off, int) else off}"); a(f"s_addc_u32 s{dst+1}, s{sWS+1}, 0")
def srd(a, d, off, size):
    wsptr(a, d, off)
    a(f"s_and_b32 s{d+1}, s{d+1}, 0xffff"); a(f"s_mov_b32 s{d+2}, {hex(size)}"); a(f"s_mov_b32 s{d+3}, 0x00020000")
_st = {}
def stamp(a, i):
    if PROF:
        if PROBE and i not in (0, 29, PROBE[1]): return
        a(("s_memrealtime" if (PROBE or os.environ.get("RT")) else "s_memtime") + " s[100:101]"); a("s_waitcnt lgkmcnt(0)"); a(f"v_writelane_b32 v255, s100, {i}")
def stamp_out(a):
    if not PROF: return
    a("s_waitcnt vmcnt(0)")
    stamp(a, 29)
    a("s_memrealtime s[100:101]"); a("s_waitcnt lgkmcnt(0)"); a("v_writelane_b32 v255, s100, 31")
    a("s_lshl_b32 s3, s2, 3"); a("s_add_u32 s3, s3, s10"); a("s_lshl_b32 s3, s3, 7"); a(f"s_add_u32 s3, s3, {hex(PBUF)}")
    a("v_mbcnt_lo_u32_b32 v1, -1, 0"); a("v_lshl_add_u32 v1, v1, 2, s3")
    a("s_mov_b32 exec_hi, 0")
    a(f"global_store_dword v1, v255, {sp(sWS)}")
_lab = [0]
def poll(a, loads, checks, sleep=2, pre=0):
    _lab[0] += 1; n = _lab[0]
    a("s_mov_b64 s[98:99], exec")
    a("s_mov_b32 s97, 0")
    if pre: a(f"s_sleep {pre}")
    a(f"poll{n}:")
    for x in loads: a(x)
    a("s_add_u32 s97, s97, 1")
    a("s_waitcnt vmcnt(0)")
    if len(checks) == 1:
        a(f"v_cmp_ne_u32 vcc, s{sNON}, v{checks[0]}")
    else:
        a(f"v_cmp_ne_u32 vcc, s{sNON}, v{checks[0]}")
        for c in checks[1:]:
            a(f"v_cmp_ne_u32 s[94:95], s{sNON}, v{c}"); a("s_nop 0"); a("s_or_b64 vcc, vcc, s[94:95]")
    a("s_and_b64 exec, exec, vcc")
    a(f"s_cbranch_execz pollx{n}")
    a(f"s_cmp_ge_u32 s97, {SPIN}"); a(f"s_cbranch_scc1 pollx{n}")
    if sleep: a(f"s_sleep {sleep}")
    a(f"s_branch poll{n}")
    a(f"pollx{n}:")
    a("s_mov_b64 exec, s[98:99]")
def epoch_load(a): a(f"s_load_dword s{sNON}, {sp(sWS)}, {hex(EPO)}")
def epoch_mix(a):
    a(f"s_mul_i32 s{sNON}, s{sNON}, 0x9e3779b1"); a(f"s_add_u32 s{sNON}, s{sNON}, 0x7f4a7c15")
def lds_spin(a, vaddr, vt, target, off=0):
    _lab[0] += 1; n = _lab[0]
    a("s_mov_b32 s97, 0")
    a(f"lsp{n}:")
    a(f"ds_read_b32 v{vt}, v{vaddr} offset:{off}")
    a("s_add_u32 s97, s97, 1")
    a("s_waitcnt lgkmcnt(0)")
    a(f"v_readfirstlane_b32 s96, v{vt}")
    a(f"s_cmp_ge_u32 s97, {SPIN*8}"); a(f"s_cbranch_scc1 lsx{n}")
    a(f"s_cmp_lt_u32 s96, {target}"); a(f"s_cbranch_scc1 lsp{n}")
    a(f"lsx{n}:")
def check_or_poll(a, load, reg, sleep=2):
    _lab[0] += 1; n = _lab[0]
    a(f"v_cmp_ne_u32 vcc, s{sNON}, v{reg}")
    a(f"s_cbranch_vccz cok{n}")
    poll(a, [load], [reg], sleep=sleep)
    a(f"cok{n}:")
def flag_store(a, soff, vt):
    a(f"v_mov_b32 v{vt}, {soff}"); a(f"v_mov_b32 v{vt+1}, s{sNON}")
    a("s_mov_b64 exec, 1")
    a(f"global_store_dword v{vt}, v{vt+1}, {sp(sWS)} sc1")
    a("s_mov_b64 exec, -1")
def ln_final(a, S, Q, M, SD, T):
    a(f"v_mul_f32 v{T}, {f2u(1/512)}, v{S}")
    a(f"v_mul_f32 v{T+1}, {f2u(1/512)}, v{Q}")
    a(f"v_fma_f32 v{T+1}, -v{T}, v{T}, v{T+1}")
    a(f"v_max_f32 v{T+1}, 0, v{T+1}")
    a(f"v_cvt_pk_bf16_f32 v{T}, v{T}, v{T+1}")
    a(f"v_lshlrev_b32 v{M}, 16, v{T}")
    a(f"v_and_b32 v{T+1}, 0xffff0000, v{T}")
    a(f"v_add_f32 v{T+1}, {f2u(1e-5)}, v{T+1}")
    a(f"v_cvt_pk_bf16_f32 v{T+1}, v{T+1}, v{T+1}")
    a(f"v_lshlrev_b32 v{T+1}, 16, v{T+1}")
    a(f"v_sqrt_f32 v{T+1}, v{T+1}")
    a(f"v_cvt_pk_bf16_f32 v{T+1}, v{T+1}, v{T+1}")
    a(f"v_lshlrev_b32 v{SD}, 16, v{T+1}")
def cmul_batch(a, jobs):
    for d, x, y in jobs: a(f"v_pk_mul_f32 {pr(d)}, {pr(x)}, {pr(y)} op_sel:[0,0] op_sel_hi:[1,0]")
    for d, x, y in jobs: a(f"v_pk_fma_f32 {pr(d)}, {pr(x)}, {pr(y)}, {pr(d)} op_sel:[1,1,0] op_sel_hi:[0,1,1] neg_lo:[1,0,0]")

def common_ids(a):
    a("s_and_b32 s14, s2, 7"); a("s_lshl_b32 s3, s14, 5"); a("s_lshr_b32 s5, s2, 3"); a("s_add_u32 s3, s3, s5")
    a("s_mov_b32 s4, 0xffff0000")
def late_ids(a):
    a("s_and_b32 s50, s2, 3")
    a("s_lshr_b32 s15, s2, 5")
    a("s_bfe_u32 s34, s2, 0x20003")
    a("s_and_b32 s12, s2, 4"); a("s_add_u32 s12, s12, s34")
    a("s_mul_i32 s13, s50, 7"); a("s_add_u32 s13, s13, s15")
    a("s_mov_b32 s49, s15")
    a("s_and_b32 s5, s15, 3"); a("s_cmp_eq_u32 s5, 3"); a("s_cselect_b32 s5, 4, 0"); a("s_xor_b32 s15, s15, s5")
    a("s_and_b32 s49, s49, 3")
    def order(lst): return hex(sum(t << (4 * i) for i, t in enumerate(lst)))
    tab = [order([t for q in PORD[c] for t in (2 * q, 2 * q + 1)]) for c in range(4)]
    a("s_cmp_eq_u32 s49, 1"); a(f"s_mov_b32 s5, {tab[0]}"); a(f"s_cselect_b32 s5, {tab[1]}, s5")
    a("s_cmp_eq_u32 s49, 2"); a(f"s_cselect_b32 s5, {tab[2]}, s5")
    a("s_cmp_eq_u32 s49, 3"); a(f"s_cselect_b32 s49, {tab[3]}, s5")
    a("s_mul_i32 s5, s50, 0x22222222"); a("s_add_u32 s5, s5, 0x10101010")
    a("s_cmp_eq_u32 s15, 3"); a("s_cselect_b32 s49, s5, s49"); a("s_cselect_b32 s13, 0, s13")
    a("s_lshl_b32 s14, s12, 2"); a("s_add_u32 s14, s14, s50")

PR = 8; WA = 240
def m_entry(a):
    a("s_lshl_b32 s5, s3, 9")
    a("v_lshl_add_u32 v2, v0, 1, s5")
    a("s_lshl_b32 s5, s3, 2")
    for i in range(6): a(f"v_mov_b32 v{PR+i}, 0")
    a(f"v_mov_b32 v6, {CNT}"); a(f"ds_write_b128 v6, {q4(PR)}")
    a("s_waitcnt lgkmcnt(0)")
    stamp(a, 23)
    for i, p in enumerate((sARE, sAIM, sBRE, sBIM, sCRE, sCIM)):
        a(f"global_load_short_d16_hi v{PR+i}, v2, {sp(p)} {NT}")
    a(f"s_load_dword s6, {sp(sLDT)}, s5")
    epoch_load(a)
    a("s_barrier")
def m_kgen(a):
    a("v_lshrrev_b32 v6, 5, v0"); a(f"v_mul_u32_u24 v6, {UCH}, v6"); a("v_and_b32 v7, 31, v0")
    a("v_lshl_add_u32 v6, v7, 4, v6"); a(f"v_add_u32 v6, {UU}, v6")
    a("v_bfe_u32 v7, v0, 1, 3"); a(f"v_mul_u32_u24 v7, {TCP}, v7"); a("v_and_b32 v40, 1, v0")
    a("v_lshl_add_u32 v7, v40, 4, v7"); a(f"v_add_u32 v7, {TOE}, v7")
    a("v_cmp_gt_u32 vcc, 64, v0")
    for i in range(4): a(f"v_mov_b32 v{36+i}, 0")
    a("v_cndmask_b32 v6, v7, v6, vcc")
    a("ds_write_b128 v6, v[36:39]")
    late_ids(a)
    if W3 == 1: warm3(a, W3F)
    a("s_lshr_b32 s7, s10, 1")
    a(f"s_mul_i32 s8, s7, {TCHN}")
    a("v_and_b32 v7, 127, v0"); a(f"v_lshl_add_u32 v{WA}, v7, 2, s8")
    for c in range(1, 8): a(f"v_add_u32 v{WA+c}, {c*CSTR}, v{WA}")
    a("v_and_b32 v2, 15, v0"); a("v_bfe_u32 v3, v0, 4, 2")
    a(f"s_mul_i32 s9, s7, {4*TCP}"); a(f"s_add_u32 s9, s9, {TOE}")
    a("v_lshl_add_u32 v4, v3, 4, s8")
    def adr(dst, cls, idx):
        a(f"v_mul_u32_u24 v{dst}, {CSTR}, v{cls}"); a(f"v_lshl_add_u32 v{dst}, v{idx}, 9, v{dst}"); a(f"v_add_u32 v{dst}, v{dst}, v4")
    a("v_and_b32 v26, 7, v2"); a("v_lshrrev_b32 v15, 3, v2"); adr(16, 26, 15)
    a("v_and_b32 v6, 3, v2"); a("v_bfe_u32 v7, v2, 2, 1")
    a("v_lshl_add_u32 v20, v2, 5, s9")
    a("v_lshl_add_u32 v21, v3, 9, v20"); a("v_add_u32 v21, 2048, v21")
    a("v_lshrrev_b32 v22, 1, v3"); a("v_lshl_add_u32 v20, v22, 9, v20")
    a("v_and_b32 v22, 1, v3"); a("v_lshl_add_u32 v20, v22, 4, v20")
    a("s_bitcmp1_b32 s10, 0"); a("s_cbranch_scc1 m_adrY")
    a("v_lshl_add_u32 v26, v7, 3, v6")
    a("v_subrev_u32 v27, 1, v6"); a("v_max_i32 v27, 0, v27"); a("v_lshl_add_u32 v27, v7, 2, v27")
    a("v_cmp_eq_u32 vcc, 1, v15")
    a("v_lshlrev_b32 v28, 1, v15"); a("v_sub_u32 v28, 4, v28")
    a("v_cndmask_b32 v26, v26, v27, vcc")
    for t in range(3):
        a("v_and_b32 v27, 3, v26"); a("v_lshl_add_u32 v27, v15, 2, v27"); a("v_lshrrev_b32 v29, 2, v26"); a("v_add_u32 v29, 2, v29")
        adr(17 + t, 27, 29)
        if t < 2: a("v_add_u32 v26, v26, v28")
    a("s_branch m_adrJ")
    a("m_adrY:")
    a("v_lshl_add_u32 v26, v7, 1, v6")
    a("v_and_b32 v27, 3, v26"); a("v_lshl_add_u32 v27, v15, 2, v27")
    a("v_lshrrev_b32 v29, 2, v26"); a("v_lshlrev_b32 v28, 1, v15"); a("v_sub_u32 v29, v29, v28"); a("v_add_u32 v29, 7, v29")
    adr(17, 27, 29)
    a("v_lshl_add_u32 v27, v15, 2, v6"); a("v_sub_u32 v29, v7, v28"); a("v_add_u32 v29, 9, v29")
    adr(18, 27, 29)
    a("v_add_u32 v20, 1024, v20")
    a("m_adrJ:")
    a("v_add_u32 v4, 1, v2")
    a("v_and_b32 v5, 3, v4"); a(f"v_mul_u32_u24 v5, {TCP}, v5")
    a("v_lshrrev_b32 v4, 2, v4"); a("v_lshl_add_u32 v5, v4, 3, v5")
    a("v_lshlrev_b32 v4, 4, v3"); a("v_sub_u32 v5, v5, v4")
    a("s_and_b32 s8, s10, 1"); a("s_lshl_b32 s8, s8, 8")
    a("s_add_u32 s9, s9, s8"); a("s_add_u32 s9, s9, 48")
    a("v_add_u32 v23, s9, v5")
    a(f"s_mul_i32 s9, s7, {UCH}"); a(f"s_add_u32 s9, s9, {UU+480-192}"); a("s_sub_u32 s9, s9, s8")
    a("v_lshl_add_u32 v24, v2, 5, v4"); a("v_add_u32 v24, s9, v24")
    a("v_lshrrev_b32 v4, 1, v3"); a("v_bfe_u32 v5, v2, 2, 1"); a("v_xor_b32 v4, v4, v5"); a("v_lshl_add_u32 v4, v2, 1, v4")
    a("v_and_b32 v5, 1, v3"); a("v_lshlrev_b32 v5, 3, v5"); a("v_lshl_add_u32 v25, v4, 4, v5")
    a("s_lshl_b32 s8, s10, 12"); a(f"s_add_u32 s8, s8, {YY}"); a("v_add_u32 v25, s8, v25")
    stamp(a, 24)
    a("s_waitcnt lgkmcnt(0)")
    a("s_lshl_b32 s8, s6, 16"); a("s_and_b32 s9, s6, 0xffff0000")
    a("s_cmp_ge_u32 s10, 2"); a("s_cselect_b32 s8, s9, s8")
    a(f"v_mov_b32 v7, {f2u(1.4426950408889634)}")
    a("v_mul_f32 v40, s8, v7")
    a("v_exp_f32 v40, v40")
    a("v_cvt_pk_bf16_f32 v40, v40, v40")
    a("v_lshlrev_b32 v40, 16, v40")
    a(f"s_waitcnt vmcnt({(1 + W3F) if W3 == 1 else 0})")
    stamp(a, 1)
    if W3 == 2: warm3(a, W3F)
    a(f"v_mul_f32 v41, v40, v{PR}"); a(f"v_mul_f32 v42, v40, v{PR+1}")
    a("v_mul_f32 v41, v41, v7")
    a("v_mul_f32 v42, 0.15915494, v42")
    a(f"v_mul_f32 v{PR+2}, v40, v{PR+2}"); a(f"v_mul_f32 v{PR+3}, v40, v{PR+3}")
    S = {i: 44 + 2 * (i - 1) for i in range(1, 19)}
    E = {p: 80 + 2 * i for i, p in enumerate((32, 64, 128, 256, 512, 768, 1024, 1280, 1536, 1792))}
    C = {j: 100 + 2 * j for j in range(16)}
    T = 132; CV = 160
    V = []
    cvi = [0]
    def put(kind, k, reg):
        if kind == 'c': cls, idx = k & 7, k >> 3
        elif kind == 'r1': cls, idx = k & 3, 2 + (k >> 2)
        elif kind == 'r2': cls, idx = 4 + (k & 3), 2 + (k >> 2)
        elif kind == 'r4': cls, idx = 4 * k[0] + (k[1] & 3), 7 - 2 * k[0] + (k[1] >> 2)
        else: cls, idx = 4 * (k[0] >> 1) + k[1], 9 - 2 * (k[0] >> 1) + (k[0] & 1)
        t = CV + cvi[0]; cvi[0] += 1
        if reg is None: V.append(f"v_mov_b32 v{t}, 0x00003f80")
        else: V.append(f"v_cvt_pk_bf16_f32 v{t}, v{reg}, {'-' if kind == 'c' else ''}v{reg+1}")
        V.append(('put', cls, idx, t))
    class A2:
        def __call__(self, x): V.append(x)
    v = A2()
    D = [(S[1], 1.0), (S[16], 16.0), (E[256], 256.0)]
    for i, (d, p) in enumerate(D):
        if p == 1.0:
            v(f"v_exp_f32 v{T+3*i}, v41"); v(f"v_fract_f32 v{T+3*i+1}, v42")
        else:
            v(f"v_mul_f32 v{T+3*i}, {f2u(p)}, v41"); v(f"v_mul_f32 v{T+3*i+1}, {f2u(p)}, v42")
            v(f"v_exp_f32 v{T+3*i}, v{T+3*i}"); v(f"v_fract_f32 v{T+3*i+1}, v{T+3*i+1}")
    for i, (d, p) in enumerate(D):
        v(f"v_cos_f32 v{d}, v{T+3*i+1}"); v(f"v_sin_f32 v{d+1}, v{T+3*i+1}")
    cmul_batch(v, [(C[0], PR + 4, PR + 2)])
    put('r1', 0, None)
    for i, (d, p) in enumerate(D):
        v(f"v_mul_f32 v{d}, v{d}, v{T+3*i}"); v(f"v_mul_f32 v{d+1}, v{d+1}, v{T+3*i}")
    put('c', 0, C[0])
    cmul_batch(v, [(S[2], S[1], S[1]), (E[32], S[16], S[16]), (E[512], E[256], E[256]), (C[1], C[0], S[16]), (S[17], S[16], S[1])])
    put('r1', 1, S[1]); put('r1', 16, S[16]); put('r2', 0, E[256])
    cmul_batch(v, [(S[4], S[2], S[2]), (E[64], E[32], E[32]), (E[1024], E[512], E[512]), (S[3], S[2], S[1])])
    put('r1', 17, S[17]); put('r4', (0, 0), E[512]); put('r1', 2, S[2]); put('c', 1, C[1])
    cmul_batch(v, [(E[768], E[512], E[256]), (C[2], C[0], E[32]), (C[3], C[1], E[32]), (S[18], S[16], S[2])])
    put('r1', 4, S[4]); put('r8', (0, 0), E[1024]); put('r1', 3, S[3])
    cmul_batch(v, [(S[8], S[4], S[4]), (E[128], E[64], E[64]), (S[5], S[4], S[1]), (S[6], S[4], S[2])])
    put('r4', (1, 0), E[768]); put('c', 2, C[2]); put('c', 3, C[3]); put('r1', 18, S[18])
    jobs = [((S[7], S[4], S[3]), ('r1', 7)), ((E[1280], E[1024], E[256]), ('r8', (1, 0))), ((E[1536], E[1024], E[512]), ('r8', (2, 0))),
            ((E[1792], E[1024], E[768]), ('r8', (3, 0)))]
    jobs += [((C[4 + i], C[i], E[64]), ('c', 4 + i)) for i in range(4)]
    jobs += [((S[8 + i], S[8], S[i]), ('r1', 8 + i)) for i in range(1, 8)]
    jobs += [((T + 2 * (i - 1), E[256], S[2 * i]), ('r2', i)) for i in (1, 2, 3, 4, 8, 9)]
    jobs += [((C[8 + i], C[i], E[128]), ('c', 8 + i)) for i in range(8)]
    jobs += [((T + 2 * (i - 1), E[256], S[2 * i]), ('r2', i)) for i in (5, 6, 7)]
    jobs += [((C[4 * b + i - 1], E[512 + 256 * b], S[4 * i]), ('r4', (b, i))) for b in range(2) for i in range(1, 5)]
    jobs += [((C[8 + 2 * g + i - 1], E[1024 + 256 * g], S[8 * i]), ('r8', (g, i))) for g in range(4) for i in range(1, 3)]
    pend = [((S[8],), ('r1', 8)), ((S[5],), ('r1', 5)), ((S[6],), ('r1', 6))]
    for b0 in range(0, len(jobs), 4):
        bt = jobs[b0:b0+4]
        cmul_batch(v, [j[0] for j in bt])
        for j in pend: put(j[1][0], j[1][1], j[0][0])
        pend = bt
    for j in pend: put(j[1][0], j[1][1], j[0][0])
    assert cvi[0] == 67
    waiting = {}; ready = []; since = 0
    for x in V:
        if isinstance(x, tuple):
            _, cls, idx, t = x
            if cls in waiting:
                i0, t0 = waiting.pop(cls); ready.append(f"ds_write2st64_b32 v{WA+cls}, v{t0}, v{t} offset0:{2*i0} offset1:{2*idx}")
            else: waiting[cls] = (idx, t)
            continue
        a(x); since += 1
        if ready and since >= DSGAP:
            y = ready.pop(0); since = 0
            if not os.environ.get("NODS"): a(y)
    stamp(a, 25)
    for x in ready: a(x)
    for cls, (idx, t) in waiting.items(): a(f"ds_write_b32 v{WA+cls}, v{t} offset:{512*idx}")
    a(f"s_lshl_b32 s8, s7, 2"); a(f"s_add_u32 s8, s8, {CNT+4}"); a("v_mov_b32 v26, s8"); a("v_mov_b32 v27, 1")
    a("s_mov_b64 exec, 1"); a("ds_add_u32 v26, v27"); a("s_mov_b64 exec, -1")
    stamp(a, 2)
    lds_spin(a, 26, 27, 2)
    stamp(a, 3)
    BF = 44; AF = 76; ACC = 172
    def copies(vals, dst, off, tmp):
        for c in range(4):
            for p in range(4): a(f"v_cvt_pk_bf16_f32 v{tmp+4*c+p}, v{vals[c+2*p]}, v{vals[c+2*p+1]}")
            a(f"ds_write_b128 v{dst}, {q4(tmp+4*c)} offset:{32+c*TCP+off}")
    def genmm(nt):
        for ks in range(8):
            a(f"ds_read_b128 {q4(BF+4*ks)}, v16 offset:{64*ks}")
            for t in range(nt): a(f"ds_read_b128 {q4(AF+4*(nt*ks+t))}, v{17+t} offset:{64*ks}")
        for ks in range(8):
            a(f"s_waitcnt lgkmcnt({min(15, (nt+1)*(7-ks))})")
            for t in range(nt):
                a(f"v_mfma_f32_16x16x32_bf16 {q4(ACC+4*t)}, {q4(AF+4*(nt*ks+t))}, {q4(BF+4*ks)}, {q4(ACC+4*t) if ks else 0}")
    a("s_bitcmp1_b32 s10, 0"); a("s_cbranch_scc1 m_waveY")
    genmm(3)
    stamp(a, 4)
    a("s_nop 7")
    a("s_mov_b32 exec_lo, 0x80000000"); a("s_mov_b32 exec_hi, 0")
    a(f"v_mov_b32 v{ACC+9}, v{ACC+8}")
    a("s_mov_b32 exec_lo, 0"); a("s_mov_b32 exec_hi, 0x80000000")
    a(f"v_mov_b32 v{ACC+10}, v{ACC+9}")
    a("s_mov_b64 exec, -1")
    copies([ACC + i for i in range(11)], 20, 0, AF)
    a(f"v_cvt_pk_bf16_f32 v13, 0, v{ACC}")
    a("s_mov_b64 exec, 1")
    a(f"ds_write_b32 v20, v13 offset:{1*TCP+28}")
    a(f"ds_write_b32 v20, v{AF} offset:{2*TCP+28}")
    a(f"ds_write_b32 v20, v13 offset:{3*TCP+24}")
    a(f"ds_write_b32 v20, v{AF+4} offset:{3*TCP+28}")
    a("s_mov_b64 exec, -1")
    a("s_branch m_join")
    a("m_waveY:")
    genmm(2)
    stamp(a, 4)
    copies([ACC + i for i in (0, 0, 0, 1, 1, 1, 2, 2, 2, 2, 2)], 20, 0, AF)
    v8 = [ACC + 4 + i for i in [0] * 5 + [1] * 7 + [2] * 7]
    copies(v8[0:11], 21, 0, AF + 16); copies(v8[8:19], 21, 16, AF + 32)
    a("m_join:")
    m_setup(a)
    a("s_waitcnt lgkmcnt(0)")
    stamp(a, 5)
    a("s_barrier")
    stamp(a, 6)
def m_conv(a):
    Y = 32; FA = [64, 128]; FB = [96, 160]
    def reads(r):
        s = r & 1; L = []
        for p in range(8):
            L.append(f"ds_read_b64 {pr(FA[s]+4*p)}, v23 offset:{64*(8*p+r)}")
            L.append(f"ds_read_b64 {pr(FA[s]+4*p+2)}, v23 offset:{64*(8*p+r)+8}")
            L.append(f"ds_read_b128 {q4(FB[s]+4*p)}, v24 offset:{512*p+64*(3-r)}")
        return L
    for x in reads(0): a(x)
    order = sorted([(p, c2) for p in range(8) for c2 in range(8 - p)], key=lambda x: (max(x), x))
    for r in range(4):
        s = r & 1
        nxt = reads(r + 1) if r < 3 else []
        first = set(); have = -1; issued = 0
        if r > 0: a("s_waitcnt lgkmcnt(0)")
        for i, (p, c2) in enumerate(order):
            c = p + c2
            if r == 0 and max(p, c2) > have:
                have = max(p, c2)
                a(f"s_waitcnt lgkmcnt({min(15, 3*(7-have) + issued)})")
            src = q4(Y + 4 * c) if (r > 0 or c in first) else "0"
            first.add(c)
            a(f"v_mfma_f32_16x16x32_bf16 {q4(Y+4*c)}, {q4(FA[s]+4*p)}, {q4(FB[s]+4*c2)}, {src}")
            k = i - (8 if r == 0 else 0)
            if 0 <= k < len(nxt): a(nxt[k]); issued += 1
    stamp(a, 7)
    for c in (0, 1, 2, 3, 4, 5, 6, 7):
        a(f"v_cvt_pk_bf16_f32 v{64+2*c}, v{Y+4*c}, v{Y+4*c+1}"); a(f"v_cvt_pk_bf16_f32 v{65+2*c}, v{Y+4*c+2}, v{Y+4*c+3}")
        a(f"ds_write_b64 v25, {pr(64+2*c)} offset:{512*c}")
    a("s_waitcnt lgkmcnt(0)")
    a("s_barrier")
    stamp(a, 8)
SO = 64
def so(i): return f"s{SO+i}"
def warm3(a, full):
    a("s_lshl_b32 s5, s34, 2"); a("s_add_u32 s5, s5, s11"); a("s_mul_i32 s5, s5, 114688"); a("s_lshl_b32 s8, s13, 7"); a("s_add_u32 s5, s5, s8")
    a("v_and_b32 v253, 31, v0"); a("v_mul_u32_u24 v253, 3584, v253"); a("v_add_u32 v253, s5, v253")
    a("s_mov_b32 exec_hi, 0")
    if full:
        a(f"global_load_dword v252, v253, {sp(sWG)}"); a(f"global_load_dword v253, v253, {sp(sWU)}")
    else:
        a("s_bitcmp1_b32 s2, 2"); a(f"s_cselect_b32 s8, s{sWU}, s{sWG}"); a(f"s_cselect_b32 s9, s{sWU+1}, s{sWG+1}")
        a("global_load_dword v253, v253, s[8:9]")
    a("s_mov_b32 exec_hi, -1")
def warm2(a):
    a("s_lshl_b32 s5, s14, 2"); a("s_add_u32 s5, s5, s11"); a("s_mul_i32 s5, s5, 14336")
    a("v_lshl_add_u32 v28, v2, 7, s5"); a(f"global_load_dword v252, v28, {sp(sWD)}")
    a("v_min_u32 v28, 47, v2"); a("s_add_u32 s5, s5, 8192"); a("v_lshl_add_u32 v28, v28, 7, s5"); a(f"global_load_dword v253, v28, {sp(sWD)}")
def m_setup2(a):
    epoch_mix(a)
    tb = []; ts = []
    for p in range(4):
        bl = [(b, st) for st in range(4) for b in range(7) if PORD[b & 3][st] == p]
        tb.append(hex(sum(b << (4 * i) for i, (b, st) in enumerate(bl)))); ts.append(hex(sum(st << (4 * i) for i, (b, st) in enumerate(bl))))
    a(f"s_mov_b32 s51, {tb[0]}"); a(f"s_mov_b32 s35, {ts[0]}")
    for p in range(1, 4):
        a(f"s_cmp_eq_u32 s50, {p}"); a(f"s_cselect_b32 s51, {tb[p]}, s51"); a(f"s_cselect_b32 s35, {ts[p]}, s35")
    if XST == 1: a("s_lshl_b32 s8, s34, 11")
    elif XST == 2: a("s_xor_b32 s8, s34, s15"); a("s_and_b32 s8, s8, 3"); a("s_lshl_b32 s8, s8, 11")
    else: a("s_and_b32 s8, s15, 3"); a("s_lshl_b32 s8, s8, 11")
    if BSW:
        a("s_and_b32 s5, s51, 15"); a("s_bfe_u32 s6, s51, 0x40004"); a("s_xor_b32 s5, s5, s6"); a("s_mul_i32 s5, s5, 0x11")
        a("s_cmp_ge_u32 s15, 4"); a("s_cselect_b32 s5, s5, 0"); a("s_xor_b32 s51, s51, s5")
    for b in range(7):
        a(f"s_bfe_u32 s6, s51, {hex(0x40000 + 4 * b)}"); a(f"s_lshl_b32 {so(4*b)}, s6, 13")
        if XST: a(f"s_or_b32 {so(4*b)}, {so(4*b)}, s8")
        for t in range(1, 4): a(f"s_xor_b32 {so(4*b+t)}, {so(4*b)}, {2048*t}")
    a("s_lshl_b32 s5, s12, 18"); a(f"s_add_u32 s5, s5, {hex(HB)}"); srd(a, 52, "s5", 0 if os.environ.get('NOH') else 0x40000)
    a("s_mul_i32 s5, s11, 458752"); a("s_lshl_b32 s6, s15, 7"); a("s_add_u32 s5, s5, s6")
    a(f"s_add_u32 s56, s{sWD}, s5"); a(f"s_addc_u32 s57, s{sWD+1}, 0"); a("s_and_b32 s57, s57, 0xffff"); a(f"s_mov_b32 s58, {0 if os.environ.get('NOW2') else 458752-896}"); a("s_mov_b32 s59, 0x00020000")
    a("s_mul_i32 s6, s14, 112"); a("s_mul_i32 s5, s11, 28"); a("s_add_u32 s6, s6, s5"); a("s_lshl_b32 s6, s6, 11"); a(f"s_add_u32 s6, s6, {hex(HF)}")
    srd(a, 60, "s6", 0 if os.environ.get('NOHL') else 57344)
    a("s_add_u32 s16, s11, s34"); a("s_and_b32 s16, s16, 3")
    a("s_lshl_b32 s17, s16, 13")
def m_setup(a):
    a("v_and_b32 v2, 63, v0")
    w1_setup(a, 24, 242); w1_soff(a, 20, 3); w1_soff(a, 22, 2)
NREG = 16; W2R = 96
class VM:
    def __init__(self, a): self.a = a; self.q = []
    def add(self, tag, n=1): self.q.extend([tag] * n); assert len(self.q) <= 63
    def wait(self, tag, upto=None):
        ks = [j for j, x in enumerate(self.q) if x == tag]
        if not ks: return
        k = ks[-1] if upto is None else ks[upto - 1]
        self.a(f"s_waitcnt vmcnt({len(self.q)-1-k})"); del self.q[:k+1]
    def drained(self): self.q = []
FLD = "global_load_dword v250, v248, s[46:47] sc1"
FO = 24; FV = 36
def fv(b): return f"s{FV+b}" if b < 6 else "s33"
def faddr(a):
    for b in range(7):
        a(f"s_bfe_u32 s5, s51, {hex(0x40000 + 4 * b)}"); a(f"s_bfe_u32 s6, s35, {hex(0x40000 + 4 * b)}")
        a("s_lshl_b32 s5, s5, 7"); a("s_lshl_b32 s6, s6, 15"); a("s_add_u32 s5, s5, s6"); a(f"s_add_u32 s{FO+b}, s5, s22")
def fload(a, lo, hi):
    for b in range(lo, hi): a(f"s_load_dword {fv(b)}, s[46:47], s{FO+b}")
def m_phaseC(a):
    vm = VM(a)
    m_setup2(a)
    if B3B: a("s_barrier")
    if NPRE == 2: a("s_barrier")
    a("s_cmp_eq_u32 s15, 3"); a("s_cbranch_scc1 m_now1")
    if NPRE == 2: w1_dma(a, 24, 242, 22, SL[2])
    w1_dma(a, 24, 242, 20, SL[3])
    a("m_now1:")
    if NPRE == 3: a("s_barrier")
    a("v_lshlrev_b32 v3, 4, v2")
    a("v_lshrrev_b32 v5, 3, v2"); a("v_bfe_u32 v6, v2, 4, 1"); a("v_lshlrev_b32 v6, 2, v6"); a("v_and_b32 v4, 7, v2"); a("v_xor_b32 v4, v4, v6")
    a("v_lshlrev_b32 v4, 4, v4"); a("v_lshl_add_u32 v4, v5, 10, v4")
    AREA = [UP, UP + 4096, SL[3], SL[3] + 4096]
    where = {}
    def w2dma(st, base):
        for i in range(2):
            a(f"s_lshl_b32 s5, {so(2*st+i)}, 3"); a(f"s_add_u32 m0, s18, {base+2048*i}"); a("s_add_u32 s6, s5, 7168")
            a(f"buffer_load_dwordx4 v4, s[56:59], s5 offen lds"); a(f"buffer_load_dwordx4 v4, s[56:59], s6 offen offset:1024 lds")
        vm.add(f"w{st}", 4); where[st] = base
    a("v_bfe_u32 v5, v2, 2, 2"); a("v_lshrrev_b32 v6, 5, v2"); a("v_lshl_add_u32 v6, v6, 2, v5"); a("v_lshlrev_b32 v8, 7, v6")
    a("v_lshrrev_b32 v5, 1, v5"); a("s_and_b32 s5, s11, 1"); a("v_xor_b32 v5, s5, v5"); a("v_lshl_add_u32 v8, v5, 6, v8")
    a("v_and_b32 v5, 1, v2"); a("v_lshl_add_u32 v8, v5, 5, v8"); a("v_bfe_u32 v5, v2, 4, 1"); a("v_lshl_add_u32 v8, v5, 4, v8")
    a("v_bfe_u32 v5, v2, 1, 1"); a("v_lshl_add_u32 v8, v5, 3, v8"); a("v_add_u32 v8, s18, v8")
    a("v_xor_b32 v9, 64, v8")
    a(f"v_add_u32 v12, {SL[3]}, v8"); a(f"v_add_u32 v13, {SL[3]}, v9")
    a("s_lshr_b32 s5, s11, 1"); a("s_lshl_b32 s5, s5, 10"); a("v_add_u32 v10, s5, v3"); a("v_xor_b32 v11, 1024, v10")
    a("s_lshr_b32 s5, s12, 1"); a("s_lshl_b32 s5, s5, 12"); a("s_lshl_b32 s6, s16, 10"); a("s_add_u32 s5, s5, s6"); a(f"s_add_u32 s5, s5, {hex(F2)}")
    a("v_add_u32 v5, s5, v3")
    def w2read(dst, base, i):
        hi = base >= SL[3]; o = base - (SL[3] if hi else 0) + 2048 * i
        for d in range(2):
            for h in range(2): a(f"ds_read_b64_tr_b16 {pr(dst+4*d+2*h)}, v{(12 if hi else 8)+d} offset:{o+1024*h}")
    freeA = list(AREA); st = {"f": 0, "g": 0}
    def w2grab():
        g = st["g"]; st["g"] += 1
        vm.wait(f"w{g}")
        for i in range(2): w2read(W2R + 8 * (2 * g + i), where[g], i)
        a("s_waitcnt lgkmcnt(0)")
        freeA.append(where[g])
    def w2step():
        if st["f"] >= 12: return
        if not freeA: w2grab()
        w2dma(st["f"], freeA.pop(0)); st["f"] += 1
    a("s_waitcnt vmcnt(0)")
    a("s_barrier")
    assert W2PRE <= 2
    def touch():
        a("s_and_b32 s5, s49, 7"); a("s_lshl_b32 s5, s5, 15"); a("s_add_u32 s5, s5, s17")
        if TCH == 1: a("v_lshlrev_b32 v7, 7, v2")
        elif TCH == 2:
            a("v_and_b32 v7, 31, v2"); a("v_lshlrev_b32 v7, 8, v7"); a("s_and_b32 s6, s15, 1"); a("s_lshl_b32 s6, s6, 7"); a("s_add_u32 s5, s5, s6")
        elif TCH == 3:
            a("v_and_b32 v7, 31, v2"); a("v_lshlrev_b32 v7, 8, v7"); a("v_lshrrev_b32 v6, 5, v2"); a("v_lshl_add_u32 v7, v6, 15, v7")
            a("s_and_b32 s6, s15, 1"); a("s_lshl_b32 s6, s6, 7"); a("s_add_u32 s5, s5, s6")
        a("buffer_load_dword v7, v7, s[52:55], s5 offen sc1"); vm.add("t")
    if TCH and TCHP == 0: touch()
    for k in range(W2PRE): w2step()
    if TCH and TCHP == 1: touch()
    stamp(a, 9)
    SK = int(os.environ.get("SKIP2", 0))
    if SK == 1: a("s_cmp_lt_u32 s12, 4"); a("s_cbranch_scc1 m_sk2")
    if SK == 2: a("s_cmp_lt_u32 s34, 2"); a("s_cbranch_scc1 m_sk2")
    if SK == 4: a("s_cmp_lt_u32 s34, 3"); a("s_cbranch_scc1 m_sk2")
    if SK == 3: a("s_branch m_sk2")
    poll(a, [f"global_load_dword v6, v5, {sp(sWS)} sc1"], [6], sleep=2, pre=P2PRE)
    a("m_sk2:")
    vm.drained()
    stamp(a, 10)
    def hdma(j, lo=0, hi=8):
        if lo == 0: a("s_and_b32 s19, s49, 7"); a("s_lshl_b32 s19, s19, 15"); a("s_add_u32 s19, s19, s17"); a("s_lshr_b32 s49, s49, 4"); a("s_add_u32 s20, s19, 4096")
        for i in range(lo, hi):
            if i == lo or i == 4: a(f"s_add_u32 m0, s18, {SL[(j+1)%3]+4096*(i//4)}")
            a(f"buffer_load_dwordx4 v3, s[52:55], s{19+i//4} offen offset:{1024*(i%4)} sc1 lds")
        vm.add(f"h{j}", hi - lo)
    hdma(0)
    vm.wait("h0", upto=T0N); a("s_barrier")
    stamp(a, 11)
    hdma(1, 0, 3)
    vm.wait("h0"); a("s_barrier")
    hdma(1, 3, 8)
    a("s_mul_i32 s5, s12, 28"); a("s_mul_i32 s6, s11, 7"); a("s_add_u32 s5, s5, s6"); a("s_lshl_b32 s22, s5, 7"); a(f"s_add_u32 s22, s22, {hex(F3)}")
    faddr(a)
    sv = (list(vm.q), list(freeA), dict(st), dict(where))
    a("s_cmp_eq_u32 s15, 3"); a("s_cbranch_scc1 m_spC")
    H2 = False
    for j in range(1, 8):
        if j == 1:
            if EARLY2: hdma(2, 0, EARLY2)
        else:
            if j == 2 and EARLY2 < 8: hdma(2, EARLY2, 8)
            if j + 1 < 8: hdma(j + 1)
            for k in range(W2SCH[j - 2]): w2step()
            while st["g"] < min(8, st["f"] - W2SCH[j - 2]): w2grab()
        if j == 7:
            while st["f"] < 12: w2step()
            while st["g"] < 8: w2grab()
            w2dma(12, SL[0]); w2dma(13, SL[0] + 4096)
        vm.wait(f"h{j}")
        if j == 7 and FPRE: fload(a, 0, FBN[0])
        a("s_barrier")
        if j == 7 and not FPRE: fload(a, 0, FBN[0])
        if j == 4: stamp(a, 12)
    a("s_branch m_spJ")
    a("m_spC:")
    fin = dict(where); finq = list(vm.q)
    vm.q[:] = sv[0]; freeA[:] = sv[1]; st.update(sv[2]); where.clear(); where.update(sv[3])
    vm.wait("h1"); a("s_barrier")
    while st["f"] < 12: w2step()
    while st["g"] < 8: w2grab()
    w2dma(12, SL[0]); w2dma(13, SL[0] + 4096)
    if SPS: a(f"s_sleep {SPS}")
    fload(a, 0, FBN[0])
    assert all(fin[k] == where[k] for k in range(8, 14)), (fin, where)
    n = 0
    while n < min(len(vm.q), len(finq)) and vm.q[-1-n] == finq[-1-n]: n += 1
    assert n >= 8
    vm.q[:] = vm.q[len(vm.q)-n:]
    a("m_spJ:")
    stamp(a, 16)
    return vm, where, w2read
def m_phaseD(a, vm, where, w2read):
    ACC = 16; RG = [80, 88, 224, 232, 240]
    def need(b):
        _lab[0] += 1; n = _lab[0]
        a(f"s_cmp_eq_u32 {fv(b)}, s{sNON}"); a(f"s_cbranch_scc1 nok{n}")
        a(f"v_mov_b32 v248, s{FO+b}")
        a("s_mov_b64 exec, 1")
        poll(a, [FLD], [250], sleep=FSLEEP)
        a("s_mov_b64 exec, -1")
        a(f"nok{n}:")
    a("s_waitcnt lgkmcnt(0)"); need(0)
    stamp(a, 17)
    slot = {}; free = list(RG); WL = {}
    def hload(i):
        b = free.pop(0); slot[i] = b
        a(f"buffer_load_dwordx4 {q4(b)}, v10, s[60:63], {so(i)} offen sc1")
        a(f"buffer_load_dwordx4 {q4(b+4)}, v11, s[60:63], {so(i)} offen sc1")
        vm.add(i, 2)
    nxt = 0
    def hnext():
        nonlocal nxt
        if nxt and nxt % 4 == 0:
            b = nxt // 4
            if b in FBN: a("s_waitcnt lgkmcnt(0)")
            need(b)
        if nxt % 4 == 4 - FLEAD and (nxt // 4 + 1) in FBN[:-1]: fload(a, nxt // 4 + 1, FBN[FBN.index(nxt // 4 + 1) + 1])
        hload(nxt); nxt += 1
    for i in range(5): hnext()
    a("s_lshl_b32 s6, s14, 1"); a("s_lshr_b32 s7, s11, 1"); a("s_add_u32 s19, s6, s7")
    a("s_lshl_b32 s20, s15, 6"); a("s_and_b32 s7, s11, 1"); a("s_lshl_b32 s7, s7, 5"); a("s_add_u32 s20, s20, s7")
    a("s_lshl_b32 s5, s19, 15"); a("s_lshl_b32 s7, s20, 6"); a("s_add_u32 s5, s5, s7"); a(f"s_add_u32 s5, s5, {hex(HB)}")
    srd(a, 52, "s5", 2048)
    a("s_lshl_b32 s21, s11, 11"); a(f"s_add_u32 s21, s21, {RES}")
    a("v_bfe_u32 v14, v2, 2, 2"); a("v_lshrrev_b32 v7, 5, v2"); a("v_lshl_add_u32 v14, v7, 4, v14"); a("v_lshlrev_b32 v14, 6, v14")
    a("v_bfe_u32 v7, v2, 4, 1"); a("v_lshl_add_u32 v14, v7, 5, v14"); a("v_and_b32 v7, 3, v2"); a("v_lshl_add_u32 v14, v7, 3, v14")
    a("v_add_u32 v14, s21, v14")
    a("s_lshl_b32 s5, s19, 8"); a(f"s_add_u32 s5, s5, {hex(R2G)}")
    a("v_and_b32 v15, 31, v2"); a("v_lshl_add_u32 v15, v15, 3, s5")
    a("s_lshl_b32 s5, s19, 15"); a("s_lshl_b32 s7, s20, 1"); a("s_add_u32 s5, s5, s7")
    a("v_and_b32 v4, 15, v2"); a("v_lshlrev_b32 v4, 10, v4"); a("v_lshrrev_b32 v7, 4, v2"); a("v_lshl_add_u32 v4, v7, 4, v4"); a("v_add_u32 v4, s5, v4")
    HR = W2R + 32; HP = W2R + 48; SR = W2R + 56
    for i in range(28):
        vm.wait(i)
        if i >= NREG: a(f"s_waitcnt lgkmcnt({4 if i + 1 < 28 else 0})")
        wb = W2R + 8 * i if i < NREG else WL[i]
        for j in range(4):
            c = f"v[{ACC+16*j}:{ACC+16*j+15}]"
            a(f"v_mfma_f32_32x32x16_bf16 {c}, {q4(wb+4*(j&1))}, {q4(slot[i]+4*(j>>1))}, {c if i else 0}")
        free.append(slot[i])
        if not (4 <= i < 8): free.append(wb)
        if i == B9AT:
            a("s_barrier")
            a("s_mov_b32 m0, s21")
            a("buffer_load_dwordx4 v3, s[52:55], 0 offen sc1 lds"); a("buffer_load_dwordx4 v3, s[52:55], 0 offen offset:1024 sc1 lds"); vm.add("r", 2)
            a(f"global_load_dwordx2 {pr(SR)}, v15, {sp(sWS)} sc1"); vm.add("g")
        if i + 2 >= NREG and i + 2 < 28:
            b = free.pop(0); WL[i + 2] = b; w2read(b, where[(i + 2) // 2], (i + 2) % 2)
        want = min(28, i + 1 + HDEP)
        while nxt < want and free:
            hnext()
        if i in (3, 8, 12, 16, 20, 24): stamp(a, {3: 13, 8: 14, 12: 15, 16: 18, 20: 26, 24: 27}[i])
    stamp(a, 19)
    vm.wait("g")
    for k in range(4): a(f"ds_read_b64_tr_b16 {pr(HP+2*k)}, v14 offset:{256*k}")
    for j in range(1, 4):
        a(f"s_xor_b32 s6, s11, {j}"); a("s_mul_i32 s6, s6, 12288"); a(f"s_add_u32 s6, s6, {RED}"); a("v_add_u32 v12, s6, v3")
        for q in range(4): a(f"ds_write_b128 v12, {q4(ACC+16*j+4*q)} offset:{4096*(j-1)+1024*q}")
    a("s_mul_i32 s6, s11, 12288"); a(f"s_add_u32 s6, s6, {RED}"); a("v_add_u32 v13, s6, v3")
    a("v_add_u32 v7, 16384, v4")
    check_or_poll(a, f"global_load_dwordx2 {pr(SR)}, v15, {sp(sWS)} sc1", SR + 1, sleep=1)
    a("s_waitcnt lgkmcnt(12)")
    for k in range(8): a(f"v_lshlrev_b32 v{HR+2*k}, 16, v{HP+k}"); a(f"v_and_b32 v{HR+2*k+1}, s4, v{HP+k}")
    a("s_waitcnt lgkmcnt(0)"); a("s_barrier")
    stamp(a, 20)
    O = ACC; P = 160
    for j in range(3):
        for q in range(4): a(f"ds_read_b128 {q4(P+16*j+4*q)}, v13 offset:{4096*j+1024*q}")
    for j in range(3):
        a(f"s_waitcnt lgkmcnt({4*(2-j)})")
        for p in range(8): a(f"v_pk_add_f32 {pr(O+2*p)}, {pr(O+2*p)}, {pr(P+16*j+2*p)}")
    for p in range(8): a(f"v_pk_fma_f32 {pr(O+2*p)}, {pr(O+2*p)}, {pr(SR)}, {pr(HR+2*p)} op_sel:[0,0,0] op_sel_hi:[1,0,1]")
    for p in range(8): a(f"v_cvt_pk_bf16_f32 v{80+p}, v{O+2*p}, v{O+2*p+1}")
    for p in range(4): a(f"v_permlane16_swap_b32 v{80+p}, v{84+p}")
    a(f"global_store_dwordx4 v4, {q4(80)}, {sp(sOUT)} {OUTFL}")
    a(f"global_store_dwordx4 v7, {q4(84)}, {sp(sOUT)} {OUTFL}")
    stamp(a, 21)
    a("s_or_b32 s5, s2, s11"); a("s_cmp_lg_u32 s5, 0"); a("s_cbranch_scc1 m_noep")
    a(f"s_mov_b32 s5, {hex(EPO)}"); flag_store(a, "s5", 8)
    a("m_noep:")

def x_entry(a):
    T = 16
    a("v_and_b32 v2, 63, v0")
    a("v_lshrrev_b32 v28, 5, v2"); a("v_and_b32 v29, 31, v2")
    a("v_lshlrev_b32 v3, 12, v28"); a("v_lshl_add_u32 v3, v29, 3, v3")
    a("s_lshl_b32 s6, s2, 13"); a("s_lshl_b32 s7, s11, 8"); a("s_add_u32 s7, s7, s6"); a("v_add_u32 v3, s7, v3")
    a("s_waitcnt lgkmcnt(0)")
    stamp(a, 23)
    for i in range(4): a(f"global_load_dwordx2 {pr(T+2*i)}, v3, {sp(sX)} offset:{1024*i} {NT}")
    epoch_load(a)
    a("s_lshl_b32 s5, s3, 2"); a(f"s_load_dword s23, {sp(sDSK)}, s5")
    a("s_barrier")
def x_addr(a):
    a("v_lshrrev_b32 v24, 1, v29"); a("v_lshlrev_b32 v24, 8, v24"); a("v_and_b32 v25, 1, v29"); a("v_lshl_add_u32 v24, v25, 5, v24"); a("v_lshl_add_u32 v24, v28, 4, v24")
    a("s_lshr_b32 s6, s2, 1"); a("s_lshl_b32 s6, s6, 14"); a("s_and_b32 s7, s2, 1"); a("s_lshl_b32 s7, s7, 6"); a("s_add_u32 s6, s6, s7")
    a("s_lshl_b32 s7, s11, 12"); a("s_add_u32 s6, s6, s7"); a(f"s_add_u32 s6, s6, {hex(XT)}"); a("v_add_u32 v24, s6, v24")
    a("v_bfe_u32 v25, v2, 2, 2"); a("v_bfe_u32 v26, v2, 4, 1"); a("v_lshl_add_u32 v25, v25, 1, v26"); a("v_lshl_add_u32 v25, v28, 3, v25")
    a("s_lshl_b32 s7, s11, 6"); a(f"s_add_u32 s7, s7, {MISC}"); a("v_lshl_add_u32 v25, v25, 2, s7")
    a("v_and_b32 v27, 3, v2"); a("v_lshlrev_b32 v27, 4, v27"); a(f"v_add_u32 v26, {MISC}, v27")
    a("s_lshl_b32 s6, s2, 6"); a(f"s_add_u32 s6, s6, {hex(G1)}"); a("v_add_u32 v27, s6, v27")
    a(f"v_mov_b32 v30, {CNT}"); a("v_mov_b32 v31, 1")
def h_xrole(a):
    T = 16; F = 48; R = 64
    a("s_waitcnt lgkmcnt(0)")
    epoch_mix(a)
    a("s_lshl_b32 s72, s23, 16"); a("s_mov_b32 s73, s72"); a("s_and_b32 s74, s23, 0xffff0000"); a("s_mov_b32 s75, s74")
    a(f"v_mov_b32 v79, s{sNON}")
    stamp(a, 25)
    a("s_waitcnt vmcnt(0)")
    stamp(a, 27)
    for x, y in ((1, 2), (3, 6), (2, 4), (5, 6)): a(f"v_swap_b32 v{T+x}, v{T+y}")
    for e in range(2): a(f"global_store_dwordx4 v24, {q4(T+4*e)}, {sp(sWS)} offset:{128*e} sc1")
    stamp(a, 1)
    if W3 == 3: warm3(a, W3F)
    for e in range(2):
        for r in range(4):
            o = R + 4 * (r >> 1) + (r & 1)
            a(f"v_dot2_f32_bf16 v{o}, v{T+4*e+r}, s21, {('v%d' % o) if e else 0}")
            a(f"v_dot2_f32_bf16 v{o+2}, v{T+4*e+r}, v{T+4*e+r}, {('v%d' % (o+2)) if e else 0}")
    for k in range(4): a(f"v_add_f32_dpp v{R+k}, v{R+k}, v{R+k} row_ror:8 row_mask:0xf bank_mask:0x3")
    for k in range(4): a(f"v_add_f32_dpp v{R+k}, v{R+4+k}, v{R+4+k} row_ror:8 row_mask:0xf bank_mask:0xc")
    for k in range(2): a(f"v_add_f32_dpp v{R+k}, v{R+k}, v{R+k} row_half_mirror row_mask:0xf bank_mask:0x5")
    for k in range(2): a(f"v_add_f32_dpp v{R+k}, v{R+2+k}, v{R+2+k} row_half_mirror row_mask:0xf bank_mask:0xa")
    a(f"v_permlane16_swap_b32 v{R}, v{R+1}"); a(f"v_add_f32 v{R}, v{R}, v{R+1}")
    for ctl in ("quad_perm:[1,0,3,2]", "quad_perm:[2,3,0,1]"): a(f"v_add_f32_dpp v{R}, v{R}, v{R} {ctl} {DPP}")
    a("s_mov_b32 exec_lo, 0x11111111"); a("s_mov_b32 exec_hi, 0x11111111")
    a(f"ds_write_b32 v25, v{R}")
    a("s_mov_b64 exec, 1")
    a("ds_add_u32 v30, v31")
    a("s_mov_b64 exec, -1")
    lds_spin(a, 30, 4, 4)
    for w in range(4): a(f"ds_read_b128 {q4(F+4*w)}, v26 offset:{64*w}")
    a("s_waitcnt lgkmcnt(0)")
    for k in range(2):
        a(f"v_pk_add_f32 {pr(F+2*k)}, {pr(F+2*k)}, {pr(F+4+2*k)}"); a(f"v_pk_add_f32 {pr(F+8+2*k)}, {pr(F+8+2*k)}, {pr(F+12+2*k)}")
    for k in range(2): a(f"v_pk_add_f32 {pr(F+2*k)}, {pr(F+2*k)}, {pr(F+8+2*k)}")
    b0 = Asm(); b1 = Asm()
    ln_final(b0, F, F + 2, 72, 76, 68); ln_final(b1, F + 1, F + 3, 73, 77, 70)
    for x, y in zip(b0.l, b1.l): a(x); a(y)
    a("v_rcp_f32 v76, v76"); a("v_rcp_f32 v77, v77")
    a("v_lshrrev_b32 v72, 16, v72"); a("v_or_b32 v78, v72, v73")
    stamp(a, 22)
    a(f"s_waitcnt vmcnt({(1 + W3F) if W3 == 3 else 0})")
    a("s_mov_b64 exec, 1")
    a("ds_add_rtn_u32 v4, v30, v31")
    a("s_waitcnt lgkmcnt(0)")
    a("v_readfirstlane_b32 s7, v4")
    a("s_mov_b64 exec, 0xf")
    a("s_cmp_lg_u32 s7, 7"); a("s_cbranch_scc1 x_nost")
    a(f"global_store_dwordx4 v27, v[76:79], {sp(sWS)} sc1")
    a("x_nost:")
    a("s_mov_b64 exec, -1")
    stamp(a, 2)
    if W3 == 4: warm3(a, W3F)
    if XPRE: a(f"s_sleep {XPRE}")
def w1_setup(a, sb, vb):
    a("s_lshl_b32 s5, s13, 7")
    for m, p in enumerate((sWG, sWU)):
        d = sb + 4 * m
        a(f"s_add_u32 s{d}, s{p}, s5"); a(f"s_addc_u32 s{d+1}, s{p+1}, 0")
        if m: a(f"s_sub_u32 s{d}, s{d}, 1024"); a(f"s_subb_u32 s{d+1}, s{d+1}, 0")
        a(f"s_and_b32 s{d+1}, s{d+1}, 0xffff")
        a(f"s_mov_b32 s{d+2}, {511*3584+128+1024*m}"); a(f"s_mov_b32 s{d+3}, 0x00020000")
    a("v_lshrrev_b32 v5, 3, v2"); a("v_mul_u32_u24 v5, 3584, v5"); a("v_bfe_u32 v6, v2, 4, 1"); a("v_lshlrev_b32 v6, 1, v6")
    a(f"v_and_b32 v{vb}, 7, v2"); a(f"v_xor_b32 v{vb}, v{vb}, v6"); a(f"v_xor_b32 v{vb+1}, 4, v{vb}")
    a(f"v_lshl_add_u32 v{vb}, v{vb}, 4, v5"); a(f"v_lshl_add_u32 v{vb+1}, v{vb+1}, 4, v5")
    a(f"v_add_u32 v{vb+2}, {28672-2048}, v{vb}"); a(f"v_add_u32 v{vb+3}, {28672-2048}, v{vb+1}")
    a("s_lshl_b32 s18, s11, 13"); a("s_mul_i32 s19, s11, 114688")
def w1_soff(a, dst, c):
    a(f"s_add_u32 s5, s34, {c}"); a("s_and_b32 s5, s5, 3"); a("s_mul_i32 s5, s5, 458752"); a(f"s_add_u32 s{dst}, s5, s19"); a(f"s_add_u32 s{dst+1}, s{dst}, 57344")
def w1_dma(a, sb, vb, so, base):
    for h in range(2):
        a(f"s_add_u32 m0, s18, {base+4096*h}")
        for i in range(4): a(f"buffer_load_dwordx4 v{vb+i}, s[{sb+4*(i&1)}:{sb+4*(i&1)+3}], s{so+h} offen offset:{1024*i} lds")
XF = 224; W1R = 96
def h_u(a):
    GL = 112; GR = 128; XR = 144; W = 160; UPK = 184; MM = 192; RR = 200
    x_addr(a)
    late_ids(a)
    a("v_lshlrev_b32 v3, 4, v2")
    w1_setup(a, 52, 242)
    a("v_bfe_u32 v5, v2, 2, 2"); a("v_lshrrev_b32 v6, 4, v2"); a("v_lshlrev_b32 v12, 10, v6"); a("v_lshl_add_u32 v12, v5, 7, v12")
    a("v_lshrrev_b32 v5, 1, v5"); a("v_and_b32 v6, 1, v6"); a("v_lshl_add_u32 v5, v6, 1, v5"); a("v_xor_b32 v5, s11, v5"); a("v_lshl_add_u32 v12, v5, 5, v12")
    a("v_and_b32 v5, 3, v2"); a("v_lshl_add_u32 v12, v5, 3, v12"); a("v_add_u32 v13, 65536, v12")
    a("s_mov_b32 s21, 0x3f803f80")
    for c in range(3): w1_soff(a, 64 + 2 * c, c)
    a("v_lshrrev_b32 v5, 2, v2"); a("v_lshrrev_b32 v6, 4, v2"); a("v_xor_b32 v5, v5, v6")
    a("v_and_b32 v6, 1, v5"); a("v_cmp_eq_u32 vcc, 0, v6"); a("v_mov_b32 v7, 0xbb00bb00"); a("v_cndmask_b32 v84, 0, v7, vcc")
    for i in range(1, 4): a(f"v_mov_b32 v{84+i}, v84")
    a("v_and_b32 v6, 1, v2"); a("v_lshlrev_b32 v6, 4, v6"); a("v_mov_b32 v7, 0x3f80"); a("v_lshlrev_b32 v7, v6, v7")
    a("v_and_b32 v5, 3, v5"); a("v_bfe_u32 v6, v2, 1, 1"); a("v_lshl_or_b32 v5, v5, 1, v6")
    a("v_cmp_eq_u32 vcc, 0, v5"); a("v_mov_b32 v88, 0"); a("v_mov_b32 v89, 0"); a("v_cndmask_b32 v90, 0, v7, vcc")
    a("v_cmp_eq_u32 vcc, 1, v5"); a("v_mov_b32 v92, 0"); a("v_mov_b32 v93, 0"); a("v_cndmask_b32 v91, 0, v7, vcc")
    a("v_bfe_u32 v5, v0, 3, 1"); a("v_xor_b32 v5, v5, v0"); a("v_lshlrev_b32 v5, 4, v5"); a(f"v_add_u32 v240, {YY}, v5")
    a("v_lshrrev_b32 v6, 2, v0"); a("v_lshlrev_b32 v6, 15, v6"); a("v_and_b32 v7, 3, v0"); a("v_lshl_add_u32 v6, v7, 4, v6")
    a("s_lshl_b32 s5, s3, 7"); a(f"s_add_u32 s5, s5, {hex(HB)}"); a("v_add_u32 v241, s5, v6")
    a("s_lshl_b32 s22, s11, 12"); a("s_lshl_b32 s5, s3, 4"); a("s_add_u32 s22, s22, s5"); a(f"s_add_u32 s22, s22, {hex(F2)}")
    a("s_lshl_b32 s5, s11, 12"); a("v_add_u32 v5, s5, v3")
    a(f"v_add_u32 v8, {YY}, v5"); a(f"s_add_u32 s5, s5, {YY}"); a("v_lshl_add_u32 v9, v2, 6, s5")
    if G1: a(f"v_add_u32 v5, {hex(G1)}, v5")
    a("v_lshrrev_b32 v6, 1, v0"); a("v_lshlrev_b32 v6, 14, v6"); a("v_and_b32 v7, 1, v0"); a("v_lshl_add_u32 v6, v7, 6, v6")
    a("s_lshr_b32 s5, s3, 2"); a("s_lshl_b32 s5, s5, 8"); a("s_and_b32 s6, s3, 1"); a("s_lshl_b32 s6, s6, 7"); a("s_add_u32 s5, s5, s6")
    a("s_and_b32 s6, s3, 2"); a("s_lshl_b32 s6, s6, 4"); a("s_add_u32 s5, s5, s6"); a(f"s_add_u32 s5, s5, {hex(XT)}"); a("v_add_u32 v6, s5, v6")
    a("v_lshlrev_b32 v15, 4, v0"); a(f"v_add_u32 v7, {UU+512}, v15")
    h_xrole(a)
    stamp(a, 3)
    poll(a, [f"global_load_dwordx4 {q4(GL+4*p)}, v5, {sp(sWS)} offset:{1024*p} sc1" for p in range(4)], [GL + 4 * p + 3 for p in range(4)], sleep=1, pre=P1PRE)
    stamp(a, 4)
    a(f"global_load_dwordx4 {q4(XR)}, v6, {sp(sWS)} sc1")
    a(f"global_load_dwordx4 {q4(XR+4)}, v6, {sp(sWS)} offset:16 sc1")
    for p in range(4): a(f"ds_write_b128 v8, {q4(GL+4*p)} offset:{1024*p}")
    for p in range(4): a(f"ds_read_b128 {q4(GR+4*p)}, v9 offset:{16*p}")
    a("s_waitcnt lgkmcnt(0)")
    for p in range(4):
        a(f"v_lshlrev_b32 v{MM+2*p}, 16, v{GR+4*p+2}"); a(f"v_and_b32 v{MM+2*p+1}, s4, v{GR+4*p+2}")
    for p in range(4): a(f"v_pk_mul_f32 {pr(MM+2*p)}, {pr(MM+2*p)}, {pr(GR+4*p)} neg_lo:[1,0] neg_hi:[1,0]")
    a("s_waitcnt vmcnt(0)")
    stamp(a, 5)
    for j in range(8):
        a(f"v_lshlrev_b32 v{XF+j}, 16, v{XR+j}"); a(f"v_and_b32 v{XF+8+j}, s4, v{XR+j}")
    cp = [(ch, p) for ch in range(2) for p in range(4)]
    for i, (ch, p) in enumerate(cp): a(f"v_pk_fma_f32 {pr(W+2*i)}, {pr(XF+8*ch+2*p)}, {pr(GR+4*p)}, {pr(MM+2*p)}")
    for i, (ch, p) in enumerate(cp):
        a(f"v_cvt_pk_bf16_f32 v{UPK+4*ch+3-p}, v{W+2*i+1}, v{W+2*i}")
        if p == 3: a(f"ds_write_b128 v7, {q4(UPK+4*ch)} offset:{UCH*ch}")
    a("s_waitcnt lgkmcnt(0)")
    stamp(a, 6)
    a("s_barrier")
    return [f"v_pk_fma_f32 {pr(XF+2*i)}, {pr(W+2*i)}, s[{72+2*ch}:{73+2*ch}], {pr(XF+2*i)}" for i, (ch, p) in enumerate(cp)]
def h_phaseB(a, deferred):
    vm = VM(a)
    a(f"s_setprio {BPRIO}")
    a("s_cmp_eq_u32 s15, 3"); a("s_cbranch_scc1 h_spB")
    for c in range(NPRE): w1_dma(a, 52, 242, 64 + 2 * c, SL[c])
    SM = 80
    def grab(c, slot):
        for ks in range(8):
            for h in range(2): a(f"ds_read_b64_tr_b16 {pr(W1R+32*c+4*ks+2*h)}, v{12+slot//2} offset:{(slot%2)*32768+4096*ks+512*h}")
    def sums(c):
        for k in range(8): a(f"v_mfma_f32_16x16x32_bf16 {q4(SM)}, v[84:87], {q4(W1R+32*c+4*k)}, {q4(SM) if (c or k) else 0}")
    stamp(a, 7)
    a("s_branch h_spJ")
    a("h_spB:")
    if WARM2: warm2(a)
    a("h_spJ:")
    for x in deferred: a(x)
    stamp(a, 9)
    a("s_setprio 2")
    a("s_barrier")
    stamp(a, 10)
    R = 16; U = 32
    for w in range(4): a(f"ds_read_b128 {q4(R+4*w)}, v240 offset:{4096*w}")
    for ch in range(2):
        a(f"s_waitcnt lgkmcnt({2*(1-ch)})")
        for hlf in range(2):
            for p in range(4):
                a(f"v_lshlrev_b32 v{U+8*hlf+2*p}, 16, v{R+8*ch+4*hlf+p}"); a(f"v_and_b32 v{U+8*hlf+2*p+1}, s4, v{R+8*ch+4*hlf+p}")
        for p in range(4): a(f"v_pk_add_f32 {pr(U+2*p)}, {pr(U+2*p)}, {pr(U+8+2*p)}")
        for p in range(4): a(f"v_pk_add_f32 {pr(U+2*p)}, {pr(U+2*p)}, {pr(XF+8*ch+2*p)}")
        for p in range(4): a(f"v_cvt_pk_bf16_f32 v{48+4*ch+p}, v{U+2*p}, v{U+2*p+1}")
        a(f"global_store_dwordx4 v241, {q4(48+4*ch)}, {sp(sWS)} offset:{64*ch} sc1"); vm.add("s")
    stamp(a, 11)
    if B3B: a("s_barrier")
    a("s_cmp_eq_u32 s15, 3"); a("s_cbranch_scc1 h_spare")
    a("s_waitcnt vmcnt(2)")
    a("s_barrier")
    grab(0, 0); grab(1, 1)
    a("s_waitcnt vmcnt(0)"); flag_store(a, "s22", 8); stamp(a, 12)
    if NPRE == 3:
        a("s_waitcnt lgkmcnt(15)"); grab(2, 2)
        sums(0)
        a("s_waitcnt lgkmcnt(0)")
        sums(1); sums(2)
    else:
        a("s_waitcnt lgkmcnt(0)")
        sums(0); sums(1)
    a("s_barrier")
    if NPRE == 2: grab(2, 2)
    grab(3, 3)
    h_addr(a, after=True)
    if NPRE == 2: a("s_waitcnt lgkmcnt(15)"); sums(2)
    for k in range(8):
        a(f"s_waitcnt lgkmcnt({14-2*k})")
        a(f"v_mfma_f32_16x16x32_bf16 {q4(SM)}, v[84:87], {q4(W1R+96+4*k)}, {q4(SM)}")
KORD = [8 * (n & 3) + (n >> 2) for n in range(32)]
def h_addr(a, after=False):
    a("v_bfe_u32 v6, v2, 2, 2"); a("v_lshrrev_b32 v8, 5, v2"); a("v_lshl_add_u32 v6, v8, 3, v6"); a("v_lshlrev_b32 v6, 6, v6")
    a("v_bfe_u32 v7, v2, 4, 1"); a("v_lshl_add_u32 v6, v7, 5, v6"); a("v_and_b32 v7, 3, v2"); a("v_lshl_add_u32 v12, v7, 3, v6")
    a("v_add_u32 v13, 65536, v12")
def h_phaseC(a):
    cen = []
    pre = Asm()
    pre("s_lshl_b32 s5, s12, 2"); pre("s_mul_i32 s5, s5, 112"); pre("s_lshl_b32 s6, s13, 2"); pre("s_add_u32 s5, s5, s6"); pre("s_add_u32 s5, s5, s11")
    pre("s_lshl_b32 s5, s5, 11"); pre(f"s_add_u32 s5, s5, {hex(HF)}"); srd(pre, 60, "s5", 0 if os.environ.get('NOST') else 4 * 229376)
    pre("s_mul_i32 s22, s12, 28"); pre("s_add_u32 s22, s22, s13")
    pre("s_lshl_b32 s22, s22, 7"); pre(f"s_add_u32 s22, s22, {hex(F3)}")
    pre("v_mov_b32 v5, s22"); pre(f"v_mov_b32 v6, s{sNON}")
    pre(f"v_mov_b32 v14, {SL[1]}"); pre("s_lshl_b32 s5, s11, 2"); pre("v_add_u32 v15, s5, v14")
    DB = 16; LAGC = 2
    a("s_nop 7")
    for n in range(32 + LAGC):
        if n < 32:
            d = DB + 8 * (n % 4); w = W1R + 4 * KORD[n]
            a(f"v_mfma_f32_16x16x32_bf16 {q4(d)}, v[90:93], {q4(w)}, v[80:83]")
        if n >= LAGC:
            d2 = DB + 8 * ((n - LAGC) % 4); w2 = W1R + 4 * KORD[n - LAGC]
            for j in range(2): a(f"v_cvt_pk_bf16_f32 v{w2+j}, v{d2+2*j}, v{d2+2*j+1}")
        if n < 32: a(f"v_mfma_f32_16x16x32_bf16 {q4(d+4)}, v[88:91], {q4(w)}, v[80:83]")
        if n >= LAGC:
            for j in range(2, 4): a(f"v_cvt_pk_bf16_f32 v{w2+j}, v{d2+2*j}, v{d2+2*j+1}")
        if n < len(pre.l): a(pre.l[n])
    assert len(pre.l) <= 32
    stamp(a, 13)
    ACC = [16, 32]; BF = 48; NB = 8; PK = 80; LEAD = HLEAD
    def acc(i): return f"v[{ACC[i]}:{ACC[i]+15}]"
    def bread(g):
        j, n = divmod(g, 32); sl = (j + 1) % 3; r = BF + 4 * (g % NB)
        for h in range(2): a(f"ds_read_b64_tr_b16 {pr(r+2*h)}, v{12+sl//2} offset:{(sl%2)*32768+1024*KORD[n]+256*h}")
    def epi(ai):
        b = ACC[ai]; L = []
        for q in range(4): L.append(f"v_mul_f32 v{b+2*q}, v{b+2*q}, v{b+8+2*q}\nv_mul_f32 v{b+2*q+1}, v{b+2*q+1}, v{b+9+2*q}")
        for q in range(0, 4, 2): L.append(f"v_cvt_pk_bf16_f32 v{PK+4*ai+q}, v{b+2*q}, v{b+2*q+1}\nv_cvt_pk_bf16_f32 v{PK+4*ai+q+1}, v{b+2*q+2}, v{b+2*q+3}")
        if ai == 0: L.append("s_bfe_u32 s5, s49, 0x20001\ns_mul_i32 s5, s5, 229376\ns_lshr_b32 s49, s49, 8")
        else: L.append(f"buffer_store_dwordx4 {q4(PK)}, v3, s[60:63], s5 offen sc1\nbuffer_store_dwordx4 {q4(PK+4)}, v3, s[60:63], s5 offen offset:1024 sc1")
        return L
    a("s_barrier")
    stamp(a, 14)
    BARN = 32 - BLEAD
    avail = 4 * T0N; rd = 0
    while rd < LEAD: bread(rd); rd += 1
    for g in range(256):
        j, n = divmod(g, 32)
        bar = (g == 4 * T0N - BLEAD) or (n == BARN and j < 7)
        if bar:
            key = 20 if g == 4 * T0N - BLEAD else ([1, 3, 5, 7, 9, 11, 22][j])
            assert rd == avail
            if g != 4 * T0N - BLEAD: a("s_waitcnt vmcnt(0) lgkmcnt(0)" if j in (3, 5) else "s_waitcnt lgkmcnt(0)")
            if key and os.environ.get("BST"): stamp(a, key)
            a("s_barrier")
            if key and os.environ.get("BST"): stamp(a, key + 1)
            avail = 32 if g < 4 * T0N else avail + 32
        a(f"s_waitcnt lgkmcnt({2*(rd-g-1)})")
        a(f"v_mfma_f32_32x32x16_bf16 {acc(j&1)}, {q4(W1R+4*KORD[n])}, {q4(BF+4*(g%NB))}, {acc(j&1) if n else 0}")
        for k in range(2):
            if rd < min(avail, g + 1 + LEAD): bread(rd); rd += 1
        if j == 0 and cen:
            k = -(-12 * CLATE // (30 - CLATE))
            for x in cen[:k]: a(x)
            del cen[:k]
        if j and 2 <= n < 8: a(epi((j - 1) & 1)[n - 2])
        if j and n == STN: a(epi((j - 1) & 1)[6])
        if j == 7 and n == FLAGA:
            a("s_waitcnt vmcnt(0)")
            a("s_mov_b64 exec, 1"); a("ds_write_b32 v15, v6 offset:16"); a("ds_read_b128 v[8:11], v14 offset:16"); a("s_mov_b64 exec, -1")
        if j == 7 and n == FLAGA + LEAD + 1:
            a("s_mov_b64 exec, 1")
            for k in range(4): a(f"v_cmpx_eq_u32 vcc, v6, v{8+k}")
            a("s_cbranch_execz hfa")
            a(f"global_store_dword v5, v6, {sp(sWS)} sc1")
            a("hfa:")
            a("s_mov_b64 exec, -1")
            a("v_add_u32 v5, 0x8000, v5")
        if j in (3, 5) and n == BARN:
            _lab[0] += 1
            a(f"s_cmp_lg_u32 s11, 0"); a(f"s_cbranch_scc1 hf{_lab[0]}")
            a("s_mov_b64 exec, 1"); a(f"global_store_dword v5, v6, {sp(sWS)} sc1"); a("s_mov_b64 exec, -1")
            a(f"hf{_lab[0]}:")
            a("v_add_u32 v5, 0x8000, v5")
        if n == 31 and j in (0, 3) and not os.environ.get('BST'): stamp(a, 15 if j == 0 else 16)
    stamp(a, 17)
    for x in epi(1): a(x)
    a("s_waitcnt vmcnt(0)")
    a("s_mov_b64 exec, 1")
    a("ds_write_b32 v15, v6"); a("ds_read_b128 v[8:11], v14"); a("s_waitcnt lgkmcnt(0)")
    for k in range(4): a(f"v_cmpx_eq_u32 vcc, v6, v{8+k}")
    a("s_cbranch_execz hfl")
    a(f"global_store_dword v5, v6, {sp(sWS)} sc1")
    a("hfl:")
    a("s_mov_b64 exec, -1")
    stamp(a, 18)
def h_var(a):
    a("s_barrier")
    a("s_waitcnt vmcnt(0)"); flag_store(a, "s22", 8)
    a("s_cmp_ge_u32 s11, 2"); a("s_cbranch_scc1 k_done")
    h_addr(a)
    a("s_barrier"); a("s_barrier"); a("s_barrier")
    a("s_cmp_eq_u32 s11, 0"); a("s_cbranch_scc1 v_a")
    a("s_barrier")
    a("v_a:")
    a("s_lshl_b32 s5, s11, 15"); a(f"s_add_u32 s5, s5, {SL[1]}"); a("v_add_u32 v12, s5, v12")
    for n in range(32):
        for h in range(2): a(f"ds_read_b64_tr_b16 {pr(W1R+4*n+2*h)}, v12 offset:{1024*n+256*h}")
    a("s_waitcnt lgkmcnt(0)")
    a("s_cmp_lg_u32 s11, 0"); a("s_cbranch_scc1 v_b")
    a("s_barrier")
    a("v_b:")
    for k in range(128):
        a(f"v_dot2_f32_bf16 v{16+k%2}, v{W1R+k}, s21, {('v%d' % (16+k%2)) if k >= 2 else 0}")
        a(f"v_dot2_f32_bf16 v{18+k%2}, v{W1R+k}, v{W1R+k}, {('v%d' % (18+k%2)) if k >= 2 else 0}")
    a("v_add_f32 v16, v16, v17"); a("v_add_f32 v18, v18, v19"); a("v_mov_b32 v17, v16"); a("v_mov_b32 v19, v18")
    a("v_permlane32_swap_b32 v16, v17"); a("v_permlane32_swap_b32 v18, v19"); a("v_add_f32 v16, v16, v17"); a("v_add_f32 v18, v18, v19")
    ln_final(a, 16, 18, 20, 22, 24)
    a("v_mul_f32 v22, v22, v22"); a("v_rcp_f32 v22, v22"); a(f"v_mov_b32 v23, s{sNON}")
    a("s_lshl_b32 s5, s14, 1"); a("s_add_u32 s5, s5, s11"); a("s_lshl_b32 s5, s5, 8"); a(f"s_add_u32 s5, s5, {hex(R2G)}")
    a("v_and_b32 v5, 31, v2"); a("v_lshl_add_u32 v5, v5, 3, s5")
    a("s_mov_b32 exec_hi, 0")
    a(f"global_store_dwordx2 v5, v[22:23], {sp(sWS)} sc1")

W1FL = os.environ.get("W1FL", "sc1"); NT = os.environ.get("NT", ""); W1DLY = int(os.environ.get("W1DLY", 0))
CPF = int(os.environ.get("CPF", 1))
XPRE = int(os.environ.get("XPRE", 19)); IDLEPRE = int(os.environ.get("IDLEPRE", 52)); W2B = int(os.environ.get("W2B", 5))
W2SCH = [int(c) for c in os.environ.get("W2SCH", "112222")]; ORDER = int(os.environ.get("ORDER", 2)); B9AT = int(os.environ.get("B9AT", 20)); FSLEEP = int(os.environ.get("FSLEEP", 2)); BLEAD = int(os.environ.get("BLEAD", 4)); HLEAD = int(os.environ.get("HLEAD", 7)); FBN = [int(c) for c in os.environ.get("FBN", "357")]; CLATE = int(os.environ.get("CLATE", 0)); B3B = int(os.environ.get("B3B", 1)); T0N = int(os.environ.get("T0N", 3)); SPS = int(os.environ.get("SPS", 60)); FPRE = int(os.environ.get("FPRE", 0)); FLEAD = int(os.environ.get("FLEAD", 3)); NPRE = int(os.environ.get("NPRE", 3)); W3 = int(os.environ.get("W3", 4)); W3F = int(os.environ.get("W3F", 0)); BSW = int(os.environ.get("BSW", 0)); TCH = int(os.environ.get("TCH", 0)); TCHP = int(os.environ.get("TCHP", 1)); XST = int(os.environ.get("XST", 1)); EARLY2 = int(os.environ.get("EARLY2", 8)); STN = int(os.environ.get("STN", 8)); EPK = int(os.environ.get("EPK", 0)); BPRIO = int(os.environ.get("BPRIO", 3)); WDLY = int(os.environ.get("WDLY", 8)); B3AT = int(os.environ.get("B3AT", 2)); FLAG1ST = int(os.environ.get("FLAG1ST", 1))
WARM = int(os.environ.get("WARM", 1)); WARM2 = int(os.environ.get("WARM2", 1)); WNT = os.environ.get("WNT", ""); MAP3 = int(os.environ.get("MAP3", 0)); DNT = os.environ.get("DNT", "")
DSGAP = int(os.environ.get("DSGAP", 5)); FLAGA = int(os.environ.get("FLAGA", 6))
P1PRE = int(os.environ.get("P1PRE", 0)); P2PRE = int(os.environ.get("P2PRE", 8)); P3PRE = int(os.environ.get("P3PRE", 0))
W2PRE = int(os.environ.get("W2PRE", 2)); HDEP = int(os.environ.get("HDEP", 5)); OUTFL = os.environ.get("OUTFL", "")

PORD = [[[(c + 1 + i) & 3 for i in range(4)] for c in range(4)], None, [[2, 3, 1, 0], [2, 3, 0, 1], [0, 1, 3, 2], [0, 1, 2, 3]]][ORDER]
def kernel():
    a = Asm()
    a("s_cmp_ge_u32 s2, 256"); a("s_cbranch_scc1 k_done")
    if PROF:
        a("v_mov_b32 v255, 0")
        a("s_memrealtime s[100:101]"); a("s_waitcnt lgkmcnt(0)"); a("v_writelane_b32 v255, s100, 30")
        stamp(a, 0)
    a("s_load_dwordx16 s[16:31], s[0:1], 0")
    a("s_load_dwordx16 s[32:47], s[0:1], 64")
    if CPF:
        a("s_getpc_b64 s[90:91]")
        a("k_pc:")
        a("s_bfe_u32 s5, s2, 0x30003"); a("s_mul_i32 s5, s5, 5"); a("s_lshr_b32 s5, s5, 3"); a("s_lshl_b32 s5, s5, 13")
        a("v_lshrrev_b32 v1, 3, v0"); a("v_lshl_add_u32 v1, v1, 7, s5")
        a("v_min_u32 v1, k_end-k_pc-4, v1")
        a("global_load_dword v254, v1, s[90:91]")
    a("v_lshrrev_b32 v1, 6, v0")
    a("v_readfirstlane_b32 s10, v1")
    a("v_and_b32 v0, 255, v0")
    common_ids(a)
    a("s_and_b32 s11, s10, 3")
    a("s_cmp_ge_u32 s10, 4"); a("s_cbranch_scc1 e_h")
    m_entry(a)
    a("s_branch m_main")
    a("e_h:")
    a("s_setprio 2")
    x_entry(a)
    h_phaseB(a, h_u(a))
    h_phaseC(a)
    stamp_out(a)
    a("s_endpgm")
    a("m_main:")
    m_kgen(a); m_conv(a)
    m_phaseD(a, *m_phaseC(a))
    stamp_out(a)
    a("s_endpgm")
    a("h_spare:")
    h_var(a)
    a("k_done:")
    a("s_endpgm")
    a("k_end:")
    return a
def probe_kernel():
    w, st, nwg, mode, K = PROBE
    a = Asm()
    a("s_cmp_ge_u32 s2, 1"); a("s_cbranch_scc1 pr_done")
    a("s_load_dwordx2 s[46:47], s[0:1], 120")
    a("v_lshlrev_b32 v1, 10, v0"); a(f"v_add_u32 v1, {hex(PBUF)}, v1")
    a("s_waitcnt lgkmcnt(0)")
    n = nwg // 32
    for i in range(8):
        a(f"global_load_dword v{8+i}, v1, s[46:47]");
        if i < n: a(f"global_load_dword v{16+i}, v1, s[46:47] offset:{w*128+st*4}")
        a("v_add_u32 v1, 32768, v1")
    a("s_waitcnt vmcnt(0)")
    for i in range(1, 8): a(f"v_min_u32 v8, v8, v{8+i}")
    a("s_mov_b32 s10, -1")
    for l in range(32): a(f"v_readlane_b32 s11, v8, {l}"); a("s_min_u32 s10, s10, s11")
    for i in range(n): a(f"v_subrev_u32 v{16+i}, s10, v{16+i}")
    for i in range(1, n): a(f"{'v_add_u32' if mode else 'v_max_u32'} v16, v16, v{16+i}")
    a("s_mov_b32 s12, 0")
    for l in range(32): a(f"v_readlane_b32 s11, v16, {l}"); a(f"{'s_add_u32' if mode else 's_max_u32'} s12, s12, s11")
    a(f"s_mul_i32 s12, s12, {K}")
    if mode: a(f"s_mul_hi_u32 s12, s12, {hex((1<<32)//nwg)}")
    a("s_min_u32 s12, s12, 200000")
    a("s_memrealtime s[14:15]"); a("s_waitcnt lgkmcnt(0)")
    a("pr_l:")
    a("s_memrealtime s[16:17]"); a("s_waitcnt lgkmcnt(0)"); a("s_sub_u32 s16, s16, s14"); a("s_cmp_lt_u32 s16, s12"); a("s_cbranch_scc1 pr_l")
    a("pr_done:"); a("s_endpgm")
    return a
if __name__ == "__main__":
    a = kernel()
    kn = NAME + "_kernel"
    if PROBE:
        s = f"; @launch kernel={kn} grid=(256,1,1) block=(512,1,1) lds={LDS_TOTAL}\n; @launch kernel=probe_kernel grid=(1,1,1) block=(32,1,1) lds=0\n"
        s += '.amdgcn_target "amdgcn-amd-amdhsa--gfx950"\n.text\n' + head(kn) + a.text(True) + head("probe_kernel") + probe_kernel().text() + '.section .rodata,"a"\n' + kd(kn, 256) + kd("probe_kernel", 32)
    else:
        s = f"; @launch grid=(256,1,1) block=(512,1,1) lds={LDS_TOTAL}\n"
        s += '.amdgcn_target "amdgcn-amd-amdhsa--gfx950"\n.text\n' + head(kn) + a.text(True) + '.section .rodata,"a"\n' + kd(kn, 256)
    open(sys.argv[1] if len(sys.argv) > 1 else "f.s", "w").write(s)
```

```python
import sys, os, struct
from asmlib import *
NAME = "sequential_preLN__ssm_conv_s4__glu_gated_bilinear__prompt"
PROF = bool(os.environ.get("PROF"))
PROBE = [int(x) for x in os.environ["PROBE"].split(",")] if os.environ.get("PROBE") else None
G1 = 0x0; F2 = 0x4000; R2G = 0x8000; EPO = 0xC000; F3 = 0x20000
XT = 0x100000; HB = 0x300000; HF = 0x500000
PBUF = 0x2000000
sX, sARE, sAIM, sBRE, sBIM, sCRE, sCIM, sLDT, sDSK, sWG, sWU, sWD, sOUT, sDBG, sWS = \
    16, 18, 20, 22, 24, 26, 28, 30, 32, 36, 38, 40, 42, 44, 46
sNON = 48
SL = [0, 32768, 65536, 98304]; RING = 131072; RD = 7; MISC = 159744; LDS_TOTAL = 163840
CSTR = 11 * 512 + 32; TCHN = 8 * CSTR; TAB = 0; TOE = SL[3]; TCP = 4160; UU = TOE + 8 * TCP; UCH = 4608; YY = UU + 2 * UCH
assert YY + 16384 <= MISC and 2 * TCHN <= SL[3]
CNT = MISC + 4032
RES = SL[1]; RED = SL[1] + 8192; UP = 131072
DPP = "row_mask:0xf bank_mask:0xf"
SPIN = 1 << 16
def sp(b): return f"s[{b}:{b+1}]"
def pr(b): return f"v[{b}:{b+1}]"
def q4(b): return f"v[{b}:{b+3}]"
def f2u(x): return "0x%08x" % struct.unpack("<I", struct.pack("<f", x))[0]
def wsptr(a, dst, off):
    a(f"s_add_u32 s{dst}, s{sWS}, {hex(off) if isinstance(off, int) else off}"); a(f"s_addc_u32 s{dst+1}, s{sWS+1}, 0")
def srd(a, d, off, size):
    wsptr(a, d, off)
    a(f"s_and_b32 s{d+1}, s{d+1}, 0xffff"); a(f"s_mov_b32 s{d+2}, {hex(size)}"); a(f"s_mov_b32 s{d+3}, 0x00020000")
_st = {}
def stamp(a, i):
    if PROF:
        if PROBE and i not in (0, 29, PROBE[1]): return
        a(("s_memrealtime" if (PROBE or os.environ.get("RT")) else "s_memtime") + " s[100:101]"); a("s_waitcnt lgkmcnt(0)"); a(f"v_writelane_b32 v255, s100, {i}")
def stamp_out(a):
    if not PROF: return
    a("s_waitcnt vmcnt(0)")
    stamp(a, 29)
    a("s_memrealtime s[100:101]"); a("s_waitcnt lgkmcnt(0)"); a("v_writelane_b32 v255, s100, 31")
    a("s_lshl_b32 s3, s2, 3"); a("s_add_u32 s3, s3, s10"); a("s_lshl_b32 s3, s3, 7"); a(f"s_add_u32 s3, s3, {hex(PBUF)}")
    a("v_mbcnt_lo_u32_b32 v1, -1, 0"); a("v_lshl_add_u32 v1, v1, 2, s3")
    a("s_mov_b32 exec_hi, 0")
    a(f"global_store_dword v1, v255, {sp(sWS)}")
_lab = [0]
def poll(a, loads, checks, sleep=2, pre=0):
    _lab[0] += 1; n = _lab[0]
    a("s_mov_b64 s[98:99], exec")
    a("s_mov_b32 s97, 0")
    if pre: a(f"s_sleep {pre}")
    a(f"poll{n}:")
    for x in loads: a(x)
    a("s_add_u32 s97, s97, 1")
    a("s_waitcnt vmcnt(0)")
    if len(checks) == 1:
        a(f"v_cmp_ne_u32 vcc, s{sNON}, v{checks[0]}")
    else:
        a(f"v_cmp_ne_u32 vcc, s{sNON}, v{checks[0]}")
        for c in checks[1:]:
            a(f"v_cmp_ne_u32 s[94:95], s{sNON}, v{c}"); a("s_nop 0"); a("s_or_b64 vcc, vcc, s[94:95]")
    a("s_and_b64 exec, exec, vcc")
    a(f"s_cbranch_execz pollx{n}")
    a(f"s_cmp_ge_u32 s97, {SPIN}"); a(f"s_cbranch_scc1 pollx{n}")
    if sleep: a(f"s_sleep {sleep}")
    a(f"s_branch poll{n}")
    a(f"pollx{n}:")
    a("s_mov_b64 exec, s[98:99]")
def epoch_load(a): a(f"s_load_dword s{sNON}, {sp(sWS)}, {hex(EPO)}")
def epoch_mix(a):
    a(f"s_mul_i32 s{sNON}, s{sNON}, 0x9e3779b1"); a(f"s_add_u32 s{sNON}, s{sNON}, 0x7f4a7c15")
def lds_spin(a, vaddr, vt, target, off=0):
    _lab[0] += 1; n = _lab[0]
    a("s_mov_b32 s97, 0")
    a(f"lsp{n}:")
    a(f"ds_read_b32 v{vt}, v{vaddr} offset:{off}")
    a("s_add_u32 s97, s97, 1")
    a("s_waitcnt lgkmcnt(0)")
    a(f"v_readfirstlane_b32 s96, v{vt}")
    a(f"s_cmp_ge_u32 s97, {SPIN*8}"); a(f"s_cbranch_scc1 lsx{n}")
    a(f"s_cmp_lt_u32 s96, {target}"); a(f"s_cbranch_scc1 lsp{n}")
    a(f"lsx{n}:")
def check_or_poll(a, load, reg, sleep=2):
    _lab[0] += 1; n = _lab[0]
    a(f"v_cmp_ne_u32 vcc, s{sNON}, v{reg}")
    a(f"s_cbranch_vccz cok{n}")
    poll(a, [load], [reg], sleep=sleep)
    a(f"cok{n}:")
def flag_store(a, soff, vt):
    a(f"v_mov_b32 v{vt}, {soff}"); a(f"v_mov_b32 v{vt+1}, s{sNON}")
    a("s_mov_b64 exec, 1")
    a(f"global_store_dword v{vt}, v{vt+1}, {sp(sWS)} sc1")
    a("s_mov_b64 exec, -1")
def ln_final(a, S, Q, M, SD, T):
    a(f"v_mul_f32 v{T}, {f2u(1/512)}, v{S}")
    a(f"v_mul_f32 v{T+1}, {f2u(1/512)}, v{Q}")
    a(f"v_fma_f32 v{T+1}, -v{T}, v{T}, v{T+1}")
    a(f"v_max_f32 v{T+1}, 0, v{T+1}")
    a(f"v_cvt_pk_bf16_f32 v{T}, v{T}, v{T+1}")
    a(f"v_lshlrev_b32 v{M}, 16, v{T}")
    a(f"v_and_b32 v{T+1}, 0xffff0000, v{T}")
    a(f"v_add_f32 v{T+1}, {f2u(1e-5)}, v{T+1}")
    a(f"v_cvt_pk_bf16_f32 v{T+1}, v{T+1}, v{T+1}")
    a(f"v_lshlrev_b32 v{T+1}, 16, v{T+1}")
    a(f"v_sqrt_f32 v{T+1}, v{T+1}")
    a(f"v_cvt_pk_bf16_f32 v{T+1}, v{T+1}, v{T+1}")
    a(f"v_lshlrev_b32 v{SD}, 16, v{T+1}")
def cmul_batch(a, jobs):
    for d, x, y in jobs: a(f"v_pk_mul_f32 {pr(d)}, {pr(x)}, {pr(y)} op_sel:[0,0] op_sel_hi:[1,0]")
    for d, x, y in jobs: a(f"v_pk_fma_f32 {pr(d)}, {pr(x)}, {pr(y)}, {pr(d)} op_sel:[1,1,0] op_sel_hi:[0,1,1] neg_lo:[1,0,0]")

def common_ids(a):
    a("s_and_b32 s14, s2, 7"); a("s_lshl_b32 s3, s14, 5"); a("s_lshr_b32 s5, s2, 3"); a("s_add_u32 s3, s3, s5")
    a("s_mov_b32 s4, 0xffff0000")
def late_ids(a):
    a("s_and_b32 s50, s2, 3")
    a("s_lshr_b32 s15, s2, 5")
    a("s_bfe_u32 s34, s2, 0x20003")
    a("s_and_b32 s12, s2, 4"); a("s_add_u32 s12, s12, s34")
    a("s_mul_i32 s13, s50, 7"); a("s_add_u32 s13, s13, s15")
    a("s_mov_b32 s49, s15")
    a("s_and_b32 s5, s15, 3"); a("s_cmp_eq_u32 s5, 3"); a("s_cselect_b32 s5, 4, 0"); a("s_xor_b32 s15, s15, s5")
    a("s_and_b32 s49, s49, 3")
    def order(lst): return hex(sum(t << (4 * i) for i, t in enumerate(lst)))
    tab = [order([t for q in PORD[c] for t in (2 * q, 2 * q + 1)]) for c in range(4)]
    a("s_cmp_eq_u32 s49, 1"); a(f"s_mov_b32 s5, {tab[0]}"); a(f"s_cselect_b32 s5, {tab[1]}, s5")
    a("s_cmp_eq_u32 s49, 2"); a(f"s_cselect_b32 s5, {tab[2]}, s5")
    a("s_cmp_eq_u32 s49, 3"); a(f"s_cselect_b32 s49, {tab[3]}, s5")
    a("s_mul_i32 s5, s50, 0x22222222"); a("s_add_u32 s5, s5, 0x10101010")
    a("s_cmp_eq_u32 s15, 3"); a("s_cselect_b32 s49, s5, s49"); a("s_cselect_b32 s13, 0, s13")
    a("s_lshl_b32 s14, s12, 2"); a("s_add_u32 s14, s14, s50")

PR = 8; WA = 240
def m_entry(a):
    a("s_lshl_b32 s5, s3, 9")
    a("v_lshl_add_u32 v2, v0, 1, s5")
    a("s_lshl_b32 s5, s3, 2")
    for i in range(6): a(f"v_mov_b32 v{PR+i}, 0")
    a(f"v_mov_b32 v6, {CNT}"); a(f"ds_write_b128 v6, {q4(PR)}")
    a("s_waitcnt lgkmcnt(0)")
    stamp(a, 23)
    for i, p in enumerate((sARE, sAIM, sBRE, sBIM, sCRE, sCIM)):
        a(f"global_load_short_d16_hi v{PR+i}, v2, {sp(p)} {NT}")
    a(f"s_load_dword s6, {sp(sLDT)}, s5")
    epoch_load(a)
    a("s_barrier")
def m_kgen(a):
    a("v_lshrrev_b32 v6, 5, v0"); a(f"v_mul_u32_u24 v6, {UCH}, v6"); a("v_and_b32 v7, 31, v0")
    a("v_lshl_add_u32 v6, v7, 4, v6"); a(f"v_add_u32 v6, {UU}, v6")
    a("v_bfe_u32 v7, v0, 1, 3"); a(f"v_mul_u32_u24 v7, {TCP}, v7"); a("v_and_b32 v40, 1, v0")
    a("v_lshl_add_u32 v7, v40, 4, v7"); a(f"v_add_u32 v7, {TOE}, v7")
    a("v_cmp_gt_u32 vcc, 64, v0")
    for i in range(4): a(f"v_mov_b32 v{36+i}, 0")
    a("v_cndmask_b32 v6, v7, v6, vcc")
    a("ds_write_b128 v6, v[36:39]")
    late_ids(a)
    if W3 == 1: warm3(a, W3F)
    a("s_lshr_b32 s7, s10, 1")
    a(f"s_mul_i32 s8, s7, {TCHN}")
    a("v_and_b32 v7, 127, v0"); a(f"v_lshl_add_u32 v{WA}, v7, 2, s8")
    for c in range(1, 8): a(f"v_add_u32 v{WA+c}, {c*CSTR}, v{WA}")
    a("v_and_b32 v2, 15, v0"); a("v_bfe_u32 v3, v0, 4, 2")
    a(f"s_mul_i32 s9, s7, {4*TCP}"); a(f"s_add_u32 s9, s9, {TOE}")
    a("v_lshl_add_u32 v4, v3, 4, s8")
    def adr(dst, cls, idx):
        a(f"v_mul_u32_u24 v{dst}, {CSTR}, v{cls}"); a(f"v_lshl_add_u32 v{dst}, v{idx}, 9, v{dst}"); a(f"v_add_u32 v{dst}, v{dst}, v4")
    a("v_and_b32 v26, 7, v2"); a("v_lshrrev_b32 v15, 3, v2"); adr(16, 26, 15)
    a("v_and_b32 v6, 3, v2"); a("v_bfe_u32 v7, v2, 2, 1")
    a("v_lshl_add_u32 v20, v2, 5, s9")
    a("v_lshl_add_u32 v21, v3, 9, v20"); a("v_add_u32 v21, 2048, v21")
    a("v_lshrrev_b32 v22, 1, v3"); a("v_lshl_add_u32 v20, v22, 9, v20")
    a("v_and_b32 v22, 1, v3"); a("v_lshl_add_u32 v20, v22, 4, v20")
    a("s_bitcmp1_b32 s10, 0"); a("s_cbranch_scc1 m_adrY")
    a("v_lshl_add_u32 v26, v7, 3, v6")
    a("v_subrev_u32 v27, 1, v6"); a("v_max_i32 v27, 0, v27"); a("v_lshl_add_u32 v27, v7, 2, v27")
    a("v_cmp_eq_u32 vcc, 1, v15")
    a("v_lshlrev_b32 v28, 1, v15"); a("v_sub_u32 v28, 4, v28")
    a("v_cndmask_b32 v26, v26, v27, vcc")
    for t in range(3):
        a("v_and_b32 v27, 3, v26"); a("v_lshl_add_u32 v27, v15, 2, v27"); a("v_lshrrev_b32 v29, 2, v26"); a("v_add_u32 v29, 2, v29")
        adr(17 + t, 27, 29)
        if t < 2: a("v_add_u32 v26, v26, v28")
    a("s_branch m_adrJ")
    a("m_adrY:")
    a("v_lshl_add_u32 v26, v7, 1, v6")
    a("v_and_b32 v27, 3, v26"); a("v_lshl_add_u32 v27, v15, 2, v27")
    a("v_lshrrev_b32 v29, 2, v26"); a("v_lshlrev_b32 v28, 1, v15"); a("v_sub_u32 v29, v29, v28"); a("v_add_u32 v29, 7, v29")
    adr(17, 27, 29)
    a("v_lshl_add_u32 v27, v15, 2, v6"); a("v_sub_u32 v29, v7, v28"); a("v_add_u32 v29, 9, v29")
    adr(18, 27, 29)
    a("v_add_u32 v20, 1024, v20")
    a("m_adrJ:")
    a("v_add_u32 v4, 1, v2")
    a("v_and_b32 v5, 3, v4"); a(f"v_mul_u32_u24 v5, {TCP}, v5")
    a("v_lshrrev_b32 v4, 2, v4"); a("v_lshl_add_u32 v5, v4, 3, v5")
    a("v_lshlrev_b32 v4, 4, v3"); a("v_sub_u32 v5, v5, v4")
    a("s_and_b32 s8, s10, 1"); a("s_lshl_b32 s8, s8, 8")
    a("s_add_u32 s9, s9, s8"); a("s_add_u32 s9, s9, 48")
    a("v_add_u32 v23, s9, v5")
    a(f"s_mul_i32 s9, s7, {UCH}"); a(f"s_add_u32 s9, s9, {UU+480-192}"); a("s_sub_u32 s9, s9, s8")
    a("v_lshl_add_u32 v24, v2, 5, v4"); a("v_add_u32 v24, s9, v24")
    a("v_lshrrev_b32 v4, 1, v3"); a("v_bfe_u32 v5, v2, 2, 1"); a("v_xor_b32 v4, v4, v5"); a("v_lshl_add_u32 v4, v2, 1, v4")
    a("v_and_b32 v5, 1, v3"); a("v_lshlrev_b32 v5, 3, v5"); a("v_lshl_add_u32 v25, v4, 4, v5")
    a("s_lshl_b32 s8, s10, 12"); a(f"s_add_u32 s8, s8, {YY}"); a("v_add_u32 v25, s8, v25")
    stamp(a, 24)
    a("s_waitcnt lgkmcnt(0)")
    a("s_lshl_b32 s8, s6, 16"); a("s_and_b32 s9, s6, 0xffff0000")
    a("s_cmp_ge_u32 s10, 2"); a("s_cselect_b32 s8, s9, s8")
    a(f"v_mov_b32 v7, {f2u(1.4426950408889634)}")
    a("v_mul_f32 v40, s8, v7")
    a("v_exp_f32 v40, v40")
    a("v_cvt_pk_bf16_f32 v40, v40, v40")
    a("v_lshlrev_b32 v40, 16, v40")
    a(f"s_waitcnt vmcnt({(1 + W3F) if W3 == 1 else 0})")
    stamp(a, 1)
    if W3 == 2: warm3(a, W3F)
    a(f"v_mul_f32 v41, v40, v{PR}"); a(f"v_mul_f32 v42, v40, v{PR+1}")
    a("v_mul_f32 v41, v41, v7")
    a("v_mul_f32 v42, 0.15915494, v42")
    a(f"v_mul_f32 v{PR+2}, v40, v{PR+2}"); a(f"v_mul_f32 v{PR+3}, v40, v{PR+3}")
    S = {i: 44 + 2 * (i - 1) for i in range(1, 19)}
    E = {p: 80 + 2 * i for i, p in enumerate((32, 64, 128, 256, 512, 768, 1024, 1280, 1536, 1792))}
    C = {j: 100 + 2 * j for j in range(16)}
    T = 132; CV = 160
    V = []
    cvi = [0]
    def put(kind, k, reg):
        if kind == 'c': cls, idx = k & 7, k >> 3
        elif kind == 'r1': cls, idx = k & 3, 2 + (k >> 2)
        elif kind == 'r2': cls, idx = 4 + (k & 3), 2 + (k >> 2)
        elif kind == 'r4': cls, idx = 4 * k[0] + (k[1] & 3), 7 - 2 * k[0] + (k[1] >> 2)
        else: cls, idx = 4 * (k[0] >> 1) + k[1], 9 - 2 * (k[0] >> 1) + (k[0] & 1)
        t = CV + cvi[0]; cvi[0] += 1
        if reg is None: V.append(f"v_mov_b32 v{t}, 0x00003f80")
        else: V.append(f"v_cvt_pk_bf16_f32 v{t}, v{reg}, {'-' if kind == 'c' else ''}v{reg+1}")
        V.append(('put', cls, idx, t))
    class A2:
        def __call__(self, x): V.append(x)
    v = A2()
    D = [(S[1], 1.0), (S[16], 16.0), (E[256], 256.0)]
    for i, (d, p) in enumerate(D):
        if p == 1.0:
            v(f"v_exp_f32 v{T+3*i}, v41"); v(f"v_fract_f32 v{T+3*i+1}, v42")
        else:
            v(f"v_mul_f32 v{T+3*i}, {f2u(p)}, v41"); v(f"v_mul_f32 v{T+3*i+1}, {f2u(p)}, v42")
            v(f"v_exp_f32 v{T+3*i}, v{T+3*i}"); v(f"v_fract_f32 v{T+3*i+1}, v{T+3*i+1}")
    for i, (d, p) in enumerate(D):
        v(f"v_cos_f32 v{d}, v{T+3*i+1}"); v(f"v_sin_f32 v{d+1}, v{T+3*i+1}")
    cmul_batch(v, [(C[0], PR + 4, PR + 2)])
    put('r1', 0, None)
    for i, (d, p) in enumerate(D):
        v(f"v_mul_f32 v{d}, v{d}, v{T+3*i}"); v(f"v_mul_f32 v{d+1}, v{d+1}, v{T+3*i}")
    put('c', 0, C[0])
    cmul_batch(v, [(S[2], S[1], S[1]), (E[32], S[16], S[16]), (E[512], E[256], E[256]), (C[1], C[0], S[16]), (S[17], S[16], S[1])])
    put('r1', 1, S[1]); put('r1', 16, S[16]); put('r2', 0, E[256])
    cmul_batch(v, [(S[4], S[2], S[2]), (E[64], E[32], E[32]), (E[1024], E[512], E[512]), (S[3], S[2], S[1])])
    put('r1', 17, S[17]); put('r4', (0, 0), E[512]); put('r1', 2, S[2]); put('c', 1, C[1])
    cmul_batch(v, [(E[768], E[512], E[256]), (C[2], C[0], E[32]), (C[3], C[1], E[32]), (S[18], S[16], S[2])])
    put('r1', 4, S[4]); put('r8', (0, 0), E[1024]); put('r1', 3, S[3])
    cmul_batch(v, [(S[8], S[4], S[4]), (E[128], E[64], E[64]), (S[5], S[4], S[1]), (S[6], S[4], S[2])])
    put('r4', (1, 0), E[768]); put('c', 2, C[2]); put('c', 3, C[3]); put('r1', 18, S[18])
    jobs = [((S[7], S[4], S[3]), ('r1', 7)), ((E[1280], E[1024], E[256]), ('r8', (1, 0))), ((E[1536], E[1024], E[512]), ('r8', (2, 0))),
            ((E[1792], E[1024], E[768]), ('r8', (3, 0)))]
    jobs += [((C[4 + i], C[i], E[64]), ('c', 4 + i)) for i in range(4)]
    jobs += [((S[8 + i], S[8], S[i]), ('r1', 8 + i)) for i in range(1, 8)]
    jobs += [((T + 2 * (i - 1), E[256], S[2 * i]), ('r2', i)) for i in (1, 2, 3, 4, 8, 9)]
    jobs += [((C[8 + i], C[i], E[128]), ('c', 8 + i)) for i in range(8)]
    jobs += [((T + 2 * (i - 1), E[256], S[2 * i]), ('r2', i)) for i in (5, 6, 7)]
    jobs += [((C[4 * b + i - 1], E[512 + 256 * b], S[4 * i]), ('r4', (b, i))) for b in range(2) for i in range(1, 5)]
    jobs += [((C[8 + 2 * g + i - 1], E[1024 + 256 * g], S[8 * i]), ('r8', (g, i))) for g in range(4) for i in range(1, 3)]
    pend = [((S[8],), ('r1', 8)), ((S[5],), ('r1', 5)), ((S[6],), ('r1', 6))]
    for b0 in range(0, len(jobs), 4):
        bt = jobs[b0:b0+4]
        cmul_batch(v, [j[0] for j in bt])
        for j in pend: put(j[1][0], j[1][1], j[0][0])
        pend = bt
    for j in pend: put(j[1][0], j[1][1], j[0][0])
    assert cvi[0] == 67
    waiting = {}; ready = []; since = 0
    for x in V:
        if isinstance(x, tuple):
            _, cls, idx, t = x
            if cls in waiting:
                i0, t0 = waiting.pop(cls); ready.append(f"ds_write2st64_b32 v{WA+cls}, v{t0}, v{t} offset0:{2*i0} offset1:{2*idx}")
            else: waiting[cls] = (idx, t)
            continue
        a(x); since += 1
        if ready and since >= DSGAP:
            y = ready.pop(0); since = 0
            if not os.environ.get("NODS"): a(y)
    stamp(a, 25)
    for x in ready: a(x)
    for cls, (idx, t) in waiting.items(): a(f"ds_write_b32 v{WA+cls}, v{t} offset:{512*idx}")
    a(f"s_lshl_b32 s8, s7, 2"); a(f"s_add_u32 s8, s8, {CNT+4}"); a("v_mov_b32 v26, s8"); a("v_mov_b32 v27, 1")
    a("s_mov_b64 exec, 1"); a("ds_add_u32 v26, v27"); a("s_mov_b64 exec, -1")
    stamp(a, 2)
    lds_spin(a, 26, 27, 2)
    stamp(a, 3)
    BF = 44; AF = 76; ACC = 172
    def copies(vals, dst, off, tmp):
        for c in range(4):
            for p in range(4): a(f"v_cvt_pk_bf16_f32 v{tmp+4*c+p}, v{vals[c+2*p]}, v{vals[c+2*p+1]}")
            a(f"ds_write_b128 v{dst}, {q4(tmp+4*c)} offset:{32+c*TCP+off}")
    def genmm(nt):
        for ks in range(8):
            a(f"ds_read_b128 {q4(BF+4*ks)}, v16 offset:{64*ks}")
            for t in range(nt): a(f"ds_read_b128 {q4(AF+4*(nt*ks+t))}, v{17+t} offset:{64*ks}")
        for ks in range(8):
            a(f"s_waitcnt lgkmcnt({min(15, (nt+1)*(7-ks))})")
            for t in range(nt):
                a(f"v_mfma_f32_16x16x32_bf16 {q4(ACC+4*t)}, {q4(AF+4*(nt*ks+t))}, {q4(BF+4*ks)}, {q4(ACC+4*t) if ks else 0}")
    a("s_bitcmp1_b32 s10, 0"); a("s_cbranch_scc1 m_waveY")
    genmm(3)
    stamp(a, 4)
    a("s_nop 7")
    a("s_mov_b32 exec_lo, 0x80000000"); a("s_mov_b32 exec_hi, 0")
    a(f"v_mov_b32 v{ACC+9}, v{ACC+8}")
    a("s_mov_b32 exec_lo, 0"); a("s_mov_b32 exec_hi, 0x80000000")
    a(f"v_mov_b32 v{ACC+10}, v{ACC+9}")
    a("s_mov_b64 exec, -1")
    copies([ACC + i for i in range(11)], 20, 0, AF)
    a(f"v_cvt_pk_bf16_f32 v13, 0, v{ACC}")
    a("s_mov_b64 exec, 1")
    a(f"ds_write_b32 v20, v13 offset:{1*TCP+28}")
    a(f"ds_write_b32 v20, v{AF} offset:{2*TCP+28}")
    a(f"ds_write_b32 v20, v13 offset:{3*TCP+24}")
    a(f"ds_write_b32 v20, v{AF+4} offset:{3*TCP+28}")
    a("s_mov_b64 exec, -1")
    a("s_branch m_join")
    a("m_waveY:")
    genmm(2)
    stamp(a, 4)
    copies([ACC + i for i in (0, 0, 0, 1, 1, 1, 2, 2, 2, 2, 2)], 20, 0, AF)
    v8 = [ACC + 4 + i for i in [0] * 5 + [1] * 7 + [2] * 7]
    copies(v8[0:11], 21, 0, AF + 16); copies(v8[8:19], 21, 16, AF + 32)
    a("m_join:")
    m_setup(a)
    a("s_waitcnt lgkmcnt(0)")
    stamp(a, 5)
    a("s_barrier")
    stamp(a, 6)
def m_conv(a):
    Y = 32; FA = [64, 128]; FB = [96, 160]
    def reads(r):
        s = r & 1; L = []
        for p in range(8):
            L.append(f"ds_read_b64 {pr(FA[s]+4*p)}, v23 offset:{64*(8*p+r)}")
            L.append(f"ds_read_b64 {pr(FA[s]+4*p+2)}, v23 offset:{64*(8*p+r)+8}")
            L.append(f"ds_read_b128 {q4(FB[s]+4*p)}, v24 offset:{512*p+64*(3-r)}")
        return L
    for x in reads(0): a(x)
    order = sorted([(p, c2) for p in range(8) for c2 in range(8 - p)], key=lambda x: (max(x), x))
    for r in range(4):
        s = r & 1
        nxt = reads(r + 1) if r < 3 else []
        first = set(); have = -1; issued = 0
        if r > 0: a("s_waitcnt lgkmcnt(0)")
        for i, (p, c2) in enumerate(order):
            c = p + c2
            if r == 0 and max(p, c2) > have:
                have = max(p, c2)
                a(f"s_waitcnt lgkmcnt({min(15, 3*(7-have) + issued)})")
            src = q4(Y + 4 * c) if (r > 0 or c in first) else "0"
            first.add(c)
            a(f"v_mfma_f32_16x16x32_bf16 {q4(Y+4*c)}, {q4(FA[s]+4*p)}, {q4(FB[s]+4*c2)}, {src}")
            k = i - (8 if r == 0 else 0)
            if 0 <= k < len(nxt): a(nxt[k]); issued += 1
    stamp(a, 7)
    for c in (0, 1, 2, 3, 4, 5, 6, 7):
        a(f"v_cvt_pk_bf16_f32 v{64+2*c}, v{Y+4*c}, v{Y+4*c+1}"); a(f"v_cvt_pk_bf16_f32 v{65+2*c}, v{Y+4*c+2}, v{Y+4*c+3}")
        a(f"ds_write_b64 v25, {pr(64+2*c)} offset:{512*c}")
    a("s_waitcnt lgkmcnt(0)")
    a("s_barrier")
    stamp(a, 8)
SO = 64
def so(i): return f"s{SO+i}"
def warm3(a, full):
    a("s_lshl_b32 s5, s34, 2"); a("s_add_u32 s5, s5, s11"); a("s_mul_i32 s5, s5, 114688"); a("s_lshl_b32 s8, s13, 7"); a("s_add_u32 s5, s5, s8")
    a("v_and_b32 v253, 31, v0"); a("v_mul_u32_u24 v253, 3584, v253"); a("v_add_u32 v253, s5, v253")
    a("s_mov_b32 exec_hi, 0")
    if full:
        a(f"global_load_dword v252, v253, {sp(sWG)}"); a(f"global_load_dword v253, v253, {sp(sWU)}")
    else:
        a("s_bitcmp1_b32 s2, 2"); a(f"s_cselect_b32 s8, s{sWU}, s{sWG}"); a(f"s_cselect_b32 s9, s{sWU+1}, s{sWG+1}")
        a("global_load_dword v253, v253, s[8:9]")
    a("s_mov_b32 exec_hi, -1")
def tlbw(a):
    _lab[0] += 1; n = _lab[0]
    a("s_cmp_eq_u32 s11, 3"); a(f"s_cbranch_scc1 tl{n}")
    a(f"s_mov_b32 s8, s{sWS}"); a(f"s_mov_b32 s9, s{sWS+1}")
    a("s_cmp_eq_u32 s11, 1"); a(f"s_cselect_b32 s8, s{sWD}, s8"); a(f"s_cselect_b32 s9, s{sWD+1}, s9")
    a("s_cmp_eq_u32 s11, 2"); a(f"s_cselect_b32 s8, s{sOUT}, s8"); a(f"s_cselect_b32 s9, s{sOUT+1}, s9")
    a("s_cmp_eq_u32 s11, 0"); a(f"s_cselect_b32 s5, {TLBS}, {TLBS2}"); a(f"s_cselect_b32 s6, {hex(TLB0)}, 0"); a(f"s_cselect_b32 s7, {TLBN}, {TLBN2}")
    a("v_min_u32 v251, s7, v2"); a("v_lshlrev_b32 v251, s5, v251"); a("v_add_u32 v251, s6, v251")
    a("global_load_dword v251, v251, s[8:9]")
    a(f"tl{n}:")
def warm2(a):
    a("s_lshl_b32 s5, s14, 2"); a("s_add_u32 s5, s5, s11"); a("s_mul_i32 s5, s5, 14336")
    a("v_lshl_add_u32 v28, v2, 7, s5"); a(f"global_load_dword v252, v28, {sp(sWD)}")
    a("v_min_u32 v28, 47, v2"); a("s_add_u32 s5, s5, 8192"); a("v_lshl_add_u32 v28, v28, 7, s5"); a(f"global_load_dword v253, v28, {sp(sWD)}")
def m_setup2(a):
    epoch_mix(a)
    tb = []; ts = []
    for p in range(4):
        bl = [(b, st) for st in range(4) for b in range(7) if PORD[b & 3][st] == p]
        tb.append(hex(sum(b << (4 * i) for i, (b, st) in enumerate(bl)))); ts.append(hex(sum(st << (4 * i) for i, (b, st) in enumerate(bl))))
    a(f"s_mov_b32 s51, {tb[0]}"); a(f"s_mov_b32 s35, {ts[0]}")
    for p in range(1, 4):
        a(f"s_cmp_eq_u32 s50, {p}"); a(f"s_cselect_b32 s51, {tb[p]}, s51"); a(f"s_cselect_b32 s35, {ts[p]}, s35")
    if XST == 1: a("s_lshl_b32 s8, s34, 11")
    elif XST == 2: a("s_xor_b32 s8, s34, s15"); a("s_and_b32 s8, s8, 3"); a("s_lshl_b32 s8, s8, 11")
    else: a("s_and_b32 s8, s15, 3"); a("s_lshl_b32 s8, s8, 11")
    if BSW:
        a("s_and_b32 s5, s51, 15"); a("s_bfe_u32 s6, s51, 0x40004"); a("s_xor_b32 s5, s5, s6"); a("s_mul_i32 s5, s5, 0x11")
        a("s_cmp_ge_u32 s15, 4"); a("s_cselect_b32 s5, s5, 0"); a("s_xor_b32 s51, s51, s5")
    for b in range(7):
        a(f"s_bfe_u32 s6, s51, {hex(0x40000 + 4 * b)}"); a(f"s_lshl_b32 {so(4*b)}, s6, 13")
        if XST: a(f"s_or_b32 {so(4*b)}, {so(4*b)}, s8")
        for t in range(1, 4): a(f"s_xor_b32 {so(4*b+t)}, {so(4*b)}, {2048*t}")
    a("s_lshl_b32 s5, s12, 18"); a(f"s_add_u32 s5, s5, {hex(HB)}"); srd(a, 52, "s5", 0 if os.environ.get('NOH') else 0x40000)
    a("s_mul_i32 s5, s11, 458752"); a("s_lshl_b32 s6, s15, 7"); a("s_add_u32 s5, s5, s6")
    a(f"s_add_u32 s56, s{sWD}, s5"); a(f"s_addc_u32 s57, s{sWD+1}, 0"); a("s_and_b32 s57, s57, 0xffff"); a(f"s_mov_b32 s58, {0 if os.environ.get('NOW2') else 458752-896}"); a("s_mov_b32 s59, 0x00020000")
    a("s_mul_i32 s6, s14, 112"); a("s_mul_i32 s5, s11, 28"); a("s_add_u32 s6, s6, s5"); a("s_lshl_b32 s6, s6, 11"); a(f"s_add_u32 s6, s6, {hex(HF)}")
    srd(a, 60, "s6", 0 if os.environ.get('NOHL') else 57344)
    a("s_add_u32 s16, s11, s34"); a("s_and_b32 s16, s16, 3")
    a("s_lshl_b32 s17, s16, 13")
def m_setup(a):
    a("v_and_b32 v2, 63, v0")
    w1_setup(a, 24, 242); w1_soff(a, 20, 3); w1_soff(a, 22, 2)
NREG = 16; W2R = 96
class VM:
    def __init__(self, a): self.a = a; self.q = []
    def add(self, tag, n=1): self.q.extend([tag] * n); assert len(self.q) <= 63
    def wait(self, tag, upto=None):
        ks = [j for j, x in enumerate(self.q) if x == tag]
        if not ks: return
        k = ks[-1] if upto is None else ks[upto - 1]
        self.a(f"s_waitcnt vmcnt({len(self.q)-1-k})"); del self.q[:k+1]
    def drained(self): self.q = []
FLD = "global_load_dword v250, v248, s[46:47] sc1"
FO = 24; FV = 36
def fv(b): return f"s{FV+b}" if b < 6 else "s33"
def faddr(a):
    for b in range(7):
        a(f"s_bfe_u32 s5, s51, {hex(0x40000 + 4 * b)}"); a(f"s_bfe_u32 s6, s35, {hex(0x40000 + 4 * b)}")
        a("s_lshl_b32 s5, s5, 7"); a("s_lshl_b32 s6, s6, 15"); a("s_add_u32 s5, s5, s6"); a(f"s_add_u32 s{FO+b}, s5, s22")
def fload(a, lo, hi):
    for b in range(lo, hi): a(f"s_load_dword {fv(b)}, s[46:47], s{FO+b}")
def m_phaseC(a):
    vm = VM(a)
    m_setup2(a)
    if B3B: a("s_barrier")
    if NPRE == 2: a("s_barrier")
    a("s_cmp_eq_u32 s15, 3"); a("s_cbranch_scc1 m_now1")
    if NPRE == 2: w1_dma(a, 24, 242, 22, SL[2])
    w1_dma(a, 24, 242, 20, SL[3])
    a("m_now1:")
    if NPRE == 3: a("s_barrier")
    a("v_lshlrev_b32 v3, 4, v2")
    a("v_lshrrev_b32 v5, 3, v2"); a("v_bfe_u32 v6, v2, 4, 1"); a("v_lshlrev_b32 v6, 2, v6"); a("v_and_b32 v4, 7, v2"); a("v_xor_b32 v4, v4, v6")
    a("v_lshlrev_b32 v4, 4, v4"); a("v_lshl_add_u32 v4, v5, 10, v4")
    AREA = [UP, UP + 4096, SL[3], SL[3] + 4096]
    where = {}
    def w2dma(st, base):
        for i in range(2):
            a(f"s_lshl_b32 s5, {so(2*st+i)}, 3"); a(f"s_add_u32 m0, s18, {base+2048*i}"); a("s_add_u32 s6, s5, 7168")
            a(f"buffer_load_dwordx4 v4, s[56:59], s5 offen lds"); a(f"buffer_load_dwordx4 v4, s[56:59], s6 offen offset:1024 lds")
        vm.add(f"w{st}", 4); where[st] = base
    a("v_bfe_u32 v5, v2, 2, 2"); a("v_lshrrev_b32 v6, 5, v2"); a("v_lshl_add_u32 v6, v6, 2, v5"); a("v_lshlrev_b32 v8, 7, v6")
    a("v_lshrrev_b32 v5, 1, v5"); a("s_and_b32 s5, s11, 1"); a("v_xor_b32 v5, s5, v5"); a("v_lshl_add_u32 v8, v5, 6, v8")
    a("v_and_b32 v5, 1, v2"); a("v_lshl_add_u32 v8, v5, 5, v8"); a("v_bfe_u32 v5, v2, 4, 1"); a("v_lshl_add_u32 v8, v5, 4, v8")
    a("v_bfe_u32 v5, v2, 1, 1"); a("v_lshl_add_u32 v8, v5, 3, v8"); a("v_add_u32 v8, s18, v8")
    a("v_xor_b32 v9, 64, v8")
    a(f"v_add_u32 v12, {SL[3]}, v8"); a(f"v_add_u32 v13, {SL[3]}, v9")
    a("s_lshr_b32 s5, s11, 1"); a("s_lshl_b32 s5, s5, 10"); a("v_add_u32 v10, s5, v3"); a("v_xor_b32 v11, 1024, v10")
    a("s_lshr_b32 s5, s12, 1"); a("s_lshl_b32 s5, s5, 12"); a("s_lshl_b32 s6, s16, 10"); a("s_add_u32 s5, s5, s6"); a(f"s_add_u32 s5, s5, {hex(F2)}")
    a("v_add_u32 v5, s5, v3")
    def w2read(dst, base, i):
        hi = base >= SL[3]; o = base - (SL[3] if hi else 0) + 2048 * i
        for d in range(2):
            for h in range(2): a(f"ds_read_b64_tr_b16 {pr(dst+4*d+2*h)}, v{(12 if hi else 8)+d} offset:{o+1024*h}")
    freeA = list(AREA); st = {"f": 0, "g": 0}
    def w2grab():
        g = st["g"]; st["g"] += 1
        vm.wait(f"w{g}")
        for i in range(2): w2read(W2R + 8 * (2 * g + i), where[g], i)
        a("s_waitcnt lgkmcnt(0)")
        freeA.append(where[g])
    def w2step():
        if st["f"] >= 12: return
        if not freeA: w2grab()
        w2dma(st["f"], freeA.pop(0)); st["f"] += 1
    a("s_waitcnt vmcnt(0)")
    a("s_barrier")
    assert W2PRE <= 2
    def touch():
        a("s_and_b32 s5, s49, 7"); a("s_lshl_b32 s5, s5, 15"); a("s_add_u32 s5, s5, s17")
        if TCH == 1: a("v_lshlrev_b32 v7, 7, v2")
        elif TCH == 2:
            a("v_and_b32 v7, 31, v2"); a("v_lshlrev_b32 v7, 8, v7"); a("s_and_b32 s6, s15, 1"); a("s_lshl_b32 s6, s6, 7"); a("s_add_u32 s5, s5, s6")
        elif TCH == 3:
            a("v_and_b32 v7, 31, v2"); a("v_lshlrev_b32 v7, 8, v7"); a("v_lshrrev_b32 v6, 5, v2"); a("v_lshl_add_u32 v7, v6, 15, v7")
            a("s_and_b32 s6, s15, 1"); a("s_lshl_b32 s6, s6, 7"); a("s_add_u32 s5, s5, s6")
        a("buffer_load_dword v7, v7, s[52:55], s5 offen sc1"); vm.add("t")
    if TCH and TCHP == 0: touch()
    for k in range(W2PRE): w2step()
    if TCH and TCHP == 1: touch()
    stamp(a, 9)
    SK = int(os.environ.get("SKIP2", 0))
    if SK == 1: a("s_cmp_lt_u32 s12, 4"); a("s_cbranch_scc1 m_sk2")
    if SK == 2: a("s_cmp_lt_u32 s34, 2"); a("s_cbranch_scc1 m_sk2")
    if SK == 4: a("s_cmp_lt_u32 s34, 3"); a("s_cbranch_scc1 m_sk2")
    if SK == 3: a("s_branch m_sk2")
    poll(a, [f"global_load_dword v6, v5, {sp(sWS)} sc1"], [6], sleep=2, pre=P2PRE)
    a("m_sk2:")
    vm.drained()
    stamp(a, 10)
    def hdma(j, lo=0, hi=8):
        if lo == 0: a("s_and_b32 s19, s49, 7"); a("s_lshl_b32 s19, s19, 15"); a("s_add_u32 s19, s19, s17"); a("s_lshr_b32 s49, s49, 4"); a("s_add_u32 s20, s19, 4096")
        for i in range(lo, hi):
            if i == lo or i == 4: a(f"s_add_u32 m0, s18, {SL[(j+1)%3]+4096*(i//4)}")
            a(f"buffer_load_dwordx4 v3, s[52:55], s{19+i//4} offen offset:{1024*(i%4)} sc1 lds")
        vm.add(f"h{j}", hi - lo)
    hdma(0)
    vm.wait("h0", upto=T0N); a("s_barrier")
    stamp(a, 11)
    hdma(1, 0, 3)
    vm.wait("h0"); a("s_barrier")
    hdma(1, 3, 8)
    a("s_mul_i32 s5, s12, 28"); a("s_mul_i32 s6, s11, 7"); a("s_add_u32 s5, s5, s6"); a("s_lshl_b32 s22, s5, 7"); a(f"s_add_u32 s22, s22, {hex(F3)}")
    faddr(a)
    sv = (list(vm.q), list(freeA), dict(st), dict(where))
    a("s_cmp_eq_u32 s15, 3"); a("s_cbranch_scc1 m_spC")
    H2 = False
    for j in range(1, 8):
        if j == 1:
            if EARLY2: hdma(2, 0, EARLY2)
        else:
            if j == 2 and EARLY2 < 8: hdma(2, EARLY2, 8)
            if j + 1 < 8: hdma(j + 1)
            for k in range(W2SCH[j - 2]): w2step()
            while st["g"] < min(8, st["f"] - W2SCH[j - 2]): w2grab()
        if j == 7:
            while st["f"] < 12: w2step()
            while st["g"] < 8: w2grab()
            w2dma(12, SL[0]); w2dma(13, SL[0] + 4096)
        vm.wait(f"h{j}")
        if j == 7 and FPRE: fload(a, 0, FBN[0])
        a("s_barrier")
        if j == 7 and not FPRE: fload(a, 0, FBN[0])
        if j == 4: stamp(a, 12)
    a("s_branch m_spJ")
    a("m_spC:")
    fin = dict(where); finq = list(vm.q)
    vm.q[:] = sv[0]; freeA[:] = sv[1]; st.update(sv[2]); where.clear(); where.update(sv[3])
    vm.wait("h1"); a("s_barrier")
    while st["f"] < 12: w2step()
    while st["g"] < 8: w2grab()
    w2dma(12, SL[0]); w2dma(13, SL[0] + 4096)
    if SPS: a(f"s_sleep {SPS}")
    fload(a, 0, FBN[0])
    assert all(fin[k] == where[k] for k in range(8, 14)), (fin, where)
    n = 0
    while n < min(len(vm.q), len(finq)) and vm.q[-1-n] == finq[-1-n]: n += 1
    assert n >= 8
    vm.q[:] = vm.q[len(vm.q)-n:]
    a("m_spJ:")
    stamp(a, 16)
    return vm, where, w2read
def m_phaseD(a, vm, where, w2read):
    ACC = 16; RG = [80, 88, 224, 232, 240]
    def need(b):
        _lab[0] += 1; n = _lab[0]
        a(f"s_cmp_eq_u32 {fv(b)}, s{sNON}"); a(f"s_cbranch_scc1 nok{n}")
        a(f"v_mov_b32 v248, s{FO+b}")
        a("s_mov_b64 exec, 1")
        poll(a, [FLD], [250], sleep=FSLEEP)
        a("s_mov_b64 exec, -1")
        a(f"nok{n}:")
    a("s_waitcnt lgkmcnt(0)"); need(0)
    stamp(a, 17)
    slot = {}; free = list(RG); WL = {}
    def hload(i):
        b = free.pop(0); slot[i] = b
        a(f"buffer_load_dwordx4 {q4(b)}, v10, s[60:63], {so(i)} offen sc1")
        a(f"buffer_load_dwordx4 {q4(b+4)}, v11, s[60:63], {so(i)} offen sc1")
        vm.add(i, 2)
    nxt = 0
    def hnext():
        nonlocal nxt
        if nxt and nxt % 4 == 0:
            b = nxt // 4
            if b in FBN: a("s_waitcnt lgkmcnt(0)")
            need(b)
        if nxt % 4 == 4 - FLEAD and (nxt // 4 + 1) in FBN[:-1]: fload(a, nxt // 4 + 1, FBN[FBN.index(nxt // 4 + 1) + 1])
        hload(nxt); nxt += 1
    for i in range(5): hnext()
    a("s_lshl_b32 s6, s14, 1"); a("s_lshr_b32 s7, s11, 1"); a("s_add_u32 s19, s6, s7")
    a("s_lshl_b32 s20, s15, 6"); a("s_and_b32 s7, s11, 1"); a("s_lshl_b32 s7, s7, 5"); a("s_add_u32 s20, s20, s7")
    a("s_lshl_b32 s5, s19, 15"); a("s_lshl_b32 s7, s20, 6"); a("s_add_u32 s5, s5, s7"); a(f"s_add_u32 s5, s5, {hex(HB)}")
    srd(a, 52, "s5", 2048)
    a("s_lshl_b32 s21, s11, 11"); a(f"s_add_u32 s21, s21, {RES}")
    a("v_bfe_u32 v14, v2, 2, 2"); a("v_lshrrev_b32 v7, 5, v2"); a("v_lshl_add_u32 v14, v7, 4, v14"); a("v_lshlrev_b32 v14, 6, v14")
    a("v_bfe_u32 v7, v2, 4, 1"); a("v_lshl_add_u32 v14, v7, 5, v14"); a("v_and_b32 v7, 3, v2"); a("v_lshl_add_u32 v14, v7, 3, v14")
    a("v_add_u32 v14, s21, v14")
    a("s_lshl_b32 s5, s19, 8"); a(f"s_add_u32 s5, s5, {hex(R2G)}")
    a("v_and_b32 v15, 31, v2"); a("v_lshl_add_u32 v15, v15, 3, s5")
    a("s_lshl_b32 s5, s19, 15"); a("s_lshl_b32 s7, s20, 1"); a("s_add_u32 s5, s5, s7")
    a("v_and_b32 v4, 15, v2"); a("v_lshlrev_b32 v4, 10, v4"); a("v_lshrrev_b32 v7, 4, v2"); a("v_lshl_add_u32 v4, v7, 4, v4"); a("v_add_u32 v4, s5, v4")
    HR = W2R + 32; HP = W2R + 48; SR = W2R + 56
    for i in range(28):
        vm.wait(i)
        if i >= NREG: a(f"s_waitcnt lgkmcnt({4 if i + 1 < 28 else 0})")
        wb = W2R + 8 * i if i < NREG else WL[i]
        for j in range(4):
            c = f"v[{ACC+16*j}:{ACC+16*j+15}]"
            a(f"v_mfma_f32_32x32x16_bf16 {c}, {q4(wb+4*(j&1))}, {q4(slot[i]+4*(j>>1))}, {c if i else 0}")
        free.append(slot[i])
        if not (4 <= i < 8): free.append(wb)
        if i == B9AT:
            a("s_barrier")
            a("s_mov_b32 m0, s21")
            a("buffer_load_dwordx4 v3, s[52:55], 0 offen sc1 lds"); a("buffer_load_dwordx4 v3, s[52:55], 0 offen offset:1024 sc1 lds"); vm.add("r", 2)
            a(f"global_load_dwordx2 {pr(SR)}, v15, {sp(sWS)} sc1"); vm.add("g")
        if i + 2 >= NREG and i + 2 < 28:
            b = free.pop(0); WL[i + 2] = b; w2read(b, where[(i + 2) // 2], (i + 2) % 2)
        want = min(28, i + 1 + HDEP)
        while nxt < want and free:
            hnext()
        if i in (3, 8, 12, 16, 20, 24): stamp(a, {3: 13, 8: 14, 12: 15, 16: 18, 20: 26, 24: 27}[i])
    stamp(a, 19)
    vm.wait("g")
    for k in range(4): a(f"ds_read_b64_tr_b16 {pr(HP+2*k)}, v14 offset:{256*k}")
    for j in range(1, 4):
        a(f"s_xor_b32 s6, s11, {j}"); a("s_mul_i32 s6, s6, 12288"); a(f"s_add_u32 s6, s6, {RED}"); a("v_add_u32 v12, s6, v3")
        for q in range(4): a(f"ds_write_b128 v12, {q4(ACC+16*j+4*q)} offset:{4096*(j-1)+1024*q}")
    a("s_mul_i32 s6, s11, 12288"); a(f"s_add_u32 s6, s6, {RED}"); a("v_add_u32 v13, s6, v3")
    a("v_add_u32 v7, 16384, v4")
    check_or_poll(a, f"global_load_dwordx2 {pr(SR)}, v15, {sp(sWS)} sc1", SR + 1, sleep=1)
    a("s_waitcnt lgkmcnt(12)")
    for k in range(8): a(f"v_lshlrev_b32 v{HR+2*k}, 16, v{HP+k}"); a(f"v_and_b32 v{HR+2*k+1}, s4, v{HP+k}")
    a("s_waitcnt lgkmcnt(0)"); a("s_barrier")
    stamp(a, 20)
    O = ACC; P = 160
    for j in range(3):
        for q in range(4): a(f"ds_read_b128 {q4(P+16*j+4*q)}, v13 offset:{4096*j+1024*q}")
    for j in range(3):
        a(f"s_waitcnt lgkmcnt({4*(2-j)})")
        for p in range(8): a(f"v_pk_add_f32 {pr(O+2*p)}, {pr(O+2*p)}, {pr(P+16*j+2*p)}")
    for p in range(8): a(f"v_pk_fma_f32 {pr(O+2*p)}, {pr(O+2*p)}, {pr(SR)}, {pr(HR+2*p)} op_sel:[0,0,0] op_sel_hi:[1,0,1]")
    for p in range(8): a(f"v_cvt_pk_bf16_f32 v{80+p}, v{O+2*p}, v{O+2*p+1}")
    for p in range(4): a(f"v_permlane16_swap_b32 v{80+p}, v{84+p}")
    a(f"global_store_dwordx4 v4, {q4(80)}, {sp(sOUT)} {OUTFL}")
    a(f"global_store_dwordx4 v7, {q4(84)}, {sp(sOUT)} {OUTFL}")
    stamp(a, 21)
    a("s_or_b32 s5, s2, s11"); a("s_cmp_lg_u32 s5, 0"); a("s_cbranch_scc1 m_noep")
    a(f"s_mov_b32 s5, {hex(EPO)}"); flag_store(a, "s5", 8)
    a("m_noep:")

def x_entry(a):
    T = 16
    a("v_and_b32 v2, 63, v0")
    a("v_lshrrev_b32 v28, 5, v2"); a("v_and_b32 v29, 31, v2")
    a("v_lshlrev_b32 v3, 12, v28"); a("v_lshl_add_u32 v3, v29, 3, v3")
    a("s_lshl_b32 s6, s2, 13"); a("s_lshl_b32 s7, s11, 8"); a("s_add_u32 s7, s7, s6"); a("v_add_u32 v3, s7, v3")
    a("s_waitcnt lgkmcnt(0)")
    stamp(a, 23)
    for i in range(4): a(f"global_load_dwordx2 {pr(T+2*i)}, v3, {sp(sX)} offset:{1024*i} {NT}")
    epoch_load(a)
    a("s_lshl_b32 s5, s3, 2"); a(f"s_load_dword s23, {sp(sDSK)}, s5")
    a("s_barrier")
def x_addr(a):
    a("v_lshrrev_b32 v24, 1, v29"); a("v_lshlrev_b32 v24, 8, v24"); a("v_and_b32 v25, 1, v29"); a("v_lshl_add_u32 v24, v25, 5, v24"); a("v_lshl_add_u32 v24, v28, 4, v24")
    a("s_lshr_b32 s6, s2, 1"); a("s_lshl_b32 s6, s6, 14"); a("s_and_b32 s7, s2, 1"); a("s_lshl_b32 s7, s7, 6"); a("s_add_u32 s6, s6, s7")
    a("s_lshl_b32 s7, s11, 12"); a("s_add_u32 s6, s6, s7"); a(f"s_add_u32 s6, s6, {hex(XT)}"); a("v_add_u32 v24, s6, v24")
    a("v_bfe_u32 v25, v2, 2, 2"); a("v_bfe_u32 v26, v2, 4, 1"); a("v_lshl_add_u32 v25, v25, 1, v26"); a("v_lshl_add_u32 v25, v28, 3, v25")
    a("s_lshl_b32 s7, s11, 6"); a(f"s_add_u32 s7, s7, {MISC}"); a("v_lshl_add_u32 v25, v25, 2, s7")
    a("v_and_b32 v27, 3, v2"); a("v_lshlrev_b32 v27, 4, v27"); a(f"v_add_u32 v26, {MISC}, v27")
    a("s_lshl_b32 s6, s2, 6"); a(f"s_add_u32 s6, s6, {hex(G1)}"); a("v_add_u32 v27, s6, v27")
    a(f"v_mov_b32 v30, {CNT}"); a("v_mov_b32 v31, 1")
def h_xrole(a):
    T = 16; F = 48; R = 64
    a("s_waitcnt lgkmcnt(0)")
    epoch_mix(a)
    a("s_lshl_b32 s72, s23, 16"); a("s_mov_b32 s73, s72"); a("s_and_b32 s74, s23, 0xffff0000"); a("s_mov_b32 s75, s74")
    a(f"v_mov_b32 v79, s{sNON}")
    stamp(a, 25)
    a("s_waitcnt vmcnt(0)")
    stamp(a, 27)
    for x, y in ((1, 2), (3, 6), (2, 4), (5, 6)): a(f"v_swap_b32 v{T+x}, v{T+y}")
    for e in range(2): a(f"global_store_dwordx4 v24, {q4(T+4*e)}, {sp(sWS)} offset:{128*e} sc1")
    stamp(a, 1)
    if W3 == 3: warm3(a, W3F)
    for e in range(2):
        for r in range(4):
            o = R + 4 * (r >> 1) + (r & 1)
            a(f"v_dot2_f32_bf16 v{o}, v{T+4*e+r}, s21, {('v%d' % o) if e else 0}")
            a(f"v_dot2_f32_bf16 v{o+2}, v{T+4*e+r}, v{T+4*e+r}, {('v%d' % (o+2)) if e else 0}")
    for k in range(4): a(f"v_add_f32_dpp v{R+k}, v{R+k}, v{R+k} row_ror:8 row_mask:0xf bank_mask:0x3")
    for k in range(4): a(f"v_add_f32_dpp v{R+k}, v{R+4+k}, v{R+4+k} row_ror:8 row_mask:0xf bank_mask:0xc")
    for k in range(2): a(f"v_add_f32_dpp v{R+k}, v{R+k}, v{R+k} row_half_mirror row_mask:0xf bank_mask:0x5")
    for k in range(2): a(f"v_add_f32_dpp v{R+k}, v{R+2+k}, v{R+2+k} row_half_mirror row_mask:0xf bank_mask:0xa")
    a(f"v_permlane16_swap_b32 v{R}, v{R+1}"); a(f"v_add_f32 v{R}, v{R}, v{R+1}")
    for ctl in ("quad_perm:[1,0,3,2]", "quad_perm:[2,3,0,1]"): a(f"v_add_f32_dpp v{R}, v{R}, v{R} {ctl} {DPP}")
    a("s_mov_b32 exec_lo, 0x11111111"); a("s_mov_b32 exec_hi, 0x11111111")
    a(f"ds_write_b32 v25, v{R}")
    a("s_mov_b64 exec, 1")
    a("ds_add_u32 v30, v31")
    a("s_mov_b64 exec, -1")
    lds_spin(a, 30, 4, 4)
    for w in range(4): a(f"ds_read_b128 {q4(F+4*w)}, v26 offset:{64*w}")
    a("s_waitcnt lgkmcnt(0)")
    for k in range(2):
        a(f"v_pk_add_f32 {pr(F+2*k)}, {pr(F+2*k)}, {pr(F+4+2*k)}"); a(f"v_pk_add_f32 {pr(F+8+2*k)}, {pr(F+8+2*k)}, {pr(F+12+2*k)}")
    for k in range(2): a(f"v_pk_add_f32 {pr(F+2*k)}, {pr(F+2*k)}, {pr(F+8+2*k)}")
    b0 = Asm(); b1 = Asm()
    ln_final(b0, F, F + 2, 72, 76, 68); ln_final(b1, F + 1, F + 3, 73, 77, 70)
    for x, y in zip(b0.l, b1.l): a(x); a(y)
    a("v_rcp_f32 v76, v76"); a("v_rcp_f32 v77, v77")
    a("v_lshrrev_b32 v72, 16, v72"); a("v_or_b32 v78, v72, v73")
    stamp(a, 22)
    a(f"s_waitcnt vmcnt({(1 + W3F) if W3 == 3 else 0})")
    a("s_mov_b64 exec, 1")
    a("ds_add_rtn_u32 v4, v30, v31")
    a("s_waitcnt lgkmcnt(0)")
    a("v_readfirstlane_b32 s7, v4")
    a("s_mov_b64 exec, 0xf")
    a("s_cmp_lg_u32 s7, 7"); a("s_cbranch_scc1 x_nost")
    a(f"global_store_dwordx4 v27, v[76:79], {sp(sWS)} sc1")
    a("x_nost:")
    a("s_mov_b64 exec, -1")
    stamp(a, 2)
    if W3 == 4: warm3(a, W3F)
    if TLBW == 1: tlbw(a)
    if XPRE: a(f"s_sleep {XPRE}")
def w1_setup(a, sb, vb):
    a("s_lshl_b32 s5, s13, 7")
    for m, p in enumerate((sWG, sWU)):
        d = sb + 4 * m
        a(f"s_add_u32 s{d}, s{p}, s5"); a(f"s_addc_u32 s{d+1}, s{p+1}, 0")
        if m: a(f"s_sub_u32 s{d}, s{d}, 1024"); a(f"s_subb_u32 s{d+1}, s{d+1}, 0")
        a(f"s_and_b32 s{d+1}, s{d+1}, 0xffff")
        a(f"s_mov_b32 s{d+2}, {511*3584+128+1024*m}"); a(f"s_mov_b32 s{d+3}, 0x00020000")
    a("v_lshrrev_b32 v5, 3, v2"); a("v_mul_u32_u24 v5, 3584, v5"); a("v_bfe_u32 v6, v2, 4, 1"); a("v_lshlrev_b32 v6, 1, v6")
    a(f"v_and_b32 v{vb}, 7, v2"); a(f"v_xor_b32 v{vb}, v{vb}, v6"); a(f"v_xor_b32 v{vb+1}, 4, v{vb}")
    a(f"v_lshl_add_u32 v{vb}, v{vb}, 4, v5"); a(f"v_lshl_add_u32 v{vb+1}, v{vb+1}, 4, v5")
    a(f"v_add_u32 v{vb+2}, {28672-2048}, v{vb}"); a(f"v_add_u32 v{vb+3}, {28672-2048}, v{vb+1}")
    a("s_lshl_b32 s18, s11, 13"); a("s_mul_i32 s19, s11, 114688")
def w1_soff(a, dst, c):
    a(f"s_add_u32 s5, s34, {c}"); a("s_and_b32 s5, s5, 3"); a("s_mul_i32 s5, s5, 458752"); a(f"s_add_u32 s{dst}, s5, s19"); a(f"s_add_u32 s{dst+1}, s{dst}, 57344")
def w1_dma(a, sb, vb, so, base):
    for h in range(2):
        a(f"s_add_u32 m0, s18, {base+4096*h}")
        for i in range(4): a(f"buffer_load_dwordx4 v{vb+i}, s[{sb+4*(i&1)}:{sb+4*(i&1)+3}], s{so+h} offen offset:{1024*i} lds")
XF = 224; W1R = 96
def h_u(a):
    GL = 112; GR = 128; XR = 144; W = 160; UPK = 184; MM = 192; RR = 200
    x_addr(a)
    late_ids(a)
    a("v_lshlrev_b32 v3, 4, v2")
    w1_setup(a, 52, 242)
    a("v_bfe_u32 v5, v2, 2, 2"); a("v_lshrrev_b32 v6, 4, v2"); a("v_lshlrev_b32 v12, 10, v6"); a("v_lshl_add_u32 v12, v5, 7, v12")
    a("v_lshrrev_b32 v5, 1, v5"); a("v_and_b32 v6, 1, v6"); a("v_lshl_add_u32 v5, v6, 1, v5"); a("v_xor_b32 v5, s11, v5"); a("v_lshl_add_u32 v12, v5, 5, v12")
    a("v_and_b32 v5, 3, v2"); a("v_lshl_add_u32 v12, v5, 3, v12"); a("v_add_u32 v13, 65536, v12")
    a("s_mov_b32 s21, 0x3f803f80")
    for c in range(3): w1_soff(a, 64 + 2 * c, c)
    a("v_lshrrev_b32 v5, 2, v2"); a("v_lshrrev_b32 v6, 4, v2"); a("v_xor_b32 v5, v5, v6")
    a("v_and_b32 v6, 1, v5"); a("v_cmp_eq_u32 vcc, 0, v6"); a("v_mov_b32 v7, 0xbb00bb00"); a("v_cndmask_b32 v84, 0, v7, vcc")
    for i in range(1, 4): a(f"v_mov_b32 v{84+i}, v84")
    a("v_and_b32 v6, 1, v2"); a("v_lshlrev_b32 v6, 4, v6"); a("v_mov_b32 v7, 0x3f80"); a("v_lshlrev_b32 v7, v6, v7")
    a("v_and_b32 v5, 3, v5"); a("v_bfe_u32 v6, v2, 1, 1"); a("v_lshl_or_b32 v5, v5, 1, v6")
    a("v_cmp_eq_u32 vcc, 0, v5"); a("v_mov_b32 v88, 0"); a("v_mov_b32 v89, 0"); a("v_cndmask_b32 v90, 0, v7, vcc")
    a("v_cmp_eq_u32 vcc, 1, v5"); a("v_mov_b32 v92, 0"); a("v_mov_b32 v93, 0"); a("v_cndmask_b32 v91, 0, v7, vcc")
    a("v_bfe_u32 v5, v0, 3, 1"); a("v_xor_b32 v5, v5, v0"); a("v_lshlrev_b32 v5, 4, v5"); a(f"v_add_u32 v240, {YY}, v5")
    a("v_lshrrev_b32 v6, 2, v0"); a("v_lshlrev_b32 v6, 15, v6"); a("v_and_b32 v7, 3, v0"); a("v_lshl_add_u32 v6, v7, 4, v6")
    a("s_lshl_b32 s5, s3, 7"); a(f"s_add_u32 s5, s5, {hex(HB)}"); a("v_add_u32 v241, s5, v6")
    a("s_lshl_b32 s22, s11, 12"); a("s_lshl_b32 s5, s3, 4"); a("s_add_u32 s22, s22, s5"); a(f"s_add_u32 s22, s22, {hex(F2)}")
    a("s_lshl_b32 s5, s11, 12"); a("v_add_u32 v5, s5, v3")
    a(f"v_add_u32 v8, {YY}, v5"); a(f"s_add_u32 s5, s5, {YY}"); a("v_lshl_add_u32 v9, v2, 6, s5")
    if G1: a(f"v_add_u32 v5, {hex(G1)}, v5")
    a("v_lshrrev_b32 v6, 1, v0"); a("v_lshlrev_b32 v6, 14, v6"); a("v_and_b32 v7, 1, v0"); a("v_lshl_add_u32 v6, v7, 6, v6")
    a("s_lshr_b32 s5, s3, 2"); a("s_lshl_b32 s5, s5, 8"); a("s_and_b32 s6, s3, 1"); a("s_lshl_b32 s6, s6, 7"); a("s_add_u32 s5, s5, s6")
    a("s_and_b32 s6, s3, 2"); a("s_lshl_b32 s6, s6, 4"); a("s_add_u32 s5, s5, s6"); a(f"s_add_u32 s5, s5, {hex(XT)}"); a("v_add_u32 v6, s5, v6")
    a("v_lshlrev_b32 v15, 4, v0"); a(f"v_add_u32 v7, {UU+512}, v15")
    h_xrole(a)
    stamp(a, 3)
    poll(a, [f"global_load_dwordx4 {q4(GL+4*p)}, v5, {sp(sWS)} offset:{1024*p} sc1" for p in range(4)], [GL + 4 * p + 3 for p in range(4)], sleep=1, pre=P1PRE)
    stamp(a, 4)
    a(f"global_load_dwordx4 {q4(XR)}, v6, {sp(sWS)} sc1")
    a(f"global_load_dwordx4 {q4(XR+4)}, v6, {sp(sWS)} offset:16 sc1")
    for p in range(4): a(f"ds_write_b128 v8, {q4(GL+4*p)} offset:{1024*p}")
    for p in range(4): a(f"ds_read_b128 {q4(GR+4*p)}, v9 offset:{16*p}")
    a("s_waitcnt lgkmcnt(0)")
    for p in range(4):
        a(f"v_lshlrev_b32 v{MM+2*p}, 16, v{GR+4*p+2}"); a(f"v_and_b32 v{MM+2*p+1}, s4, v{GR+4*p+2}")
    for p in range(4): a(f"v_pk_mul_f32 {pr(MM+2*p)}, {pr(MM+2*p)}, {pr(GR+4*p)} neg_lo:[1,0] neg_hi:[1,0]")
    a("s_waitcnt vmcnt(0)")
    stamp(a, 5)
    for j in range(8):
        a(f"v_lshlrev_b32 v{XF+j}, 16, v{XR+j}"); a(f"v_and_b32 v{XF+8+j}, s4, v{XR+j}")
    cp = [(ch, p) for ch in range(2) for p in range(4)]
    for i, (ch, p) in enumerate(cp): a(f"v_pk_fma_f32 {pr(W+2*i)}, {pr(XF+8*ch+2*p)}, {pr(GR+4*p)}, {pr(MM+2*p)}")
    for i, (ch, p) in enumerate(cp):
        a(f"v_cvt_pk_bf16_f32 v{UPK+4*ch+3-p}, v{W+2*i+1}, v{W+2*i}")
        if p == 3: a(f"ds_write_b128 v7, {q4(UPK+4*ch)} offset:{UCH*ch}")
    a("s_waitcnt lgkmcnt(0)")
    stamp(a, 6)
    a("s_barrier")
    return [f"v_pk_fma_f32 {pr(XF+2*i)}, {pr(W+2*i)}, s[{72+2*ch}:{73+2*ch}], {pr(XF+2*i)}" for i, (ch, p) in enumerate(cp)]
def h_phaseB(a, deferred):
    vm = VM(a)
    a(f"s_setprio {BPRIO}")
    if TLBW == 3: tlbw(a)
    a("s_cmp_eq_u32 s15, 3"); a("s_cbranch_scc1 h_spB")
    for c in range(NPRE): w1_dma(a, 52, 242, 64 + 2 * c, SL[c])
    SM = 80
    def grab(c, slot):
        for ks in range(8):
            for h in range(2): a(f"ds_read_b64_tr_b16 {pr(W1R+32*c+4*ks+2*h)}, v{12+slot//2} offset:{(slot%2)*32768+4096*ks+512*h}")
    def sums(c):
        for k in range(8): a(f"v_mfma_f32_16x16x32_bf16 {q4(SM)}, v[84:87], {q4(W1R+32*c+4*k)}, {q4(SM) if (c or k) else 0}")
    stamp(a, 7)
    a("s_branch h_spJ")
    a("h_spB:")
    if WARM2: warm2(a)
    a("h_spJ:")
    if TLBW == 2: tlbw(a)
    for x in deferred: a(x)
    stamp(a, 9)
    a("s_setprio 2")
    a("s_barrier")
    stamp(a, 10)
    R = 16; U = 32
    for w in range(4): a(f"ds_read_b128 {q4(R+4*w)}, v240 offset:{4096*w}")
    for ch in range(2):
        a(f"s_waitcnt lgkmcnt({2*(1-ch)})")
        for hlf in range(2):
            for p in range(4):
                a(f"v_lshlrev_b32 v{U+8*hlf+2*p}, 16, v{R+8*ch+4*hlf+p}"); a(f"v_and_b32 v{U+8*hlf+2*p+1}, s4, v{R+8*ch+4*hlf+p}")
        for p in range(4): a(f"v_pk_add_f32 {pr(U+2*p)}, {pr(U+2*p)}, {pr(U+8+2*p)}")
        for p in range(4): a(f"v_pk_add_f32 {pr(U+2*p)}, {pr(U+2*p)}, {pr(XF+8*ch+2*p)}")
        for p in range(4): a(f"v_cvt_pk_bf16_f32 v{48+4*ch+p}, v{U+2*p}, v{U+2*p+1}")
        a(f"global_store_dwordx4 v241, {q4(48+4*ch)}, {sp(sWS)} offset:{64*ch} sc1"); vm.add("s")
    stamp(a, 11)
    if B3B: a("s_barrier")
    a("s_cmp_eq_u32 s15, 3"); a("s_cbranch_scc1 h_spare")
    a("s_waitcnt vmcnt(2)")
    a("s_barrier")
    grab(0, 0); grab(1, 1)
    a("s_waitcnt vmcnt(0)"); flag_store(a, "s22", 8); stamp(a, 12)
    if NPRE == 3:
        a("s_waitcnt lgkmcnt(15)"); grab(2, 2)
        sums(0)
        a("s_waitcnt lgkmcnt(0)")
        sums(1); sums(2)
    else:
        a("s_waitcnt lgkmcnt(0)")
        sums(0); sums(1)
    a("s_barrier")
    if NPRE == 2: grab(2, 2)
    grab(3, 3)
    h_addr(a, after=True)
    if NPRE == 2: a("s_waitcnt lgkmcnt(15)"); sums(2)
    for k in range(8):
        a(f"s_waitcnt lgkmcnt({14-2*k})")
        a(f"v_mfma_f32_16x16x32_bf16 {q4(SM)}, v[84:87], {q4(W1R+96+4*k)}, {q4(SM)}")
KORD = [8 * (n & 3) + (n >> 2) for n in range(32)]
def h_addr(a, after=False):
    a("v_bfe_u32 v6, v2, 2, 2"); a("v_lshrrev_b32 v8, 5, v2"); a("v_lshl_add_u32 v6, v8, 3, v6"); a("v_lshlrev_b32 v6, 6, v6")
    a("v_bfe_u32 v7, v2, 4, 1"); a("v_lshl_add_u32 v6, v7, 5, v6"); a("v_and_b32 v7, 3, v2"); a("v_lshl_add_u32 v12, v7, 3, v6")
    a("v_add_u32 v13, 65536, v12")
def h_phaseC(a):
    cen = []
    pre = Asm()
    pre("s_lshl_b32 s5, s12, 2"); pre("s_mul_i32 s5, s5, 112"); pre("s_lshl_b32 s6, s13, 2"); pre("s_add_u32 s5, s5, s6"); pre("s_add_u32 s5, s5, s11")
    pre("s_lshl_b32 s5, s5, 11"); pre(f"s_add_u32 s5, s5, {hex(HF)}"); srd(pre, 60, "s5", 0 if os.environ.get('NOST') else 4 * 229376)
    pre("s_mul_i32 s22, s12, 28"); pre("s_add_u32 s22, s22, s13")
    pre("s_lshl_b32 s22, s22, 7"); pre(f"s_add_u32 s22, s22, {hex(F3)}")
    pre("v_mov_b32 v5, s22"); pre(f"v_mov_b32 v6, s{sNON}")
    pre(f"v_mov_b32 v14, {SL[1]}"); pre("s_lshl_b32 s5, s11, 2"); pre("v_add_u32 v15, s5, v14")
    DB = 16; LAGC = 2
    a("s_nop 7")
    for n in range(32 + LAGC):
        if n < 32:
            d = DB + 8 * (n % 4); w = W1R + 4 * KORD[n]
            a(f"v_mfma_f32_16x16x32_bf16 {q4(d)}, v[90:93], {q4(w)}, v[80:83]")
        if n >= LAGC:
            d2 = DB + 8 * ((n - LAGC) % 4); w2 = W1R + 4 * KORD[n - LAGC]
            for j in range(2): a(f"v_cvt_pk_bf16_f32 v{w2+j}, v{d2+2*j}, v{d2+2*j+1}")
        if n < 32: a(f"v_mfma_f32_16x16x32_bf16 {q4(d+4)}, v[88:91], {q4(w)}, v[80:83]")
        if n >= LAGC:
            for j in range(2, 4): a(f"v_cvt_pk_bf16_f32 v{w2+j}, v{d2+2*j}, v{d2+2*j+1}")
        if n < len(pre.l): a(pre.l[n])
    assert len(pre.l) <= 32
    stamp(a, 13)
    ACC = [16, 32]; BF = 48; NB = 8; PK = 80; LEAD = HLEAD
    def acc(i): return f"v[{ACC[i]}:{ACC[i]+15}]"
    def bread(g):
        j, n = divmod(g, 32); sl = (j + 1) % 3; r = BF + 4 * (g % NB)
        for h in range(2): a(f"ds_read_b64_tr_b16 {pr(r+2*h)}, v{12+sl//2} offset:{(sl%2)*32768+1024*KORD[n]+256*h}")
    def epi(ai):
        b = ACC[ai]; L = []
        for q in range(4): L.append(f"v_mul_f32 v{b+2*q}, v{b+2*q}, v{b+8+2*q}\nv_mul_f32 v{b+2*q+1}, v{b+2*q+1}, v{b+9+2*q}")
        for q in range(0, 4, 2): L.append(f"v_cvt_pk_bf16_f32 v{PK+4*ai+q}, v{b+2*q}, v{b+2*q+1}\nv_cvt_pk_bf16_f32 v{PK+4*ai+q+1}, v{b+2*q+2}, v{b+2*q+3}")
        if ai == 0: L.append("s_bfe_u32 s5, s49, 0x20001\ns_mul_i32 s5, s5, 229376\ns_lshr_b32 s49, s49, 8")
        else: L.append(f"buffer_store_dwordx4 {q4(PK)}, v3, s[60:63], s5 offen sc1\nbuffer_store_dwordx4 {q4(PK+4)}, v3, s[60:63], s5 offen offset:1024 sc1")
        return L
    a("s_barrier")
    stamp(a, 14)
    BARN = 32 - BLEAD
    avail = 4 * T0N; rd = 0
    while rd < LEAD: bread(rd); rd += 1
    for g in range(256):
        j, n = divmod(g, 32)
        bar = (g == 4 * T0N - BLEAD) or (n == BARN and j < 7)
        if bar:
            key = 20 if g == 4 * T0N - BLEAD else ([1, 3, 5, 7, 9, 11, 22][j])
            assert rd == avail
            if g != 4 * T0N - BLEAD: a("s_waitcnt vmcnt(0) lgkmcnt(0)" if j in (3, 5) else "s_waitcnt lgkmcnt(0)")
            if key and os.environ.get("BST"): stamp(a, key)
            a("s_barrier")
            if key and os.environ.get("BST"): stamp(a, key + 1)
            avail = 32 if g < 4 * T0N else avail + 32
        a(f"s_waitcnt lgkmcnt({2*(rd-g-1)})")
        a(f"v_mfma_f32_32x32x16_bf16 {acc(j&1)}, {q4(W1R+4*KORD[n])}, {q4(BF+4*(g%NB))}, {acc(j&1) if n else 0}")
        for k in range(2):
            if rd < min(avail, g + 1 + LEAD): bread(rd); rd += 1
        if j == 0 and cen:
            k = -(-12 * CLATE // (30 - CLATE))
            for x in cen[:k]: a(x)
            del cen[:k]
        if j and 2 <= n < 8: a(epi((j - 1) & 1)[n - 2])
        if j and n == STN: a(epi((j - 1) & 1)[6])
        if j == 7 and n == FLAGA:
            a("s_waitcnt vmcnt(0)")
            a("s_mov_b64 exec, 1"); a("ds_write_b32 v15, v6 offset:16"); a("ds_read_b128 v[8:11], v14 offset:16"); a("s_mov_b64 exec, -1")
        if j == 7 and n == FLAGA + LEAD + 1:
            a("s_mov_b64 exec, 1")
            for k in range(4): a(f"v_cmpx_eq_u32 vcc, v6, v{8+k}")
            a("s_cbranch_execz hfa")
            a(f"global_store_dword v5, v6, {sp(sWS)} sc1")
            a("hfa:")
            a("s_mov_b64 exec, -1")
            a("v_add_u32 v5, 0x8000, v5")
        if j in (3, 5) and n == BARN:
            _lab[0] += 1
            a(f"s_cmp_lg_u32 s11, 0"); a(f"s_cbranch_scc1 hf{_lab[0]}")
            a("s_mov_b64 exec, 1"); a(f"global_store_dword v5, v6, {sp(sWS)} sc1"); a("s_mov_b64 exec, -1")
            a(f"hf{_lab[0]}:")
            a("v_add_u32 v5, 0x8000, v5")
        if n == 31 and j in (0, 3) and not os.environ.get('BST'): stamp(a, 15 if j == 0 else 16)
    stamp(a, 17)
    for x in epi(1): a(x)
    a("s_waitcnt vmcnt(0)")
    a("s_mov_b64 exec, 1")
    a("ds_write_b32 v15, v6"); a("ds_read_b128 v[8:11], v14"); a("s_waitcnt lgkmcnt(0)")
    for k in range(4): a(f"v_cmpx_eq_u32 vcc, v6, v{8+k}")
    a("s_cbranch_execz hfl")
    a(f"global_store_dword v5, v6, {sp(sWS)} sc1")
    a("hfl:")
    a("s_mov_b64 exec, -1")
    stamp(a, 18)
def h_var(a):
    a("s_barrier")
    a("s_waitcnt vmcnt(0)"); flag_store(a, "s22", 8)
    a("s_cmp_ge_u32 s11, 2"); a("s_cbranch_scc1 k_done")
    h_addr(a)
    a("s_barrier"); a("s_barrier"); a("s_barrier")
    a("s_cmp_eq_u32 s11, 0"); a("s_cbranch_scc1 v_a")
    a("s_barrier")
    a("v_a:")
    a("s_lshl_b32 s5, s11, 15"); a(f"s_add_u32 s5, s5, {SL[1]}"); a("v_add_u32 v12, s5, v12")
    for n in range(32):
        for h in range(2): a(f"ds_read_b64_tr_b16 {pr(W1R+4*n+2*h)}, v12 offset:{1024*n+256*h}")
    a("s_waitcnt lgkmcnt(0)")
    a("s_cmp_lg_u32 s11, 0"); a("s_cbranch_scc1 v_b")
    a("s_barrier")
    a("v_b:")
    for k in range(128):
        a(f"v_dot2_f32_bf16 v{16+k%2}, v{W1R+k}, s21, {('v%d' % (16+k%2)) if k >= 2 else 0}")
        a(f"v_dot2_f32_bf16 v{18+k%2}, v{W1R+k}, v{W1R+k}, {('v%d' % (18+k%2)) if k >= 2 else 0}")
    a("v_add_f32 v16, v16, v17"); a("v_add_f32 v18, v18, v19"); a("v_mov_b32 v17, v16"); a("v_mov_b32 v19, v18")
    a("v_permlane32_swap_b32 v16, v17"); a("v_permlane32_swap_b32 v18, v19"); a("v_add_f32 v16, v16, v17"); a("v_add_f32 v18, v18, v19")
    ln_final(a, 16, 18, 20, 22, 24)
    a("v_mul_f32 v22, v22, v22"); a("v_rcp_f32 v22, v22"); a(f"v_mov_b32 v23, s{sNON}")
    a("s_lshl_b32 s5, s14, 1"); a("s_add_u32 s5, s5, s11"); a("s_lshl_b32 s5, s5, 8"); a(f"s_add_u32 s5, s5, {hex(R2G)}")
    a("v_and_b32 v5, 31, v2"); a("v_lshl_add_u32 v5, v5, 3, s5")
    a("s_mov_b32 exec_hi, 0")
    a(f"global_store_dwordx2 v5, v[22:23], {sp(sWS)} sc1")

W1FL = os.environ.get("W1FL", "sc1"); NT = os.environ.get("NT", ""); W1DLY = int(os.environ.get("W1DLY", 0))
CPF = int(os.environ.get("CPF", 1))
XPRE = int(os.environ.get("XPRE", 19)); IDLEPRE = int(os.environ.get("IDLEPRE", 52)); W2B = int(os.environ.get("W2B", 5))
W2SCH = [int(c) for c in os.environ.get("W2SCH", "112222")]; ORDER = int(os.environ.get("ORDER", 2)); B9AT = int(os.environ.get("B9AT", 20)); FSLEEP = int(os.environ.get("FSLEEP", 2)); BLEAD = int(os.environ.get("BLEAD", 4)); HLEAD = int(os.environ.get("HLEAD", 7)); FBN = [int(c) for c in os.environ.get("FBN", "357")]; CLATE = int(os.environ.get("CLATE", 0)); B3B = int(os.environ.get("B3B", 1)); T0N = int(os.environ.get("T0N", 3)); SPS = int(os.environ.get("SPS", 60)); FPRE = int(os.environ.get("FPRE", 0)); FLEAD = int(os.environ.get("FLEAD", 3)); NPRE = int(os.environ.get("NPRE", 3)); W3 = int(os.environ.get("W3", 4)); W3F = int(os.environ.get("W3F", 0)); BSW = int(os.environ.get("BSW", 0)); TCH = int(os.environ.get("TCH", 2)); TCHP = int(os.environ.get("TCHP", 1)); TLBW = int(os.environ.get("TLBW", 2)); TLBF = int(os.environ.get("TLBF", 0)); XST = int(os.environ.get("XST", 1)); EARLY2 = int(os.environ.get("EARLY2", 8)); STN = int(os.environ.get("STN", 8)); EPK = int(os.environ.get("EPK", 0)); BPRIO = int(os.environ.get("BPRIO", 3)); WDLY = int(os.environ.get("WDLY", 8)); B3AT = int(os.environ.get("B3AT", 2)); FLAG1ST = int(os.environ.get("FLAG1ST", 1))
WARM = int(os.environ.get("WARM", 1)); WARM2 = int(os.environ.get("WARM2", 1)); WNT = os.environ.get("WNT", ""); MAP3 = int(os.environ.get("MAP3", 0)); DNT = os.environ.get("DNT", "")
DSGAP = int(os.environ.get("DSGAP", 5)); FLAGA = int(os.environ.get("FLAGA", 6))
P1PRE = int(os.environ.get("P1PRE", 0)); P2PRE = int(os.environ.get("P2PRE", 5)); P3PRE = int(os.environ.get("P3PRE", 0))
W2PRE = int(os.environ.get("W2PRE", 2)); HDEP = int(os.environ.get("HDEP", 5)); OUTFL = os.environ.get("OUTFL", "")

PORD = [[[(c + 1 + i) & 3 for i in range(4)] for c in range(4)], None, [[2, 3, 1, 0], [2, 3, 0, 1], [0, 1, 3, 2], [0, 1, 2, 3]]][ORDER]
TLBS, TLB0, TLBN, TLBS2, TLBN2 = (21, 0x1fff80, 5, 16, 0) if not TLBF else (18, 0x3ff80, 47, 16, 27)
def kernel():
    a = Asm()
    a("s_cmp_ge_u32 s2, 256"); a("s_cbranch_scc1 k_done")
    if PROF:
        a("v_mov_b32 v255, 0")
        a("s_memrealtime s[100:101]"); a("s_waitcnt lgkmcnt(0)"); a("v_writelane_b32 v255, s100, 30")
        stamp(a, 0)
    a("s_load_dwordx16 s[16:31], s[0:1], 0")
    a("s_load_dwordx16 s[32:47], s[0:1], 64")
    if CPF:
        a("s_getpc_b64 s[90:91]")
        a("k_pc:")
        a("s_bfe_u32 s5, s2, 0x30003"); a("s_mul_i32 s5, s5, 5"); a("s_lshr_b32 s5, s5, 3"); a("s_lshl_b32 s5, s5, 13")
        a("v_lshrrev_b32 v1, 3, v0"); a("v_lshl_add_u32 v1, v1, 7, s5")
        a("v_min_u32 v1, k_end-k_pc-4, v1")
        a("global_load_dword v254, v1, s[90:91]")
    a("v_lshrrev_b32 v1, 6, v0")
    a("v_readfirstlane_b32 s10, v1")
    a("v_and_b32 v0, 255, v0")
    common_ids(a)
    a("s_and_b32 s11, s10, 3")
    a("s_cmp_ge_u32 s10, 4"); a("s_cbranch_scc1 e_h")
    m_entry(a)
    a("s_branch m_main")
    a("e_h:")
    a("s_setprio 2")
    x_entry(a)
    h_phaseB(a, h_u(a))
    h_phaseC(a)
    stamp_out(a)
    a("s_endpgm")
    a("m_main:")
    m_kgen(a); m_conv(a)
    m_phaseD(a, *m_phaseC(a))
    stamp_out(a)
    a("s_endpgm")
    a("h_spare:")
    h_var(a)
    a("k_done:")
    a("s_endpgm")
    a("k_end:")
    return a
def probe_kernel():
    w, st, nwg, mode, K = PROBE
    a = Asm()
    a("s_cmp_ge_u32 s2, 1"); a("s_cbranch_scc1 pr_done")
    a("s_load_dwordx2 s[46:47], s[0:1], 120")
    a("v_lshlrev_b32 v1, 10, v0"); a(f"v_add_u32 v1, {hex(PBUF)}, v1")
    a("s_waitcnt lgkmcnt(0)")
    n = nwg // 32
    for i in range(8):
        a(f"global_load_dword v{8+i}, v1, s[46:47]");
        if i < n: a(f"global_load_dword v{16+i}, v1, s[46:47] offset:{w*128+st*4}")
        a("v_add_u32 v1, 32768, v1")
    a("s_waitcnt vmcnt(0)")
    for i in range(1, 8): a(f"v_min_u32 v8, v8, v{8+i}")
    a("s_mov_b32 s10, -1")
    for l in range(32): a(f"v_readlane_b32 s11, v8, {l}"); a("s_min_u32 s10, s10, s11")
    for i in range(n): a(f"v_subrev_u32 v{16+i}, s10, v{16+i}")
    for i in range(1, n): a(f"{'v_add_u32' if mode else 'v_max_u32'} v16, v16, v{16+i}")
    a("s_mov_b32 s12, 0")
    for l in range(32): a(f"v_readlane_b32 s11, v16, {l}"); a(f"{'s_add_u32' if mode else 's_max_u32'} s12, s12, s11")
    a(f"s_mul_i32 s12, s12, {K}")
    if mode: a(f"s_mul_hi_u32 s12, s12, {hex((1<<32)//nwg)}")
    a("s_min_u32 s12, s12, 200000")
    a("s_memrealtime s[14:15]"); a("s_waitcnt lgkmcnt(0)")
    a("pr_l:")
    a("s_memrealtime s[16:17]"); a("s_waitcnt lgkmcnt(0)"); a("s_sub_u32 s16, s16, s14"); a("s_cmp_lt_u32 s16, s12"); a("s_cbranch_scc1 pr_l")
    a("pr_done:"); a("s_endpgm")
    return a
if __name__ == "__main__":
    a = kernel()
    kn = NAME + "_kernel"
    if PROBE:
        s = f"; @launch kernel={kn} grid=(256,1,1) block=(512,1,1) lds={LDS_TOTAL}\n; @launch kernel=probe_kernel grid=(1,1,1) block=(32,1,1) lds=0\n"
        s += '.amdgcn_target "amdgcn-amd-amdhsa--gfx950"\n.text\n' + head(kn) + a.text(True) + head("probe_kernel") + probe_kernel().text() + '.section .rodata,"a"\n' + kd(kn, 256) + kd("probe_kernel", 32)
    else:
        s = f"; @launch grid=(256,1,1) block=(512,1,1) lds={LDS_TOTAL}\n"
        s += '.amdgcn_target "amdgcn-amd-amdhsa--gfx950"\n.text\n' + head(kn) + a.text(True) + '.section .rodata,"a"\n' + kd(kn, 256)
    open(sys.argv[1] if len(sys.argv) > 1 else "f.s", "w").write(s)
```

```python
import sys, os, struct
from asmlib import *
NAME = "sequential_preLN__ssm_conv_s4__glu_gated_bilinear__prompt"
PROF = bool(os.environ.get("PROF"))
PROBE = [int(x) for x in os.environ["PROBE"].split(",")] if os.environ.get("PROBE") else None
G1 = 0x0; F2 = 0x4000; R2G = 0x8000; EPO = 0xC000; F3 = 0x20000
XT = 0x100000; HB = 0x300000; HF = 0x500000
PBUF = 0x2000000
sX, sARE, sAIM, sBRE, sBIM, sCRE, sCIM, sLDT, sDSK, sWG, sWU, sWD, sOUT, sDBG, sWS = \
    16, 18, 20, 22, 24, 26, 28, 30, 32, 36, 38, 40, 42, 44, 46
sNON = 48
SL = [0, 32768, 65536, 98304]; RING = 131072; RD = 7; MISC = 159744; LDS_TOTAL = 163840
CSTR = 11 * 512 + 32; TCHN = 8 * CSTR; TAB = 0; TOE = SL[3]; TCP = 4160; UU = TOE + 8 * TCP; UCH = 4608; YY = UU + 2 * UCH
assert YY + 16384 <= MISC and 2 * TCHN <= SL[3]
CNT = MISC + 4032
RES = SL[1]; RED = SL[1] + 8192; UP = 131072
DPP = "row_mask:0xf bank_mask:0xf"
SPIN = 1 << 16
def sp(b): return f"s[{b}:{b+1}]"
def pr(b): return f"v[{b}:{b+1}]"
def q4(b): return f"v[{b}:{b+3}]"
def f2u(x): return "0x%08x" % struct.unpack("<I", struct.pack("<f", x))[0]
def wsptr(a, dst, off):
    a(f"s_add_u32 s{dst}, s{sWS}, {hex(off) if isinstance(off, int) else off}"); a(f"s_addc_u32 s{dst+1}, s{sWS+1}, 0")
def srd(a, d, off, size):
    wsptr(a, d, off)
    a(f"s_and_b32 s{d+1}, s{d+1}, 0xffff"); a(f"s_mov_b32 s{d+2}, {hex(size)}"); a(f"s_mov_b32 s{d+3}, 0x00020000")
_st = {}
def stamp(a, i):
    if PROF:
        if PROBE and i not in (0, 29, PROBE[1]): return
        a(("s_memrealtime" if (PROBE or os.environ.get("RT")) else "s_memtime") + " s[100:101]"); a("s_waitcnt lgkmcnt(0)"); a(f"v_writelane_b32 v255, s100, {i}")
def stamp_out(a):
    if not PROF: return
    a("s_waitcnt vmcnt(0)")
    stamp(a, 29)
    a("s_memrealtime s[100:101]"); a("s_waitcnt lgkmcnt(0)"); a("v_writelane_b32 v255, s100, 31")
    a("s_lshl_b32 s3, s2, 3"); a("s_add_u32 s3, s3, s10"); a("s_lshl_b32 s3, s3, 7"); a(f"s_add_u32 s3, s3, {hex(PBUF)}")
    a("v_mbcnt_lo_u32_b32 v1, -1, 0"); a("v_lshl_add_u32 v1, v1, 2, s3")
    a("s_mov_b32 exec_hi, 0")
    a(f"global_store_dword v1, v255, {sp(sWS)}")
_lab = [0]
def poll(a, loads, checks, sleep=2, pre=0):
    _lab[0] += 1; n = _lab[0]
    a("s_mov_b64 s[98:99], exec")
    a("s_mov_b32 s97, 0")
    if pre: a(f"s_sleep {pre}")
    a(f"poll{n}:")
    for x in loads: a(x)
    a("s_add_u32 s97, s97, 1")
    a("s_waitcnt vmcnt(0)")
    if len(checks) == 1:
        a(f"v_cmp_ne_u32 vcc, s{sNON}, v{checks[0]}")
    else:
        a(f"v_cmp_ne_u32 vcc, s{sNON}, v{checks[0]}")
        for c in checks[1:]:
            a(f"v_cmp_ne_u32 s[94:95], s{sNON}, v{c}"); a("s_nop 0"); a("s_or_b64 vcc, vcc, s[94:95]")
    a("s_and_b64 exec, exec, vcc")
    a(f"s_cbranch_execz pollx{n}")
    a(f"s_cmp_ge_u32 s97, {SPIN}"); a(f"s_cbranch_scc1 pollx{n}")
    if sleep: a(f"s_sleep {sleep}")
    a(f"s_branch poll{n}")
    a(f"pollx{n}:")
    a("s_mov_b64 exec, s[98:99]")
def epoch_load(a): a(f"s_load_dword s{sNON}, {sp(sWS)}, {hex(EPO)}")
def epoch_mix(a):
    a(f"s_mul_i32 s{sNON}, s{sNON}, 0x9e3779b1"); a(f"s_add_u32 s{sNON}, s{sNON}, 0x7f4a7c15")
def lds_spin(a, vaddr, vt, target, off=0, sleep=0):
    _lab[0] += 1; n = _lab[0]
    a("s_mov_b32 s97, 0")
    a(f"lsp{n}:")
    if sleep: a(f"s_sleep {sleep}")
    a(f"ds_read_b32 v{vt}, v{vaddr} offset:{off}")
    a("s_add_u32 s97, s97, 1")
    a("s_waitcnt lgkmcnt(0)")
    a(f"v_readfirstlane_b32 s96, v{vt}")
    a(f"s_cmp_ge_u32 s97, {SPIN*8}"); a(f"s_cbranch_scc1 lsx{n}")
    a(f"s_cmp_lt_u32 s96, {target}"); a(f"s_cbranch_scc1 lsp{n}")
    a(f"lsx{n}:")
def check_or_poll(a, load, reg, sleep=2):
    _lab[0] += 1; n = _lab[0]
    a(f"v_cmp_ne_u32 vcc, s{sNON}, v{reg}")
    a(f"s_cbranch_vccz cok{n}")
    poll(a, [load], [reg], sleep=sleep)
    a(f"cok{n}:")
def flag_store(a, soff, vt):
    a(f"v_mov_b32 v{vt}, {soff}"); a(f"v_mov_b32 v{vt+1}, s{sNON}")
    a("s_mov_b64 exec, 1")
    a(f"global_store_dword v{vt}, v{vt+1}, {sp(sWS)} sc1")
    a("s_mov_b64 exec, -1")
def ln_final(a, S, Q, M, SD, T):
    a(f"v_mul_f32 v{T}, {f2u(1/512)}, v{S}")
    a(f"v_mul_f32 v{T+1}, {f2u(1/512)}, v{Q}")
    a(f"v_fma_f32 v{T+1}, -v{T}, v{T}, v{T+1}")
    a(f"v_max_f32 v{T+1}, 0, v{T+1}")
    a(f"v_cvt_pk_bf16_f32 v{T}, v{T}, v{T+1}")
    a(f"v_lshlrev_b32 v{M}, 16, v{T}")
    a(f"v_and_b32 v{T+1}, 0xffff0000, v{T}")
    a(f"v_add_f32 v{T+1}, {f2u(1e-5)}, v{T+1}")
    a(f"v_cvt_pk_bf16_f32 v{T+1}, v{T+1}, v{T+1}")
    a(f"v_lshlrev_b32 v{T+1}, 16, v{T+1}")
    a(f"v_sqrt_f32 v{T+1}, v{T+1}")
    a(f"v_cvt_pk_bf16_f32 v{T+1}, v{T+1}, v{T+1}")
    a(f"v_lshlrev_b32 v{SD}, 16, v{T+1}")
def cmul_batch(a, jobs):
    for d, x, y in jobs: a(f"v_pk_mul_f32 {pr(d)}, {pr(x)}, {pr(y)} op_sel:[0,0] op_sel_hi:[1,0]")
    for d, x, y in jobs: a(f"v_pk_fma_f32 {pr(d)}, {pr(x)}, {pr(y)}, {pr(d)} op_sel:[1,1,0] op_sel_hi:[0,1,1] neg_lo:[1,0,0]")

def common_ids(a):
    a("s_and_b32 s14, s2, 7"); a("s_lshl_b32 s3, s14, 5"); a("s_lshr_b32 s5, s2, 3"); a("s_add_u32 s3, s3, s5")
    a("s_mov_b32 s4, 0xffff0000")
def late_ids(a):
    a("s_and_b32 s50, s2, 3")
    a("s_lshr_b32 s15, s2, 5")
    a("s_bfe_u32 s34, s2, 0x20003")
    a("s_and_b32 s12, s2, 4"); a("s_add_u32 s12, s12, s34")
    a("s_mul_i32 s13, s50, 7"); a("s_add_u32 s13, s13, s15")
    a("s_mov_b32 s49, s15")
    a("s_and_b32 s5, s15, 3"); a("s_cmp_eq_u32 s5, 3"); a("s_cselect_b32 s5, 4, 0"); a("s_xor_b32 s15, s15, s5")
    a("s_and_b32 s49, s49, 3")
    def order(lst): return hex(sum(t << (4 * i) for i, t in enumerate(lst)))
    tab = [order([t for q in PORD[c] for t in (2 * q, 2 * q + 1)]) for c in range(4)]
    a("s_cmp_eq_u32 s49, 1"); a(f"s_mov_b32 s5, {tab[0]}"); a(f"s_cselect_b32 s5, {tab[1]}, s5")
    a("s_cmp_eq_u32 s49, 2"); a(f"s_cselect_b32 s5, {tab[2]}, s5")
    a("s_cmp_eq_u32 s49, 3"); a(f"s_cselect_b32 s49, {tab[3]}, s5")
    a("s_mul_i32 s5, s50, 0x22222222"); a("s_add_u32 s5, s5, 0x10101010")
    a("s_cmp_eq_u32 s15, 3"); a("s_cselect_b32 s49, s5, s49"); a("s_cselect_b32 s13, 0, s13")
    a("s_lshl_b32 s14, s12, 2"); a("s_add_u32 s14, s14, s50")

PR = 8; WA = 240
def m_entry(a):
    a("s_lshl_b32 s5, s3, 9")
    a("v_lshl_add_u32 v2, v0, 1, s5")
    a("s_lshl_b32 s5, s3, 2")
    for i in range(6): a(f"v_mov_b32 v{PR+i}, 0")
    a(f"v_mov_b32 v6, {CNT}"); a(f"ds_write_b128 v6, {q4(PR)}")
    a("s_waitcnt lgkmcnt(0)")
    stamp(a, 23)
    for i, p in enumerate((sARE, sAIM, sBRE, sBIM, sCRE, sCIM)):
        a(f"global_load_short_d16_hi v{PR+i}, v2, {sp(p)} {NT}")
    a(f"s_load_dword s6, {sp(sLDT)}, s5")
    epoch_load(a)
    a("s_barrier")
def m_kgen(a):
    a("v_lshrrev_b32 v6, 5, v0"); a(f"v_mul_u32_u24 v6, {UCH}, v6"); a("v_and_b32 v7, 31, v0")
    a("v_lshl_add_u32 v6, v7, 4, v6"); a(f"v_add_u32 v6, {UU}, v6")
    a("v_bfe_u32 v7, v0, 1, 3"); a(f"v_mul_u32_u24 v7, {TCP}, v7"); a("v_and_b32 v40, 1, v0")
    a("v_lshl_add_u32 v7, v40, 4, v7"); a(f"v_add_u32 v7, {TOE}, v7")
    a("v_cmp_gt_u32 vcc, 64, v0")
    for i in range(4): a(f"v_mov_b32 v{36+i}, 0")
    a("v_cndmask_b32 v6, v7, v6, vcc")
    a("ds_write_b128 v6, v[36:39]")
    late_ids(a)
    if W3 == 1: warm3(a, W3F)
    a("s_lshr_b32 s7, s10, 1")
    a(f"s_mul_i32 s8, s7, {TCHN}")
    a("v_and_b32 v7, 127, v0"); a(f"v_lshl_add_u32 v{WA}, v7, 2, s8")
    for c in range(1, 8): a(f"v_add_u32 v{WA+c}, {c*CSTR}, v{WA}")
    a("v_and_b32 v2, 15, v0"); a("v_bfe_u32 v3, v0, 4, 2")
    a(f"s_mul_i32 s9, s7, {4*TCP}"); a(f"s_add_u32 s9, s9, {TOE}")
    a("v_lshl_add_u32 v4, v3, 4, s8")
    def adr(dst, cls, idx):
        a(f"v_mul_u32_u24 v{dst}, {CSTR}, v{cls}"); a(f"v_lshl_add_u32 v{dst}, v{idx}, 9, v{dst}"); a(f"v_add_u32 v{dst}, v{dst}, v4")
    a("v_and_b32 v26, 7, v2"); a("v_lshrrev_b32 v15, 3, v2"); adr(16, 26, 15)
    a("v_and_b32 v6, 3, v2"); a("v_bfe_u32 v7, v2, 2, 1")
    a("v_lshl_add_u32 v20, v2, 5, s9")
    a("v_lshl_add_u32 v21, v3, 9, v20"); a("v_add_u32 v21, 2048, v21")
    a("v_lshrrev_b32 v22, 1, v3"); a("v_lshl_add_u32 v20, v22, 9, v20")
    a("v_and_b32 v22, 1, v3"); a("v_lshl_add_u32 v20, v22, 4, v20")
    a("s_bitcmp1_b32 s10, 0"); a("s_cbranch_scc1 m_adrY")
    a("v_lshl_add_u32 v26, v7, 3, v6")
    a("v_subrev_u32 v27, 1, v6"); a("v_max_i32 v27, 0, v27"); a("v_lshl_add_u32 v27, v7, 2, v27")
    a("v_cmp_eq_u32 vcc, 1, v15")
    a("v_lshlrev_b32 v28, 1, v15"); a("v_sub_u32 v28, 4, v28")
    a("v_cndmask_b32 v26, v26, v27, vcc")
    for t in range(3):
        a("v_and_b32 v27, 3, v26"); a("v_lshl_add_u32 v27, v15, 2, v27"); a("v_lshrrev_b32 v29, 2, v26"); a("v_add_u32 v29, 2, v29")
        adr(17 + t, 27, 29)
        if t < 2: a("v_add_u32 v26, v26, v28")
    a("s_branch m_adrJ")
    a("m_adrY:")
    a("v_lshl_add_u32 v26, v7, 1, v6")
    a("v_and_b32 v27, 3, v26"); a("v_lshl_add_u32 v27, v15, 2, v27")
    a("v_lshrrev_b32 v29, 2, v26"); a("v_lshlrev_b32 v28, 1, v15"); a("v_sub_u32 v29, v29, v28"); a("v_add_u32 v29, 7, v29")
    adr(17, 27, 29)
    a("v_lshl_add_u32 v27, v15, 2, v6"); a("v_sub_u32 v29, v7, v28"); a("v_add_u32 v29, 9, v29")
    adr(18, 27, 29)
    a("v_add_u32 v20, 1024, v20")
    a("m_adrJ:")
    a("v_add_u32 v4, 1, v2")
    a("v_and_b32 v5, 3, v4"); a(f"v_mul_u32_u24 v5, {TCP}, v5")
    a("v_lshrrev_b32 v4, 2, v4"); a("v_lshl_add_u32 v5, v4, 3, v5")
    a("v_lshlrev_b32 v4, 4, v3"); a("v_sub_u32 v5, v5, v4")
    a("s_and_b32 s8, s10, 1"); a("s_lshl_b32 s8, s8, 8")
    a("s_add_u32 s9, s9, s8"); a("s_add_u32 s9, s9, 48")
    a("v_add_u32 v23, s9, v5")
    a(f"s_mul_i32 s9, s7, {UCH}"); a(f"s_add_u32 s9, s9, {UU+480-192}"); a("s_sub_u32 s9, s9, s8")
    a("v_lshl_add_u32 v24, v2, 5, v4"); a("v_add_u32 v24, s9, v24")
    a("v_lshrrev_b32 v4, 1, v3"); a("v_bfe_u32 v5, v2, 2, 1"); a("v_xor_b32 v4, v4, v5"); a("v_lshl_add_u32 v4, v2, 1, v4")
    a("v_and_b32 v5, 1, v3"); a("v_lshlrev_b32 v5, 3, v5"); a("v_lshl_add_u32 v25, v4, 4, v5")
    a("s_lshl_b32 s8, s10, 12"); a(f"s_add_u32 s8, s8, {YY}"); a("v_add_u32 v25, s8, v25")
    stamp(a, 24)
    a("s_waitcnt lgkmcnt(0)")
    a("s_lshl_b32 s8, s6, 16"); a("s_and_b32 s9, s6, 0xffff0000")
    a("s_cmp_ge_u32 s10, 2"); a("s_cselect_b32 s8, s9, s8")
    a(f"v_mov_b32 v7, {f2u(1.4426950408889634)}")
    a("v_mul_f32 v40, s8, v7")
    a("v_exp_f32 v40, v40")
    a("v_cvt_pk_bf16_f32 v40, v40, v40")
    a("v_lshlrev_b32 v40, 16, v40")
    a(f"s_waitcnt vmcnt({(1 + W3F) if W3 == 1 else 0})")
    stamp(a, 1)
    if W3 == 2: warm3(a, W3F)
    a(f"v_mul_f32 v41, v40, v{PR}"); a(f"v_mul_f32 v42, v40, v{PR+1}")
    a("v_mul_f32 v41, v41, v7")
    a("v_mul_f32 v42, 0.15915494, v42")
    a(f"v_mul_f32 v{PR+2}, v40, v{PR+2}"); a(f"v_mul_f32 v{PR+3}, v40, v{PR+3}")
    S = {i: 44 + 2 * (i - 1) for i in range(1, 19)}
    E = {p: 80 + 2 * i for i, p in enumerate((32, 64, 128, 256, 512, 768, 1024, 1280, 1536, 1792))}
    C = {j: 100 + 2 * j for j in range(16)}
    T = 132; CV = 160
    V = []
    cvi = [0]
    def put(kind, k, reg):
        if kind == 'c': cls, idx = k & 7, k >> 3
        elif kind == 'r1': cls, idx = k & 3, 2 + (k >> 2)
        elif kind == 'r2': cls, idx = 4 + (k & 3), 2 + (k >> 2)
        elif kind == 'r4': cls, idx = 4 * k[0] + (k[1] & 3), 7 - 2 * k[0] + (k[1] >> 2)
        else: cls, idx = 4 * (k[0] >> 1) + k[1], 9 - 2 * (k[0] >> 1) + (k[0] & 1)
        t = CV + cvi[0]; cvi[0] += 1
        if reg is None: V.append(f"v_mov_b32 v{t}, 0x00003f80")
        else: V.append(f"v_cvt_pk_bf16_f32 v{t}, v{reg}, {'-' if kind == 'c' else ''}v{reg+1}")
        V.append(('put', cls, idx, t))
    class A2:
        def __call__(self, x): V.append(x)
    v = A2()
    D = [(S[1], 1.0), (S[16], 16.0), (E[256], 256.0)]
    for i, (d, p) in enumerate(D):
        if p == 1.0:
            v(f"v_exp_f32 v{T+3*i}, v41"); v(f"v_fract_f32 v{T+3*i+1}, v42")
        else:
            v(f"v_mul_f32 v{T+3*i}, {f2u(p)}, v41"); v(f"v_mul_f32 v{T+3*i+1}, {f2u(p)}, v42")
            v(f"v_exp_f32 v{T+3*i}, v{T+3*i}"); v(f"v_fract_f32 v{T+3*i+1}, v{T+3*i+1}")
    for i, (d, p) in enumerate(D):
        v(f"v_cos_f32 v{d}, v{T+3*i+1}"); v(f"v_sin_f32 v{d+1}, v{T+3*i+1}")
    cmul_batch(v, [(C[0], PR + 4, PR + 2)])
    put('r1', 0, None)
    for i, (d, p) in enumerate(D):
        v(f"v_mul_f32 v{d}, v{d}, v{T+3*i}"); v(f"v_mul_f32 v{d+1}, v{d+1}, v{T+3*i}")
    put('c', 0, C[0])
    cmul_batch(v, [(S[2], S[1], S[1]), (E[32], S[16], S[16]), (E[512], E[256], E[256]), (C[1], C[0], S[16]), (S[17], S[16], S[1])])
    put('r1', 1, S[1]); put('r1', 16, S[16]); put('r2', 0, E[256])
    cmul_batch(v, [(S[4], S[2], S[2]), (E[64], E[32], E[32]), (E[1024], E[512], E[512]), (S[3], S[2], S[1])])
    put('r1', 17, S[17]); put('r4', (0, 0), E[512]); put('r1', 2, S[2]); put('c', 1, C[1])
    cmul_batch(v, [(E[768], E[512], E[256]), (C[2], C[0], E[32]), (C[3], C[1], E[32]), (S[18], S[16], S[2])])
    put('r1', 4, S[4]); put('r8', (0, 0), E[1024]); put('r1', 3, S[3])
    cmul_batch(v, [(S[8], S[4], S[4]), (E[128], E[64], E[64]), (S[5], S[4], S[1]), (S[6], S[4], S[2])])
    put('r4', (1, 0), E[768]); put('c', 2, C[2]); put('c', 3, C[3]); put('r1', 18, S[18])
    jobs = [((S[7], S[4], S[3]), ('r1', 7)), ((E[1280], E[1024], E[256]), ('r8', (1, 0))), ((E[1536], E[1024], E[512]), ('r8', (2, 0))),
            ((E[1792], E[1024], E[768]), ('r8', (3, 0)))]
    jobs += [((C[4 + i], C[i], E[64]), ('c', 4 + i)) for i in range(4)]
    jobs += [((S[8 + i], S[8], S[i]), ('r1', 8 + i)) for i in range(1, 8)]
    jobs += [((T + 2 * (i - 1), E[256], S[2 * i]), ('r2', i)) for i in (1, 2, 3, 4, 8, 9)]
    jobs += [((C[8 + i], C[i], E[128]), ('c', 8 + i)) for i in range(8)]
    jobs += [((T + 2 * (i - 1), E[256], S[2 * i]), ('r2', i)) for i in (5, 6, 7)]
    jobs += [((C[4 * b + i - 1], E[512 + 256 * b], S[4 * i]), ('r4', (b, i))) for b in range(2) for i in range(1, 5)]
    jobs += [((C[8 + 2 * g + i - 1], E[1024 + 256 * g], S[8 * i]), ('r8', (g, i))) for g in range(4) for i in range(1, 3)]
    pend = [((S[8],), ('r1', 8)), ((S[5],), ('r1', 5)), ((S[6],), ('r1', 6))]
    for b0 in range(0, len(jobs), 4):
        bt = jobs[b0:b0+4]
        cmul_batch(v, [j[0] for j in bt])
        for j in pend: put(j[1][0], j[1][1], j[0][0])
        pend = bt
    for j in pend: put(j[1][0], j[1][1], j[0][0])
    assert cvi[0] == 67
    waiting = {}; ready = []; since = 0
    for x in V:
        if isinstance(x, tuple):
            _, cls, idx, t = x
            if cls in waiting:
                i0, t0 = waiting.pop(cls); ready.append(f"ds_write2st64_b32 v{WA+cls}, v{t0}, v{t} offset0:{2*i0} offset1:{2*idx}")
            else: waiting[cls] = (idx, t)
            continue
        a(x); since += 1
        if ready and since >= DSGAP:
            y = ready.pop(0); since = 0
            if not os.environ.get("NODS"): a(y)
    stamp(a, 25)
    for x in ready: a(x)
    for cls, (idx, t) in waiting.items(): a(f"ds_write_b32 v{WA+cls}, v{t} offset:{512*idx}")
    a(f"s_lshl_b32 s8, s7, 2"); a(f"s_add_u32 s8, s8, {CNT+4}"); a("v_mov_b32 v26, s8"); a("v_mov_b32 v27, 1")
    a("s_mov_b64 exec, 1"); a("ds_add_u32 v26, v27"); a("s_mov_b64 exec, -1")
    stamp(a, 2)
    lds_spin(a, 26, 27, 2)
    stamp(a, 3)
    BF = 44; AF = 76; ACC = 172
    def copies(vals, dst, off, tmp):
        for c in range(4):
            for p in range(4): a(f"v_cvt_pk_bf16_f32 v{tmp+4*c+p}, v{vals[c+2*p]}, v{vals[c+2*p+1]}")
            a(f"ds_write_b128 v{dst}, {q4(tmp+4*c)} offset:{32+c*TCP+off}")
    def copies_l(vals, dst, off, tmp):
        b = Asm()
        for c in range(4):
            for p in range(4): b(f"v_cvt_pk_bf16_f32 v{tmp+4*c+p}, v{vals[c+2*p]}, v{vals[c+2*p+1]}")
            b(f"ds_write_b128 v{dst}, {q4(tmp+4*c)} offset:{32+c*TCP+off}")
        return b.l
    def genmm(nt):
        rd = []
        for ks in range(8):
            rd.append(f"ds_read_b128 {q4(BF+4*ks)}, v16 offset:{64*ks}")
            for t in range(nt): rd.append(f"ds_read_b128 {q4(AF+4*(nt*ks+t))}, v{17+t} offset:{64*ks}")
        g = nt + 1; pre_n = min(len(rd), 3 * g); k = pre_n
        for x in rd[:pre_n]: a(x)
        for ks in range(8):
            a(f"s_waitcnt lgkmcnt({k - g * (ks + 1)})")
            for t in range(nt):
                a(f"v_mfma_f32_16x16x32_bf16 {q4(ACC+4*t)}, {q4(AF+4*(nt*ks+t))}, {q4(BF+4*ks)}, {q4(ACC+4*t) if ks else 0}")
                take = (g if t == nt - 1 else t + 1) - t if t else (2 if nt > 1 else g)
                for x in rd[k:min(len(rd), pre_n + g * (ks + 1), k + (2 if t == 0 else 1))]: a(x); k += 1
    a("s_bitcmp1_b32 s10, 0"); a("s_cbranch_scc1 m_waveY")
    genmm(3)
    stamp(a, 4)
    a("s_nop 7")
    a("s_mov_b32 exec_lo, 0x80000000"); a("s_mov_b32 exec_hi, 0")
    a(f"v_mov_b32 v{ACC+9}, v{ACC+8}")
    a("s_mov_b32 exec_lo, 0"); a("s_mov_b32 exec_hi, 0x80000000")
    a(f"v_mov_b32 v{ACC+10}, v{ACC+9}")
    a("s_mov_b64 exec, -1")
    copies([ACC + i for i in range(11)], 20, 0, AF)
    a(f"v_cvt_pk_bf16_f32 v13, 0, v{ACC}")
    a("s_mov_b64 exec, 1")
    a(f"ds_write_b32 v20, v13 offset:{1*TCP+28}")
    a(f"ds_write_b32 v20, v{AF} offset:{2*TCP+28}")
    a(f"ds_write_b32 v20, v13 offset:{3*TCP+24}")
    a(f"ds_write_b32 v20, v{AF+4} offset:{3*TCP+28}")
    a("s_mov_b64 exec, -1")
    a("s_branch m_join")
    a("m_waveY:")
    genmm(2)
    stamp(a, 4)
    def runs(vals, dst, off, tmp):
        cache = {}
        def pair(x):
            if x not in cache:
                r = tmp + 2 * len(cache); cache[x] = r
                a(f"v_cvt_pk_bf16_f32 v{r}, v{x[0]}, v{x[1]}"); a(f"v_cvt_pk_bf16_f32 v{r+1}, v{x[2]}, v{x[3]}")
            return cache[x]
        return pair
    if YOPT:
        v4 = [ACC + i for i in (0, 0, 0, 1, 1, 1, 2, 2, 2, 2, 2)]
        v8 = [ACC + 4 + i for i in [0] * 5 + [1] * 7 + [2] * 7]
        pair = runs(None, None, None, AF)
        for c in range(1, 4): a(f"v_add_u32 v{27+c}, {c*TCP}, v21")
        a("v_mov_b32 v27, v21")
        for c in range(4):
            for o in range(2):
                p0 = pair(tuple(v8[8*o+c:8*o+c+4])); p1 = pair(tuple(v8[8*o+c+4:8*o+c+8]))
                a(f"ds_write2_b64 v{27+c}, {pr(p0)}, {pr(p1)} offset0:{4+2*o} offset1:{5+2*o}")
        copies(v4, 20, 0, AF + 40)
    else:
        copies([ACC + i for i in (0, 0, 0, 1, 1, 1, 2, 2, 2, 2, 2)], 20, 0, AF)
        v8 = [ACC + 4 + i for i in [0] * 5 + [1] * 7 + [2] * 7]
        copies(v8[0:11], 21, 0, AF + 16); copies(v8[8:19], 21, 16, AF + 32)
    a("m_join:")
    a("s_waitcnt lgkmcnt(0)")
    stamp(a, 5)
    a("s_barrier")
    stamp(a, 6)
def m_conv(a):
    Y = 32; FA = [64, 128]; FB = [96, 160]
    def reads(r):
        s = r & 1; L = []
        for p in range(8):
            L.append(f"ds_read_b64 {pr(FA[s]+4*p)}, v23 offset:{64*(8*p+r)}")
            L.append(f"ds_read_b64 {pr(FA[s]+4*p+2)}, v23 offset:{64*(8*p+r)+8}")
            L.append(f"ds_read_b128 {q4(FB[s]+4*p)}, v24 offset:{512*p+64*(3-r)}")
        return L
    for x in reads(0): a(x)
    order = sorted([(p, c2) for p in range(8) for c2 in range(8 - p)], key=lambda x: (max(x), x))
    for r in range(4):
        s = r & 1
        nxt = reads(r + 1) if r < 3 else []
        first = set(); have = -1; issued = 0
        if r > 0: a("s_waitcnt lgkmcnt(0)")
        od = order
        if SNAKE and r > 0: od = [(p, c2) for p in range(8) for c2 in (range(8 - p) if p % 2 == 0 else range(7 - p, -1, -1))]
        for i, (p, c2) in enumerate(od):
            c = p + c2
            if r == 0 and max(p, c2) > have:
                have = max(p, c2)
                a(f"s_waitcnt lgkmcnt({min(15, 3*(7-have) + issued)})")
            src = q4(Y + 4 * c) if (r > 0 or c in first) else "0"
            first.add(c)
            a(f"v_mfma_f32_16x16x32_bf16 {q4(Y+4*c)}, {q4(FA[s]+4*p)}, {q4(FB[s]+4*c2)}, {src}")
            k = i - (8 if r == 0 else 0)
            if 0 <= k < len(nxt): a(nxt[k]); issued += 1
    stamp(a, 7)
    for c in (0, 1, 2, 3, 4, 5, 6, 7):
        a(f"v_cvt_pk_bf16_f32 v{64+2*c}, v{Y+4*c}, v{Y+4*c+1}"); a(f"v_cvt_pk_bf16_f32 v{65+2*c}, v{Y+4*c+2}, v{Y+4*c+3}")
        a(f"ds_write_b64 v25, {pr(64+2*c)} offset:{512*c}")
    a("s_waitcnt lgkmcnt(0)")
    a("s_barrier")
    stamp(a, 8)
def m_conv2(a):
    Y = 28; LOW = 60; HIGH = 188
    def reg(kind, r, i):
        if i < 4: return LOW + 32 * r + 16 * kind + 4 * i
        return HIGH + 32 * (r & 1) + 16 * kind + 4 * (i - 4)
    rds = []
    for lo, hi in ((0, 4), (4, 8)):
        for r in range(4):
            for i in range(lo, hi):
                rds.append(((0, r, i), f"ds_read_b64 {pr(reg(0,r,i))}, v23 offset:{64*(8*i+r)}"))
                rds.append(((0, r, i), f"ds_read_b64 {pr(reg(0,r,i)+2)}, v23 offset:{64*(8*i+r)+8}"))
                rds.append(((1, r, i), f"ds_read_b128 {q4(reg(1,r,i))}, v24 offset:{512*i+64*(3-r)}"))
    key = lambda x: (max(x), x)
    PA = [(r, p, c) for r in range(4) for p, c in sorted([(p, c) for p in range(4) for c in range(4 - p)], key=key)]
    LL = [(r, p, c) for r in range(4) for p in range(4) for c in range(4) if p + c >= 4]
    HH = [[(r, p, c) for p, c in sorted([(p, c) for p in range(8) for c in range(8 - p) if max(p, c) >= 4], key=(key if r < 3 else (lambda x: (sum(x), x))))] for r in range(4)]
    seq = PA + LL + HH[0] + HH[1] + HH[2] + HH[3]
    lastuse = {r: max(i for i, x in enumerate(seq) if x[0] == r) for r in range(4)}
    lastc = {c: max(i for i, x in enumerate(seq) if x[1] + x[2] == c) for c in range(8)}
    q = []; k = [0]; started = set(); extra = []
    def wait(ids):
        ks = [j for j, x in enumerate(q) if x in ids]
        if ks: a(f"s_waitcnt lgkmcnt({len(q)-1-ks[-1]})"); del q[:ks[-1]+1]
    def issue(n, i):
        while n > 0 and k[0] < len(rds) and len(q) < 14:
            fid = rds[k[0]][0]
            if fid[2] >= 4 and fid[1] >= 2 and i < lastuse[fid[1] - 2]: break
            a(rds[k[0]][1]); q.append(fid); k[0] += 1; n -= 1
    def wr(c):
        t = 8 + 2 * (c & 3)
        return [f"v_cvt_pk_bf16_f32 v{t}, v{Y+4*c}, v{Y+4*c+1}", f"v_cvt_pk_bf16_f32 v{t+1}, v{Y+4*c+2}, v{Y+4*c+3}", ("w", f"ds_write_b64 v25, {pr(t)} offset:{512*c}")]
    issue(12, -1)
    for i, (r, p, c2) in enumerate(seq):
        need = {(0, r, p), (1, r, c2)}
        while any(x[0] in need for x in rds[k[0]:]):
            if len(q) >= 14: wait({q[3]})
            issue(1, i)
        wait(need)
        c = p + c2
        a(f"v_mfma_f32_16x16x32_bf16 {q4(Y+4*c)}, {q4(reg(0,r,p))}, {q4(reg(1,r,c2))}, {q4(Y+4*c) if c in started else 0}")
        started.add(c)
        for cc in range(8):
            if lastc[cc] + 4 == i: extra += wr(cc)
        if extra:
            for x in extra[:2]:
                if x is None: continue
                if x == "bar":
                    wait({"w"}); stamp(a, 28); a("s_barrier")
                elif isinstance(x, tuple): a(x[1]); q.append("w")
                else: a(x)
            del extra[:2]
        else: issue(2 if i < 30 else 1, i)
    stamp(a, 7)
    for cc in range(8):
        if lastc[cc] + 4 >= len(seq): extra += wr(cc)
    for x in extra: a(x[1] if isinstance(x, tuple) else x)
    a("s_waitcnt lgkmcnt(0)")
    a("s_barrier")
    stamp(a, 8)
SO = 64
def so(i): return f"s{SO+i}"
def warm3(a, full):
    a("s_lshl_b32 s5, s34, 2"); a("s_add_u32 s5, s5, s11"); a("s_mul_i32 s5, s5, 114688"); a("s_lshl_b32 s8, s13, 7"); a("s_add_u32 s5, s5, s8")
    if W3S:
        for m in range(2 if full else 1):
            if full: a(f"s_add_u32 s8, s{(sWG, sWU)[m]}, s5"); a(f"s_addc_u32 s9, s{(sWG, sWU)[m]+1}, 0")
            else:
                a("s_bitcmp1_b32 s2, 2"); a(f"s_cselect_b32 s8, s{sWU}, s{sWG}"); a(f"s_cselect_b32 s9, s{sWU+1}, s{sWG+1}")
                a("s_add_u32 s8, s8, s5"); a("s_addc_u32 s9, s9, 0")
            for r in range(32): a(f"s_load_dword s76, s[8:9], {hex(3584*r)}")
        return
    a("v_and_b32 v253, 31, v0"); a("v_mul_u32_u24 v253, 3584, v253"); a("v_add_u32 v253, s5, v253")
    a("s_mov_b32 exec_hi, 0")
    if full:
        a(f"global_load_dword v252, v253, {sp(sWG)}"); a(f"global_load_dword v253, v253, {sp(sWU)}")
    else:
        a("s_bitcmp1_b32 s2, 2"); a(f"s_cselect_b32 s8, s{sWU}, s{sWG}"); a(f"s_cselect_b32 s9, s{sWU+1}, s{sWG+1}")
        a("global_load_dword v253, v253, s[8:9]")
    a("s_mov_b32 exec_hi, -1")
def tlbw(a):
    _lab[0] += 1; n = _lab[0]
    a("s_cmp_eq_u32 s11, 3"); a(f"s_cbranch_scc1 tl{n}")
    a(f"s_mov_b32 s8, s{sWS}"); a(f"s_mov_b32 s9, s{sWS+1}")
    a("s_cmp_eq_u32 s11, 1"); a(f"s_cselect_b32 s8, s{sWD}, s8"); a(f"s_cselect_b32 s9, s{sWD+1}, s9")
    a("s_cmp_eq_u32 s11, 2"); a(f"s_cselect_b32 s8, s{sOUT}, s8"); a(f"s_cselect_b32 s9, s{sOUT+1}, s9")
    a("s_cmp_eq_u32 s11, 0"); a(f"s_cselect_b32 s5, {TLBS}, {TLBS2}"); a(f"s_cselect_b32 s6, {hex(TLB0)}, 0"); a(f"s_cselect_b32 s7, {TLBN}, {TLBN2}")
    a("v_min_u32 v251, s7, v2"); a("v_lshlrev_b32 v251, s5, v251"); a("v_add_u32 v251, s6, v251")
    a("global_load_dword v251, v251, s[8:9]")
    a(f"tl{n}:")
def warm2(a):
    a("s_lshl_b32 s5, s14, 2"); a("s_add_u32 s5, s5, s11"); a("s_mul_i32 s5, s5, 14336")
    a("v_lshl_add_u32 v28, v2, 7, s5"); a(f"global_load_dword v252, v28, {sp(sWD)}")
    a("v_min_u32 v28, 47, v2"); a("s_add_u32 s5, s5, 8192"); a("v_lshl_add_u32 v28, v28, 7, s5"); a(f"global_load_dword v253, v28, {sp(sWD)}")
def m_setup2(a):
    epoch_mix(a)
    tb = []; ts = []
    for p in range(4):
        bl = [(b, st) for st in range(4) for b in range(7) if PORD[b & 3][st] == p]
        tb.append(hex(sum(b << (4 * i) for i, (b, st) in enumerate(bl)))); ts.append(hex(sum(st << (4 * i) for i, (b, st) in enumerate(bl))))
    a(f"s_mov_b32 s51, {tb[0]}"); a(f"s_mov_b32 s35, {ts[0]}")
    for p in range(1, 4):
        a(f"s_cmp_eq_u32 s50, {p}"); a(f"s_cselect_b32 s51, {tb[p]}, s51"); a(f"s_cselect_b32 s35, {ts[p]}, s35")
    if XST == 1: a("s_lshl_b32 s8, s34, 11")
    elif XST == 2: a("s_xor_b32 s8, s34, s15"); a("s_and_b32 s8, s8, 3"); a("s_lshl_b32 s8, s8, 11")
    else: a("s_and_b32 s8, s15, 3"); a("s_lshl_b32 s8, s8, 11")
    if BSW:
        a("s_and_b32 s5, s51, 15"); a("s_bfe_u32 s6, s51, 0x40004"); a("s_xor_b32 s5, s5, s6"); a("s_mul_i32 s5, s5, 0x11")
        a("s_cmp_ge_u32 s15, 4"); a("s_cselect_b32 s5, s5, 0"); a("s_xor_b32 s51, s51, s5")
    for b in range(7):
        a(f"s_bfe_u32 s6, s51, {hex(0x40000 + 4 * b)}"); a(f"s_lshl_b32 {so(4*b)}, s6, 13")
        if XST: a(f"s_or_b32 {so(4*b)}, {so(4*b)}, s8")
        for t in range(1, 4): a(f"s_xor_b32 {so(4*b+t)}, {so(4*b)}, {2048*t}")
    a("s_lshl_b32 s5, s12, 18"); a(f"s_add_u32 s5, s5, {hex(HB)}"); srd(a, 52, "s5", 0 if os.environ.get('NOH') else 0x40000)
    a("s_mul_i32 s5, s11, 458752"); a("s_lshl_b32 s6, s15, 7"); a("s_add_u32 s5, s5, s6")
    a(f"s_add_u32 s56, s{sWD}, s5"); a(f"s_addc_u32 s57, s{sWD+1}, 0"); a("s_and_b32 s57, s57, 0xffff"); a(f"s_mov_b32 s58, {0 if os.environ.get('NOW2') else 458752-896}"); a("s_mov_b32 s59, 0x00020000")
    a("s_mul_i32 s6, s14, 112"); a("s_mul_i32 s5, s11, 28"); a("s_add_u32 s6, s6, s5"); a("s_lshl_b32 s6, s6, 11"); a(f"s_add_u32 s6, s6, {hex(HF)}")
    srd(a, 60, "s6", 0 if os.environ.get('NOHL') else 57344)
    a("s_add_u32 s16, s11, s34"); a("s_and_b32 s16, s16, 3")
    a("s_lshl_b32 s17, s16, 13")
def m_setup(a):
    a("v_and_b32 v2, 63, v0")
    w1_setup(a, 24, 242); w1_soff(a, 20, 3); w1_soff(a, 22, 2)
NREG = 16; W2R = 96
class VM:
    def __init__(self, a): self.a = a; self.q = []
    def add(self, tag, n=1): self.q.extend([tag] * n); assert len(self.q) <= 63
    def wait(self, tag, upto=None):
        ks = [j for j, x in enumerate(self.q) if x == tag]
        if not ks: return
        k = ks[-1] if upto is None else ks[upto - 1]
        self.a(f"s_waitcnt vmcnt({len(self.q)-1-k})"); del self.q[:k+1]
    def drained(self): self.q = []
FLD = "global_load_dword v250, v248, s[46:47] sc1"
FO = 24; FV = 36
def fv(b): return f"s{FV+b}" if b < 6 else "s33"
def faddr(a):
    for b in range(7):
        a(f"s_bfe_u32 s5, s51, {hex(0x40000 + 4 * b)}"); a(f"s_bfe_u32 s6, s35, {hex(0x40000 + 4 * b)}")
        a("s_lshl_b32 s5, s5, 7"); a("s_lshl_b32 s6, s6, 15"); a("s_add_u32 s5, s5, s6"); a(f"s_add_u32 s{FO+b}, s5, s22")
def fload(a, lo, hi):
    for b in range(lo, hi): a(f"s_load_dword {fv(b)}, s[46:47], s{FO+b}")
def m_phaseC(a):
    vm = VM(a)
    m_setup2(a)
    a("s_barrier")
    a("v_and_b32 v2, 63, v0"); a("s_lshl_b32 s18, s11, 13")
    a("v_lshlrev_b32 v3, 4, v2")
    a("v_and_b32 v1, 32, v2"); a("v_xor_b32 v1, v1, v3")
    a("v_lshrrev_b32 v5, 3, v2"); a("v_bfe_u32 v6, v2, 4, 1"); a("v_lshlrev_b32 v6, 2, v6"); a("v_and_b32 v4, 7, v2"); a("v_xor_b32 v4, v4, v6")
    a("v_lshlrev_b32 v4, 4, v4"); a("v_lshl_add_u32 v4, v5, 10, v4")
    AREA = [UP, UP + 4096, SL[3], SL[3] + 4096]
    where = {}
    def w2dma(st, base):
        for i in range(2):
            a(f"s_lshl_b32 s5, {so(2*st+i)}, 3"); a(f"s_add_u32 m0, s18, {base+2048*i}"); a("s_add_u32 s6, s5, 7168")
            a(f"buffer_load_dwordx4 v4, s[56:59], s5 offen lds"); a(f"buffer_load_dwordx4 v4, s[56:59], s6 offen offset:1024 lds")
        vm.add(f"w{st}", 4); where[st] = base
    a("v_bfe_u32 v5, v2, 2, 2"); a("v_lshrrev_b32 v6, 5, v2"); a("v_lshl_add_u32 v6, v6, 3, v5"); a("v_lshlrev_b32 v8, 7, v6")
    a("v_lshrrev_b32 v5, 1, v5"); a("s_and_b32 s5, s11, 1"); a("v_xor_b32 v5, s5, v5"); a("v_lshl_add_u32 v8, v5, 6, v8")
    a("v_and_b32 v5, 1, v2"); a("v_lshl_add_u32 v8, v5, 5, v8"); a("v_bfe_u32 v5, v2, 4, 1"); a("v_lshl_add_u32 v8, v5, 4, v8")
    a("v_bfe_u32 v5, v2, 1, 1"); a("v_lshl_add_u32 v8, v5, 3, v8"); a("v_add_u32 v8, s18, v8")
    a("v_xor_b32 v9, 64, v8")
    a(f"v_add_u32 v12, {SL[3]}, v8"); a(f"v_add_u32 v13, {SL[3]}, v9")
    a("s_lshr_b32 s5, s11, 1"); a("s_lshl_b32 s5, s5, 10"); a("v_add_u32 v10, s5, v3"); a("v_xor_b32 v11, 1024, v10")
    a("s_lshr_b32 s5, s12, 1"); a("s_lshl_b32 s5, s5, 12"); a("s_lshl_b32 s6, s16, 10"); a("s_add_u32 s5, s5, s6"); a(f"s_add_u32 s5, s5, {hex(F2)}")
    a("v_add_u32 v5, s5, v3")
    def w2read(dst, base, i):
        hi = base >= SL[3]; o = base - (SL[3] if hi else 0) + 2048 * i
        for d in range(2):
            for h in range(2): a(f"ds_read_b64_tr_b16 {pr(dst+4*d+2*h)}, v{(12 if hi else 8)+d} offset:{o+512*h}")
    freeA = list(AREA); st = {"f": 0, "g": 0}
    def w2grab():
        g = st["g"]; st["g"] += 1
        vm.wait(f"w{g}")
        for i in range(2): w2read(W2R + 8 * (2 * g + i), where[g], i)
        a("s_waitcnt lgkmcnt(0)")
        freeA.append(where[g])
    def w2step():
        if st["f"] >= 12: return
        if not freeA: w2grab()
        w2dma(st["f"], freeA.pop(0)); st["f"] += 1
    a("s_mul_i32 s5, s12, 28"); a("s_mul_i32 s6, s11, 7"); a("s_add_u32 s5, s5, s6"); a("s_lshl_b32 s22, s5, 7"); a(f"s_add_u32 s22, s22, {hex(F3)}")
    faddr(a)
    a("s_barrier")
    if W2PRE > 2: freeA[:0] = [SL[0], SL[0] + 4096][:W2PRE - 2]
    def touch():
        a("s_and_b32 s5, s49, 7"); a("s_lshl_b32 s5, s5, 15"); a("s_add_u32 s5, s5, s17")
        if TCH == 1: a("v_lshlrev_b32 v7, 7, v2")
        elif TCH == 2:
            a("v_and_b32 v7, 31, v2"); a("v_lshlrev_b32 v7, 8, v7"); a("s_and_b32 s6, s15, 1"); a("s_lshl_b32 s6, s6, 7"); a("s_add_u32 s5, s5, s6")
        elif TCH == 3:
            a("v_and_b32 v7, 31, v2"); a("v_lshlrev_b32 v7, 8, v7"); a("v_lshrrev_b32 v6, 5, v2"); a("v_lshl_add_u32 v7, v6, 15, v7")
            a("s_and_b32 s6, s15, 1"); a("s_lshl_b32 s6, s6, 7"); a("s_add_u32 s5, s5, s6")
        a("buffer_load_dword v7, v7, s[52:55], s5 offen sc1"); vm.add("t")
    if TCH and TCHP == 0: touch()
    for k in range(W2PRE): w2step()
    if TCH and TCHP == 1: touch()
    stamp(a, 9)
    SK = int(os.environ.get("SKIP2", 0))
    if SK == 1: a("s_cmp_lt_u32 s12, 4"); a("s_cbranch_scc1 m_sk2")
    if SK == 2: a("s_cmp_lt_u32 s34, 2"); a("s_cbranch_scc1 m_sk2")
    if SK == 4: a("s_cmp_lt_u32 s34, 3"); a("s_cbranch_scc1 m_sk2")
    if SK == 3: a("s_branch m_sk2")
    poll(a, [f"global_load_dword v6, v5, {sp(sWS)} sc1"], [6], sleep=2, pre=P2PRE)
    a("m_sk2:")
    vm.drained()
    stamp(a, 10)
    def hdma(j, lo=0, hi=8):
        if lo == 0: a("s_and_b32 s19, s49, 7"); a("s_lshl_b32 s19, s19, 15"); a("s_add_u32 s19, s19, s17"); a("s_lshr_b32 s49, s49, 4"); a("s_add_u32 s20, s19, 4096")
        for i in range(lo, hi):
            if i == lo or i == 4: a(f"s_add_u32 m0, s18, {SL[(j+1)%3]+4096*(i//4)}")
            a(f"buffer_load_dwordx4 v1, s[52:55], s{19+i//4} offen offset:{1024*(i%4)} sc1 lds")
        vm.add(f"h{j}", hi - lo)
    hdma(0)
    vm.wait("h0", upto=T0N); a("s_barrier")
    stamp(a, 11)
    hdma(1, 0, 3)
    vm.wait("h0"); a("s_barrier")
    hdma(1, 3, 8)
    for k in range(max(0, W2PRE - 2)): w2grab(); freeA.pop()
    a("v_lshrrev_b32 v5, 3, v2"); a("v_min_u32 v5, 6, v5"); a("v_lshlrev_b32 v5, 2, v5"); a("v_lshrrev_b32 v5, v5, s51"); a("v_and_b32 v5, 15, v5")
    a("v_and_b32 v6, 7, v2"); a("v_lshl_add_u32 v5, v5, 3, v6"); a("v_lshl_add_u32 v5, v5, 3, s15"); a("v_lshlrev_b32 v5, 7, v5")
    sv = (list(vm.q), list(freeA), dict(st), dict(where))
    a("s_cmp_eq_u32 s15, 3"); a("s_cbranch_scc1 m_spC")
    H2 = False
    for j in range(1, 8):
        if j == 1:
            if EARLY2: hdma(2, 0, EARLY2)
        else:
            if j == 2 and EARLY2 < 8: hdma(2, EARLY2, 8)
            if j + 1 < 8: hdma(j + 1)
            for k in range(W2SCH[j - 2]): w2step()
            while st["g"] < min(8, st["f"] - W2SCH[j - 2]): w2grab()
        if j == 7:
            while st["f"] < 12: w2step()
            while st["g"] < 8: w2grab()
            w2dma(12, SL[0]); w2dma(13, SL[0] + 4096)
        vm.wait(f"h{j}")
        if j == 7 and FPRE: fload(a, 0, FBN[0])
        a("s_barrier")
        if j == 7 and not FPRE: fload(a, 0, FBN[0])
        if j == 4: stamp(a, 12)
    a("s_branch m_spJ")
    a("m_spC:")
    fin = dict(where); finq = list(vm.q)
    vm.q[:] = sv[0]; freeA[:] = sv[1]; st.update(sv[2]); where.clear(); where.update(sv[3])
    vm.wait("h1"); a("s_barrier")
    while st["f"] < 12: w2step()
    while st["g"] < 8: w2grab()
    w2dma(12, SL[0]); w2dma(13, SL[0] + 4096)
    if SPS: a(f"s_sleep {SPS}")
    fload(a, 0, FBN[0])
    assert all(fin[k] == where[k] for k in range(8, 14)), (fin, where)
    n = 0
    while n < min(len(vm.q), len(finq)) and vm.q[-1-n] == finq[-1-n]: n += 1
    assert n >= 8
    vm.q[:] = vm.q[len(vm.q)-n:]
    a("m_spJ:")
    stamp(a, 16)
    return vm, where, w2read
def m_phaseD(a, vm, where, w2read):
    ACC = 16; RG = [80, 88, 224, 232, 240]
    def need(b):
        _lab[0] += 1; n = _lab[0]
        a(f"s_cmp_eq_u32 {fv(b)}, s{sNON}"); a(f"s_cbranch_scc1 nok{n}")
        a(f"v_mov_b32 v248, s{FO+b}")
        a("s_mov_b64 exec, 1")
        poll(a, [FLD], [250], sleep=FSLEEP)
        a("s_mov_b64 exec, -1")
        a(f"nok{n}:")
    def htouch(lo, hi):
        if not HT: return
        m = 255 << (8 * lo)
        a(f"s_mov_b32 s8, {hex(m & 0xffffffff)}"); a(f"s_mov_b32 s9, {hex(m >> 32)}")
        for b in range(lo + 1, hi):
            m = 255 << (8 * (b & 3))
            a(f"s_cmp_eq_u32 {fv(b)}, s{sNON}"); a(f"s_cselect_b32 s5, {hex(m)}, 0"); a(f"s_or_b32 s{8+b//4}, s{8+b//4}, s5")
        a("s_mov_b64 exec, s[8:9]")
        a("buffer_load_dword v6, v5, s[60:63], 0 offen sc1"); vm.add("t")
        a("s_mov_b64 exec, -1")
    a("s_waitcnt lgkmcnt(0)"); need(0)
    htouch(0, FBN[0])
    stamp(a, 17)
    slot = {}; free = list(RG); WL = {}
    def hload(i):
        b = free.pop(0); slot[i] = b
        a(f"buffer_load_dwordx4 {q4(b)}, v10, s[60:63], {so(i)} offen sc1")
        a(f"buffer_load_dwordx4 {q4(b+4)}, v11, s[60:63], {so(i)} offen sc1")
        vm.add(i, 2)
    nxt = 0
    def hnext():
        nonlocal nxt
        if nxt and nxt % 4 == 0:
            b = nxt // 4
            if b in FBN: a("s_waitcnt lgkmcnt(0)")
            need(b)
            if b in FBN[:-1]: htouch(b, FBN[FBN.index(b) + 1])
        if nxt % 4 == 4 - FLEAD and (nxt // 4 + 1) in FBN[:-1]: fload(a, nxt // 4 + 1, FBN[FBN.index(nxt // 4 + 1) + 1])
        hload(nxt); nxt += 1
    for i in range(5): hnext()
    a("s_lshl_b32 s6, s14, 1"); a("s_lshr_b32 s7, s11, 1"); a("s_add_u32 s19, s6, s7")
    a("s_lshl_b32 s20, s15, 6"); a("s_and_b32 s7, s11, 1"); a("s_lshl_b32 s7, s7, 5"); a("s_add_u32 s20, s20, s7")
    a("s_lshl_b32 s5, s19, 15"); a("s_lshl_b32 s7, s20, 6"); a("s_add_u32 s5, s5, s7"); a(f"s_add_u32 s5, s5, {hex(HB)}")
    srd(a, 52, "s5", 2048)
    a("s_lshl_b32 s21, s11, 11"); a(f"s_add_u32 s21, s21, {RES}")
    a("v_bfe_u32 v14, v2, 2, 2"); a("v_lshrrev_b32 v7, 5, v2"); a("v_lshl_add_u32 v14, v7, 4, v14"); a("v_lshlrev_b32 v14, 6, v14")
    a("v_bfe_u32 v7, v2, 4, 1"); a("v_lshl_add_u32 v14, v7, 5, v14"); a("v_and_b32 v7, 3, v2"); a("v_lshl_add_u32 v14, v7, 3, v14")
    a("v_add_u32 v14, s21, v14")
    a("s_lshl_b32 s5, s19, 8"); a(f"s_add_u32 s5, s5, {hex(R2G)}")
    a("v_and_b32 v15, 31, v2"); a("v_lshl_add_u32 v15, v15, 3, s5")
    a("s_lshl_b32 s5, s19, 15"); a("s_lshl_b32 s7, s20, 1"); a("s_add_u32 s5, s5, s7")
    a("v_and_b32 v4, 15, v2"); a("v_lshlrev_b32 v4, 10, v4"); a("v_lshrrev_b32 v7, 4, v2"); a("v_lshl_add_u32 v4, v7, 4, v4"); a("v_add_u32 v4, s5, v4")
    HR = W2R + 32; HP = W2R + 48; SR = W2R + 56
    for j in range(1, 4):
        a(f"s_xor_b32 s6, s11, {j}"); a("s_mul_i32 s6, s6, 12288"); a(f"s_add_u32 s6, s6, {RED}"); a(f"v_add_u32 v{250+j}, s6, v3")
    a("s_mul_i32 s6, s11, 12288"); a(f"s_add_u32 s6, s6, {RED}"); a("v_add_u32 v249, s6, v3")
    a("v_add_u32 v7, 16384, v4")
    dq = []; wn = [NREG]
    def wnext():
        i = wn[0]; wn[0] += 1
        b = free.pop(0); WL[i] = b; w2read(b, where[i // 2], i % 2); dq.extend([i] * 4)
    def dwait(i):
        ks = [j for j, x in enumerate(dq) if x == i]
        if ks: a(f"s_waitcnt lgkmcnt({min(15, len(dq)-1-ks[-1])})"); del dq[:ks[-1]+1]
    def mf(i, j):
        wb = W2R + 8 * i if i < NREG else WL[i]
        c = f"v[{ACC+16*j}:{ACC+16*j+15}]"
        if os.environ.get("G16"):
            for h in range(2):
                c0 = ACC + 16 * j + 8 * (i & 1) + 4 * h
                a(f"v_mfma_f32_16x16x32_bf16 {q4(c0)}, {q4(wb+4*((j^h)&1))}, {q4(slot[i]+4*(j>>1))}, {q4(c0) if i > 1 else 0}")
            return
        a(f"v_mfma_f32_32x32x16_bf16 {c}, {q4(wb+4*(j&1))}, {q4(slot[i]+4*(j>>1))}, {c if i else 0}")
    for i in range(28 - NL):
        vm.wait(i); dwait(i)
        for j in range(4): mf(i, j)
        free.append(slot[i])
        if not (4 <= i < 8): free.append(W2R + 8 * i if i < NREG else WL[i])
        if i == B9AT:
            a("s_barrier")
            a("s_mov_b32 m0, s21")
            a("buffer_load_dwordx4 v3, s[52:55], 0 offen sc1 lds"); a("buffer_load_dwordx4 v3, s[52:55], 0 offen offset:1024 sc1 lds"); vm.add("r", 2)
            a(f"global_load_dwordx2 {pr(SR)}, v15, {sp(sWS)} sc1"); vm.add("g")
        tgt = i + 3 if i + 3 <= 28 - NL else min(28, 28 - NL + 2 * (i + 3 - (28 - NL)))
        while wn[0] < min(28, tgt): wnext()
        want = min(28, i + 1 + HDEP)
        while nxt < want and free:
            if nxt % 4 == 0 and (nxt // 4) in FBN[:-1]: dq.clear()
            hnext()
        if i in (3, 8, 12, 16, 20): stamp(a, {3: 13, 8: 14, 12: 15, 16: 18, 20: 26}[i])
    assert nxt == 28
    while wn[0] < 28: wnext()
    def red_w(j): return [f"ds_write_b128 v{250+j}, {q4(ACC+16*j+4*q)} offset:{4096*(j-1)+1024*q}" for q in range(4)]
    pend = []
    for j in (3, 2, 1, 0):
        for k, i in enumerate(range(28 - NL, 28)):
            if j == 3: vm.wait(i); dwait(i)
            mf(i, j)
            if NL >= 2 and j < 2 and k < 2:
                if j == 1 and k == 0: a("s_waitcnt lgkmcnt(4)")
                for q in range(4 * (1 - j) + 2 * k, 4 * (1 - j) + 2 * k + 2): a(f"v_lshlrev_b32 v{HR+2*q}, 16, v{HP+q}"); a(f"v_and_b32 v{HR+2*q+1}, s4, v{HP+q}")
            if k >= 1:
                n = -(-len(pend) // max(1, NL - k))
                for x in pend[:n]: a(x)
                del pend[:n]
        if j == 3:
            vm.wait("g")
            for k in range(4): a(f"ds_read_b64_tr_b16 {pr(HP+2*k)}, v14 offset:{256*k}")
        if j: pend += red_w(j)
    stamp(a, 19)
    for x in pend: a(x)
    check_or_poll(a, f"global_load_dwordx2 {pr(SR)}, v15, {sp(sWS)} sc1", SR + 1, sleep=1)
    if NL < 2:
        a("s_waitcnt lgkmcnt(12)")
        for k in range(8): a(f"v_lshlrev_b32 v{HR+2*k}, 16, v{HP+k}"); a(f"v_and_b32 v{HR+2*k+1}, s4, v{HP+k}")
    a("s_waitcnt lgkmcnt(0)"); a("s_barrier")
    stamp(a, 20)
    O = ACC; P = 160
    for j in range(3):
        for q in range(4): a(f"ds_read_b128 {q4(P+16*j+4*q)}, v249 offset:{4096*j+1024*q}")
    for j in range(3):
        a(f"s_waitcnt lgkmcnt({4*(2-j)})")
        for p in range(8): a(f"v_pk_add_f32 {pr(O+2*p)}, {pr(O+2*p)}, {pr(P+16*j+2*p)}")
    for p in range(8): a(f"v_pk_fma_f32 {pr(O+2*p)}, {pr(O+2*p)}, {pr(SR)}, {pr(HR+2*p)} op_sel:[0,0,0] op_sel_hi:[1,0,1]")
    for p in range(8): a(f"v_cvt_pk_bf16_f32 v{80+p}, v{O+2*p}, v{O+2*p+1}")
    for p in range(4): a(f"v_permlane16_swap_b32 v{80+p}, v{84+p}")
    a(f"global_store_dwordx4 v4, {q4(80)}, {sp(sOUT)} {OUTFL}")
    a(f"global_store_dwordx4 v7, {q4(84)}, {sp(sOUT)} {OUTFL}")
    stamp(a, 21)
    a("s_or_b32 s5, s2, s11"); a("s_cmp_lg_u32 s5, 0"); a("s_cbranch_scc1 m_noep")
    a(f"s_mov_b32 s5, {hex(EPO)}"); flag_store(a, "s5", 8)
    a("m_noep:")

def x_entry(a):
    T = 16
    a("v_and_b32 v2, 63, v0")
    a("v_lshrrev_b32 v28, 5, v2"); a("v_and_b32 v29, 31, v2")
    a("v_lshlrev_b32 v3, 12, v28"); a("v_lshl_add_u32 v3, v29, 3, v3")
    a("s_lshl_b32 s6, s2, 13"); a("s_lshl_b32 s7, s11, 8"); a("s_add_u32 s7, s7, s6"); a("v_add_u32 v3, s7, v3")
    a("s_waitcnt lgkmcnt(0)")
    stamp(a, 23)
    for i in range(4): a(f"global_load_dwordx2 {pr(T+2*i)}, v3, {sp(sX)} offset:{1024*i} {NT}")
    epoch_load(a)
    a("s_lshl_b32 s5, s3, 2"); a(f"s_load_dword s23, {sp(sDSK)}, s5")
    a("s_barrier")
def x_addr(a):
    a("v_lshrrev_b32 v24, 1, v29"); a("v_lshlrev_b32 v24, 8, v24"); a("v_and_b32 v25, 1, v29"); a("v_lshl_add_u32 v24, v25, 5, v24"); a("v_lshl_add_u32 v24, v28, 4, v24")
    a("s_lshr_b32 s6, s2, 1"); a("s_lshl_b32 s6, s6, 14"); a("s_and_b32 s7, s2, 1"); a("s_lshl_b32 s7, s7, 6"); a("s_add_u32 s6, s6, s7")
    a("s_lshl_b32 s7, s11, 12"); a("s_add_u32 s6, s6, s7"); a(f"s_add_u32 s6, s6, {hex(XT)}"); a("v_add_u32 v24, s6, v24")
    a("v_bfe_u32 v25, v2, 2, 2"); a("v_bfe_u32 v26, v2, 4, 1"); a("v_lshl_add_u32 v25, v25, 1, v26"); a("v_lshl_add_u32 v25, v28, 3, v25")
    a("s_lshl_b32 s7, s11, 6"); a(f"s_add_u32 s7, s7, {MISC}"); a("v_lshl_add_u32 v25, v25, 2, s7")
    a("v_and_b32 v27, 3, v2"); a("v_lshlrev_b32 v27, 4, v27"); a(f"v_add_u32 v26, {MISC}, v27")
    a("s_lshl_b32 s6, s2, 6"); a(f"s_add_u32 s6, s6, {hex(G1)}"); a("v_add_u32 v27, s6, v27")
    a(f"v_mov_b32 v30, {CNT}"); a("v_mov_b32 v31, 1")
def h_xrole(a):
    T = 16; F = 48; R = 64
    a("s_waitcnt lgkmcnt(0)")
    epoch_mix(a)
    a("s_lshl_b32 s72, s23, 16"); a("s_mov_b32 s73, s72"); a("s_and_b32 s74, s23, 0xffff0000"); a("s_mov_b32 s75, s74")
    a(f"v_mov_b32 v79, s{sNON}")
    stamp(a, 25)
    a("s_waitcnt vmcnt(0)")
    stamp(a, 27)
    for x, y in ((1, 2), (3, 6), (2, 4), (5, 6)): a(f"v_swap_b32 v{T+x}, v{T+y}")
    for e in range(2): a(f"global_store_dwordx4 v24, {q4(T+4*e)}, {sp(sWS)} offset:{128*e} sc1")
    stamp(a, 1)
    if W3 == 3: warm3(a, W3F)
    for e in range(2):
        for r in range(4):
            o = R + 4 * (r >> 1) + (r & 1)
            a(f"v_dot2_f32_bf16 v{o}, v{T+4*e+r}, s21, {('v%d' % o) if e else 0}")
            a(f"v_dot2_f32_bf16 v{o+2}, v{T+4*e+r}, v{T+4*e+r}, {('v%d' % (o+2)) if e else 0}")
    for k in range(4): a(f"v_add_f32_dpp v{R+k}, v{R+k}, v{R+k} row_ror:8 row_mask:0xf bank_mask:0x3")
    for k in range(4): a(f"v_add_f32_dpp v{R+k}, v{R+4+k}, v{R+4+k} row_ror:8 row_mask:0xf bank_mask:0xc")
    for k in range(2): a(f"v_add_f32_dpp v{R+k}, v{R+k}, v{R+k} row_half_mirror row_mask:0xf bank_mask:0x5")
    for k in range(2): a(f"v_add_f32_dpp v{R+k}, v{R+2+k}, v{R+2+k} row_half_mirror row_mask:0xf bank_mask:0xa")
    a(f"v_permlane16_swap_b32 v{R}, v{R+1}"); a(f"v_add_f32 v{R}, v{R}, v{R+1}")
    for ctl in ("quad_perm:[1,0,3,2]", "quad_perm:[2,3,0,1]"): a(f"v_add_f32_dpp v{R}, v{R}, v{R} {ctl} {DPP}")
    a("s_mov_b32 exec_lo, 0x11111111"); a("s_mov_b32 exec_hi, 0x11111111")
    a(f"ds_write_b32 v25, v{R}")
    a("s_mov_b64 exec, 1")
    a("ds_add_u32 v30, v31")
    a("s_mov_b64 exec, -1")
    lds_spin(a, 30, 4, 4)
    for w in range(4): a(f"ds_read_b128 {q4(F+4*w)}, v26 offset:{64*w}")
    a("s_waitcnt lgkmcnt(0)")
    for k in range(2):
        a(f"v_pk_add_f32 {pr(F+2*k)}, {pr(F+2*k)}, {pr(F+4+2*k)}"); a(f"v_pk_add_f32 {pr(F+8+2*k)}, {pr(F+8+2*k)}, {pr(F+12+2*k)}")
    for k in range(2): a(f"v_pk_add_f32 {pr(F+2*k)}, {pr(F+2*k)}, {pr(F+8+2*k)}")
    b0 = Asm(); b1 = Asm()
    ln_final(b0, F, F + 2, 72, 76, 68); ln_final(b1, F + 1, F + 3, 73, 77, 70)
    for x, y in zip(b0.l, b1.l): a(x); a(y)
    a("v_rcp_f32 v76, v76"); a("v_rcp_f32 v77, v77")
    a("v_lshrrev_b32 v72, 16, v72"); a("v_or_b32 v78, v72, v73")
    stamp(a, 22)
    a(f"s_waitcnt vmcnt({(1 + W3F) if W3 == 3 else 0})")
    a("s_mov_b64 exec, 1")
    a("ds_add_rtn_u32 v4, v30, v31")
    a("s_waitcnt lgkmcnt(0)")
    a("v_readfirstlane_b32 s7, v4")
    a("s_mov_b64 exec, 0xf")
    a("s_cmp_lg_u32 s7, 7"); a("s_cbranch_scc1 x_nost")
    a(f"global_store_dwordx4 v27, v[76:79], {sp(sWS)} sc1")
    a("x_nost:")
    a("s_mov_b64 exec, -1")
    stamp(a, 2)
    if W3 == 4: warm3(a, W3F)
    if TLBW == 1: tlbw(a)
    if XWAIT:
        if XMIN: a(f"s_sleep {XMIN}")
        lds_spin(a, 30, 4, 2, off=4, sleep=1)
    if XPRE: a(f"s_sleep {XPRE}")
def w1_setup(a, sb, vb):
    a("s_lshl_b32 s5, s13, 7")
    for m, p in enumerate((sWG, sWU)):
        d = sb + 4 * m
        a(f"s_add_u32 s{d}, s{p}, s5"); a(f"s_addc_u32 s{d+1}, s{p+1}, 0")
        if m: a(f"s_sub_u32 s{d}, s{d}, 1024"); a(f"s_subb_u32 s{d+1}, s{d+1}, 0")
        a(f"s_and_b32 s{d+1}, s{d+1}, 0xffff")
        a(f"s_mov_b32 s{d+2}, {511*3584+128+1024*m}"); a(f"s_mov_b32 s{d+3}, 0x00020000")
    a("v_lshrrev_b32 v5, 3, v2"); a("v_mul_u32_u24 v5, 3584, v5"); a("v_bfe_u32 v6, v2, 4, 1"); a("v_lshlrev_b32 v6, 1, v6")
    a(f"v_and_b32 v{vb}, 7, v2"); a(f"v_xor_b32 v{vb}, v{vb}, v6"); a(f"v_xor_b32 v{vb+1}, 4, v{vb}")
    a(f"v_lshl_add_u32 v{vb}, v{vb}, 4, v5"); a(f"v_lshl_add_u32 v{vb+1}, v{vb+1}, 4, v5")
    a(f"v_add_u32 v{vb+1}, {28672-2048}, v{vb+1}")
    a("s_lshl_b32 s18, s11, 13"); a("s_mul_i32 s19, s11, 114688")
def w1_soff(a, dst, c):
    a(f"s_add_u32 s5, s34, {c}"); a("s_and_b32 s5, s5, 3"); a("s_mul_i32 s5, s5, 458752"); a(f"s_add_u32 s{dst}, s5, s19"); a(f"s_add_u32 s{dst+1}, s{dst}, 57344")
def w1_dma(a, sb, vb, so, base):
    for h in range(2):
        a(f"s_add_u32 m0, s18, {base+4096*h}")
        for i in range(4): a(f"buffer_load_dwordx4 v{vb+(i>>1)}, s[{sb+4*(i&1)}:{sb+4*(i&1)+3}], s{so+h} offen offset:{1024*i} lds")
XF = 224; W1R = 96
def h_u(a):
    GL = 112; GR = 128; XR = 144; W = 160; UPK = 184; MM = 192; RR = 200
    x_addr(a)
    late_ids(a)
    a("v_lshlrev_b32 v3, 4, v2")
    w1_setup(a, 52, 242)
    a("v_bfe_u32 v5, v2, 2, 2"); a("v_lshrrev_b32 v6, 4, v2"); a("v_lshlrev_b32 v12, 11, v6"); a("v_lshl_add_u32 v12, v5, 7, v12")
    a("v_lshrrev_b32 v5, 1, v5"); a("v_and_b32 v6, 1, v6"); a("v_lshl_add_u32 v5, v6, 1, v5"); a("v_xor_b32 v5, s11, v5"); a("v_lshl_add_u32 v12, v5, 5, v12")
    a("v_and_b32 v5, 3, v2"); a("v_lshl_add_u32 v12, v5, 3, v12"); a("v_add_u32 v13, 65536, v12")
    a("s_mov_b32 s21, 0x3f803f80")
    for c in range(4): w1_soff(a, 64 + 2 * c, c)
    a("v_lshrrev_b32 v5, 2, v2"); a("v_lshrrev_b32 v6, 4, v2"); a("v_xor_b32 v5, v5, v6")
    for i in range(4): a(f"v_mov_b32 v{84+i}, 0xbb00bb00")
    a("v_and_b32 v6, 1, v2"); a("v_lshlrev_b32 v6, 4, v6"); a("v_mov_b32 v7, 0x3f80"); a("v_lshlrev_b32 v7, v6, v7")
    a("v_and_b32 v5, 3, v5"); a("v_bfe_u32 v6, v2, 1, 1"); a("v_lshl_or_b32 v5, v5, 1, v6")
    a("v_cmp_eq_u32 vcc, 0, v5"); a("v_mov_b32 v88, 0"); a("v_mov_b32 v89, 0"); a("v_cndmask_b32 v90, 0, v7, vcc")
    a("v_cmp_eq_u32 vcc, 1, v5"); a("v_mov_b32 v92, 0"); a("v_mov_b32 v93, 0"); a("v_cndmask_b32 v91, 0, v7, vcc")
    a("v_bfe_u32 v5, v0, 3, 1"); a("v_xor_b32 v5, v5, v0"); a("v_lshlrev_b32 v5, 4, v5"); a(f"v_add_u32 v240, {YY}, v5")
    a("v_lshrrev_b32 v6, 2, v0"); a("v_lshlrev_b32 v6, 15, v6"); a("v_and_b32 v7, 3, v0"); a("v_lshl_add_u32 v6, v7, 4, v6")
    a("s_lshl_b32 s5, s3, 7"); a(f"s_add_u32 s5, s5, {hex(HB)}"); a("v_add_u32 v241, s5, v6")
    a("s_lshl_b32 s22, s11, 12"); a("s_lshl_b32 s5, s3, 4"); a("s_add_u32 s22, s22, s5"); a(f"s_add_u32 s22, s22, {hex(F2)}")
    a("s_lshl_b32 s5, s11, 12"); a("v_add_u32 v5, s5, v3")
    a(f"v_add_u32 v8, {YY}, v5"); a(f"s_add_u32 s5, s5, {YY}"); a("v_lshl_add_u32 v9, v2, 6, s5")
    if G1: a(f"v_add_u32 v5, {hex(G1)}, v5")
    a("v_lshrrev_b32 v6, 1, v0"); a("v_lshlrev_b32 v6, 14, v6"); a("v_and_b32 v7, 1, v0"); a("v_lshl_add_u32 v6, v7, 6, v6")
    a("s_lshr_b32 s5, s3, 2"); a("s_lshl_b32 s5, s5, 8"); a("s_and_b32 s6, s3, 1"); a("s_lshl_b32 s6, s6, 7"); a("s_add_u32 s5, s5, s6")
    a("s_and_b32 s6, s3, 2"); a("s_lshl_b32 s6, s6, 4"); a("s_add_u32 s5, s5, s6"); a(f"s_add_u32 s5, s5, {hex(XT)}"); a("v_add_u32 v6, s5, v6")
    a("v_lshlrev_b32 v15, 4, v0"); a(f"v_add_u32 v7, {UU+512}, v15")
    h_xrole(a)
    if XTT: a(f"global_load_dword v{XR}, v6, {sp(sWS)} sc1")
    if XPRE2: a(f"s_sleep {XPRE2}")
    stamp(a, 3)
    if W3 == 5:
        for p in range(4): a(f"global_load_dwordx4 {q4(GL+4*p)}, v5, {sp(sWS)} offset:{1024*p} sc1")
        if W3D: a(f"s_sleep {W3D}")
        warm3(a, W3F)
        a(f"s_waitcnt vmcnt({1+W3F})")
        a(f"v_cmp_ne_u32 vcc, s{sNON}, v{GL+3}")
        for p in range(1, 4): a(f"v_cmp_ne_u32 s[94:95], s{sNON}, v{GL+4*p+3}"); a("s_or_b64 vcc, vcc, s[94:95]")
        a("s_cbranch_scc0 h_p1ok")
        a("s_mov_b64 exec, vcc")
    poll(a, [f"global_load_dwordx4 {q4(GL+4*p)}, v5, {sp(sWS)} offset:{1024*p} sc1" for p in range(4)], [GL + 4 * p + 3 for p in range(4)], sleep=P1SL, pre=P1PRE)
    if W3 == 5: a("s_mov_b64 exec, -1"); a("h_p1ok:")
    stamp(a, 4)
    a(f"global_load_dwordx4 {q4(XR)}, v6, {sp(sWS)} sc1")
    a(f"global_load_dwordx4 {q4(XR+4)}, v6, {sp(sWS)} offset:16 sc1")
    if W3 == 6: warm3(a, W3F)
    for p in range(4): a(f"ds_write_b128 v8, {q4(GL+4*p)} offset:{1024*p}")
    for p in range(4): a(f"ds_read_b128 {q4(GR+4*p)}, v9 offset:{16*p}")
    a("s_waitcnt lgkmcnt(0)")
    for p in range(4):
        a(f"v_lshlrev_b32 v{MM+2*p}, 16, v{GR+4*p+2}"); a(f"v_and_b32 v{MM+2*p+1}, s4, v{GR+4*p+2}")
    for p in range(4): a(f"v_pk_mul_f32 {pr(MM+2*p)}, {pr(MM+2*p)}, {pr(GR+4*p)} neg_lo:[1,0] neg_hi:[1,0]")
    a(f"s_waitcnt vmcnt({(1 + W3F) if W3 == 6 else 0})")
    stamp(a, 5)
    for j in range(8):
        a(f"v_lshlrev_b32 v{XF+j}, 16, v{XR+j}"); a(f"v_and_b32 v{XF+8+j}, s4, v{XR+j}")
    cp = [(ch, p) for ch in range(2) for p in range(4)]
    for i, (ch, p) in enumerate(cp): a(f"v_pk_fma_f32 {pr(W+2*i)}, {pr(XF+8*ch+2*p)}, {pr(GR+4*p)}, {pr(MM+2*p)}")
    for i, (ch, p) in enumerate(cp):
        a(f"v_cvt_pk_bf16_f32 v{UPK+4*ch+3-p}, v{W+2*i+1}, v{W+2*i}")
        if p == 3: a(f"ds_write_b128 v7, {q4(UPK+4*ch)} offset:{UCH*ch}")
    a("s_waitcnt lgkmcnt(0)")
    stamp(a, 6)
    a("s_barrier")
    return [f"v_pk_fma_f32 {pr(XF+2*i)}, {pr(W+2*i)}, s[{72+2*ch}:{73+2*ch}], {pr(XF+2*i)}" for i, (ch, p) in enumerate(cp)]
def h_phaseB(a, deferred):
    vm = VM(a)
    a(f"s_setprio {BPRIO}")
    if TLBW == 3: tlbw(a)
    a("s_cmp_eq_u32 s15, 3"); a("s_cbranch_scc1 h_spB")
    for c in range(NPRE): w1_dma(a, 52, 242, 64 + 2 * c, SL[c])
    SM = 76
    def grab(c, slot):
        for k in range(8):
            for h in range(2): a(f"ds_read_b64_tr_b16 {pr(W1R+32*c+4*k+2*h)}, v{12+slot//2} offset:{(slot%2)*32768+8192*(k>>1)+1024*(k&1)+512*h}")
    def sum1(c, k): a(f"v_mfma_f32_16x16x32_bf16 {q4(SM+4*(k&1))}, v[84:87], {q4(W1R+32*c+4*k)}, {q4(SM+4*(k&1)) if (c or k > 1) else 0}")
    def sums(c):
        for k in range(8): sum1(c, k)
    stamp(a, 7)
    a("s_branch h_spJ")
    a("h_spB:")
    if WARM2: warm2(a)
    a("h_spJ:")
    if TLBW == 2: tlbw(a)
    for x in deferred: a(x)
    a("s_mov_b32 s8, 0x00003f80"); a("s_mov_b32 s9, 0x3f800000")
    stamp(a, 9)
    a("s_setprio 2")
    a("s_barrier")
    stamp(a, 10)
    R = 16; U = 32
    for w in range(4): a(f"ds_read_b128 {q4(R+4*w)}, v240 offset:{4096*w}")
    for ch in range(2):
        a(f"s_waitcnt lgkmcnt({2*(1-ch)})")
        if FDOT:
            for p in range(4):
                for h in range(2): a(f"v_dot2_f32_bf16 v{U+2*p+h}, v{R+8*ch+p}, s{8+h}, v{XF+8*ch+2*p+h}")
            for p in range(4):
                for h in range(2): a(f"v_dot2_f32_bf16 v{U+2*p+h}, v{R+8*ch+4+p}, s{8+h}, v{U+2*p+h}")
        else:
            for hlf in range(2):
                for p in range(4):
                    a(f"v_lshlrev_b32 v{U+8*hlf+2*p}, 16, v{R+8*ch+4*hlf+p}"); a(f"v_and_b32 v{U+8*hlf+2*p+1}, s4, v{R+8*ch+4*hlf+p}")
            for p in range(4): a(f"v_pk_add_f32 {pr(U+2*p)}, {pr(U+2*p)}, {pr(U+8+2*p)}")
            for p in range(4): a(f"v_pk_add_f32 {pr(U+2*p)}, {pr(U+2*p)}, {pr(XF+8*ch+2*p)}")
        for p in range(4): a(f"v_cvt_pk_bf16_f32 v{48+4*ch+p}, v{U+2*p}, v{U+2*p+1}")
        a(f"global_store_dwordx4 v241, {q4(48+4*ch)}, {sp(sWS)} offset:{64*ch} sc1"); vm.add("s")
    stamp(a, 11)
    a("s_cmp_eq_u32 s15, 3"); a("s_cbranch_scc1 h_spare")
    if C3AT == 0: w1_dma(a, 52, 242, 70, SL[3])
    a(f"s_waitcnt vmcnt({10 if C3AT == 0 else 2})")
    a("s_barrier")
    if C3AT == 1: w1_dma(a, 52, 242, 70, SL[3])
    grab(0, 0); grab(1, 1)
    a("s_waitcnt vmcnt(8)"); flag_store(a, "s22", 8); stamp(a, 12)
    a("s_waitcnt lgkmcnt(15)"); grab(2, 2)
    sums(0)
    a("s_waitcnt lgkmcnt(0)")
    sums(1); sums(2)
    a("s_waitcnt vmcnt(1)")
    a("s_barrier")
    grab(3, 3)
    h_addr(a, after=True)
    for k in range(8):
        a(f"s_waitcnt lgkmcnt({14-2*k})")
        sum1(3, k)
KORD = [4 * (n & 3) + (n >> 2) for n in range(16)]
def h_addr(a, after=False):
    if after:
        a("v_bfe_u32 v6, v2, 2, 2"); a("v_lshrrev_b32 v8, 4, v2"); a("v_lshl_add_u32 v6, v8, 3, v6"); a("v_lshlrev_b32 v6, 6, v6")
        a("v_and_b32 v7, 1, v8"); a("v_lshl_add_u32 v6, v7, 5, v6"); a("v_and_b32 v7, 3, v2"); a("v_lshl_add_u32 v12, v7, 3, v6")
        a("v_add_u32 v13, 65536, v12"); a("v_xor_b32 v10, 32, v12"); a("v_xor_b32 v11, 32, v13")
    else:
        a("v_bfe_u32 v6, v2, 2, 2"); a("v_lshrrev_b32 v8, 5, v2"); a("v_lshl_add_u32 v6, v8, 3, v6"); a("v_lshlrev_b32 v6, 6, v6")
        a("v_bfe_u32 v7, v2, 4, 1"); a("v_xor_b32 v7, v7, v8"); a("v_lshl_add_u32 v6, v7, 5, v6"); a("v_and_b32 v7, 3, v2"); a("v_lshl_add_u32 v12, v7, 3, v6")
def h_phaseC(a):
    cen = []
    pre = Asm()
    pre("s_lshl_b32 s5, s12, 2"); pre("s_mul_i32 s5, s5, 112"); pre("s_lshl_b32 s6, s13, 2"); pre("s_add_u32 s5, s5, s6"); pre("s_add_u32 s5, s5, s11")
    pre("s_lshl_b32 s5, s5, 11"); pre(f"s_add_u32 s5, s5, {hex(HF)}"); srd(pre, 60, "s5", 0 if os.environ.get('NOST') else 4 * 229376)
    pre("s_mul_i32 s22, s12, 28"); pre("s_add_u32 s22, s22, s13")
    pre("s_lshl_b32 s22, s22, 7"); pre(f"s_add_u32 s22, s22, {hex(F3)}")
    pre("v_mov_b32 v5, s22"); pre(f"v_mov_b32 v6, s{sNON}")
    pre(f"v_mov_b32 v14, {SL[1]}"); pre("s_lshl_b32 s5, s11, 2"); pre("v_add_u32 v15, s5, v14")
    DB = 16; LAGC = 2
    a("s_nop 7")
    for n in range(32 + LAGC):
        if n < 32:
            d = DB + 8 * (n % 4); w = W1R + 4 * n; cm = q4(76 + 4 * (n & 1))
            a(f"v_mfma_f32_16x16x32_bf16 {q4(d)}, v[90:93], {q4(w)}, {cm}")
        if n >= LAGC:
            d2 = DB + 8 * ((n - LAGC) % 4); w2 = W1R + 4 * (n - LAGC)
            for j in range(2): a(f"v_cvt_pk_bf16_f32 v{w2+j}, v{d2+2*j}, v{d2+2*j+1}")
        if n < 32: a(f"v_mfma_f32_16x16x32_bf16 {q4(d+4)}, v[88:91], {q4(w)}, {cm}")
        if n >= LAGC:
            for j in range(2, 4): a(f"v_cvt_pk_bf16_f32 v{w2+j}, v{d2+2*j}, v{d2+2*j+1}")
        if n < len(pre.l): a(pre.l[n])
    assert len(pre.l) <= 32
    a(f"s_setprio {CPRIO}")
    stamp(a, 13)
    ACC = [16, 32]; NB = 5; BFR = [48, 56, 64, 72, 224]; PK = 80; LEAD = 3
    def rd1(u):
        g, k = divmod(u, 4); j, n = divmod(g, 16); sl = (j + 1) % 3; th, h = k >> 1, k & 1
        a(f"ds_read_b64_tr_b16 {pr(BFR[g%NB]+4*th+2*h)}, v{(10 if th else 12)+sl//2} offset:{(sl%2)*32768+2048*KORD[n]+256*h}")
    def epi(ai):
        b = ACC[ai]; L = []
        for q in range(8): L.append(f"v_mul_f32 v{b+q}, v{b+q}, v{b+8+q}")
        for q in range(4): L.append(f"v_cvt_pk_bf16_f32 v{PK+4*ai+q}, v{b+2*q}, v{b+2*q+1}")
        for q in range(2): L.append(f"v_permlane16_swap_b32 v{PK+4*ai+q}, v{PK+4*ai+2+q}")
        if ai == 0: L += ["s_bfe_u32 s5, s49, 0x20001", "s_mul_i32 s5, s5, 229376", "s_lshr_b32 s49, s49, 8"]
        else: L += [f"buffer_store_dwordx4 {q4(PK)}, v3, s[60:63], s5 offen sc1", f"buffer_store_dwordx4 {q4(PK+4)}, v3, s[60:63], s5 offen offset:1024 sc1"]
        return L
    a("s_barrier")
    stamp(a, 14)
    assert T0N % 2 == 0
    BL = 2; BARN = 16 - BL; F0 = 2 * T0N
    avail = 4 * F0; rd = 0
    while rd < 4 * LEAD: rd1(rd); rd += 1
    for g in range(128):
        j, n = divmod(g, 16)
        if (g == F0 - BL) or (n == BARN and j < 7):
            key = 20 if g == F0 - BL else ([1, 3, 5, 7, 9, 11, 22][j])
            assert rd == avail, (g, rd, avail)
            if g != F0 - BL: a("s_waitcnt vmcnt(0) lgkmcnt(0)" if j in (3, 5) else "s_waitcnt lgkmcnt(0)")
            if os.environ.get("BST"): stamp(a, key)
            a("s_barrier")
            if os.environ.get("BST"): stamp(a, key + 1)
            avail = 64 if g < F0 else avail + 64
        a(f"s_waitcnt lgkmcnt({min(15, rd - 4 * (g + 1))})")
        fill = epi((j - 1) & 1)[EPN*(n-1):EPN*n] if (j and n >= 1) else []
        for k in range(4):
            th, m = k >> 1, (k & 1) ^ (k >> 1)
            c = q4(ACC[j & 1] + 8 * m + 4 * th)
            a(f"v_mfma_f32_16x16x32_bf16 {c}, {q4(W1R+8*KORD[n]+4*m)}, {q4(BFR[g%NB]+4*th)}, {c if n else 0}")
            lim = min(avail, 4 * (g + LEAD) + ADV + k + 1)
            for q in range(2):
                if rd < lim: rd1(rd); rd += 1
            if k < len(fill): a(fill[k])
        if j == 7 and S6 and n == S6: a(epi(1)[-2])
        if j == 7 and n == FLAGA:
            a("s_waitcnt vmcnt(0)")
            a("s_mov_b64 exec, 1"); a("ds_write_b32 v15, v6 offset:16"); a("ds_read_b128 v[232:235], v14 offset:16"); a("s_mov_b64 exec, -1")
        if j == 7 and n == FLAGA + LEAD + 2:
            a("s_mov_b64 exec, 1")
            for k in range(4): a(f"v_cmpx_eq_u32 vcc, v6, v{232+k}")
            a("s_cbranch_execz hfa")
            a(f"global_store_dword v5, v6, {sp(sWS)} sc1")
            a("hfa:")
            a("s_mov_b64 exec, -1")
            a("v_add_u32 v5, 0x8000, v5")
            a("s_nop 1")
        if j in (3, 5) and n == BARN:
            _lab[0] += 1
            a(f"s_cmp_lg_u32 s11, 0"); a(f"s_cbranch_scc1 hf{_lab[0]}")
            a("s_mov_b64 exec, 1"); a(f"global_store_dword v5, v6, {sp(sWS)} sc1"); a("s_mov_b64 exec, -1")
            a(f"hf{_lab[0]}:")
            a("v_add_u32 v5, 0x8000, v5")
        if n == 15 and j in (0, 3) and not os.environ.get('BST'): stamp(a, 15 if j == 0 else 16)
    stamp(a, 17)
    for x in epi(1):
        if not (S6 and x == epi(1)[-2]): a(x)
    a("s_waitcnt vmcnt(0)")
    a("s_mov_b64 exec, 1")
    a("ds_write_b32 v15, v6"); a("ds_read_b128 v[8:11], v14"); a("s_waitcnt lgkmcnt(0)")
    for k in range(4): a(f"v_cmpx_eq_u32 vcc, v6, v{8+k}")
    a("s_cbranch_execz hfl")
    a(f"global_store_dword v5, v6, {sp(sWS)} sc1")
    a("hfl:")
    a("s_mov_b64 exec, -1")
    stamp(a, 18)
def h_var(a):
    a("s_barrier")
    a("s_waitcnt vmcnt(0)"); flag_store(a, "s22", 8)
    a("s_cmp_ge_u32 s11, 2"); a("s_cbranch_scc1 k_done")
    h_addr(a)
    a("s_barrier"); a("s_barrier"); a("s_barrier")
    a("s_cmp_eq_u32 s11, 0"); a("s_cbranch_scc1 v_a")
    a("s_barrier")
    a("v_a:")
    a("s_lshl_b32 s5, s11, 15"); a(f"s_add_u32 s5, s5, {SL[1]}"); a("v_add_u32 v12, s5, v12")
    for n in range(32):
        for h in range(2): a(f"ds_read_b64_tr_b16 {pr(W1R+4*n+2*h)}, v12 offset:{1024*n+256*h}")
    a("s_waitcnt lgkmcnt(0)")
    a("s_cmp_lg_u32 s11, 0"); a("s_cbranch_scc1 v_b")
    a("s_barrier")
    a("v_b:")
    for k in range(128):
        a(f"v_dot2_f32_bf16 v{16+k%2}, v{W1R+k}, s21, {('v%d' % (16+k%2)) if k >= 2 else 0}")
        a(f"v_dot2_f32_bf16 v{18+k%2}, v{W1R+k}, v{W1R+k}, {('v%d' % (18+k%2)) if k >= 2 else 0}")
    a("v_add_f32 v16, v16, v17"); a("v_add_f32 v18, v18, v19"); a("v_mov_b32 v17, v16"); a("v_mov_b32 v19, v18")
    a("v_permlane32_swap_b32 v16, v17"); a("v_permlane32_swap_b32 v18, v19"); a("v_add_f32 v16, v16, v17"); a("v_add_f32 v18, v18, v19")
    ln_final(a, 16, 18, 20, 22, 24)
    a("v_mul_f32 v22, v22, v22"); a("v_rcp_f32 v22, v22"); a(f"v_mov_b32 v23, s{sNON}")
    a("s_lshl_b32 s5, s14, 1"); a("s_add_u32 s5, s5, s11"); a("s_lshl_b32 s5, s5, 8"); a(f"s_add_u32 s5, s5, {hex(R2G)}")
    a("v_and_b32 v5, 31, v2"); a("v_lshl_add_u32 v5, v5, 3, s5")
    a("s_mov_b32 exec_hi, 0")
    a(f"global_store_dwordx2 v5, v[22:23], {sp(sWS)} sc1")

W1FL = os.environ.get("W1FL", "sc1"); NT = os.environ.get("NT", ""); W1DLY = int(os.environ.get("W1DLY", 0))
CPF = int(os.environ.get("CPF", 1))
XPRE = int(os.environ.get("XPRE", 19)); IDLEPRE = int(os.environ.get("IDLEPRE", 52)); W2B = int(os.environ.get("W2B", 5))
W2SCH = [int(c) for c in os.environ.get("W2SCH", "112222")]; ORDER = int(os.environ.get("ORDER", 2)); B9AT = int(os.environ.get("B9AT", 20)); FSLEEP = int(os.environ.get("FSLEEP", 2)); BLEAD = int(os.environ.get("BLEAD", 4)); HLEAD = int(os.environ.get("HLEAD", 7)); FBN = [int(c) for c in os.environ.get("FBN", "357")]; CLATE = int(os.environ.get("CLATE", 0)); B3B = int(os.environ.get("B3B", 1)); T0N = int(os.environ.get("T0N", 4)); SPS = int(os.environ.get("SPS", 60)); FPRE = int(os.environ.get("FPRE", 0)); FLEAD = int(os.environ.get("FLEAD", 3)); NPRE = int(os.environ.get("NPRE", 3)); W3 = int(os.environ.get("W3", 4)); W3F = int(os.environ.get("W3F", 0)); BSW = int(os.environ.get("BSW", 0)); TCH = int(os.environ.get("TCH", 2)); TCHP = int(os.environ.get("TCHP", 1)); TLBW = int(os.environ.get("TLBW", 0)); TLBF = int(os.environ.get("TLBF", 0)); W3S = int(os.environ.get("W3S", 0)); XTT = int(os.environ.get("XTT", 0)); XPRE2 = int(os.environ.get("XPRE2", 0)); C3AT = int(os.environ.get("C3AT", 1)); YOPT = int(os.environ.get("YOPT", 1)); NL = int(os.environ.get("NL", 4)); EPN = int(os.environ.get("EPN", 2)); ADV = int(os.environ.get("ADV", 3)); SNAKE = int(os.environ.get("SNAKE", 0)); CONV2 = int(os.environ.get("CONV2", 0)); FDOT = int(os.environ.get("FDOT", 0)); HT = int(os.environ.get("HT", 0)); P1SL = int(os.environ.get("P1SL", 1)); APRIO = int(os.environ.get("APRIO", 2)); CPRIO = int(os.environ.get("CPRIO", 2)); XWAIT = int(os.environ.get("XWAIT", 0)); XMIN = int(os.environ.get("XMIN", 0)); W3D = int(os.environ.get("W3D", 0)); S6 = int(os.environ.get("S6", 0)); XST = int(os.environ.get("XST", 1)); EARLY2 = int(os.environ.get("EARLY2", 8)); STN = int(os.environ.get("STN", 8)); EPK = int(os.environ.get("EPK", 0)); BPRIO = int(os.environ.get("BPRIO", 3)); WDLY = int(os.environ.get("WDLY", 8)); B3AT = int(os.environ.get("B3AT", 2)); FLAG1ST = int(os.environ.get("FLAG1ST", 1))
WARM = int(os.environ.get("WARM", 1)); WARM2 = int(os.environ.get("WARM2", 1)); WNT = os.environ.get("WNT", ""); MAP3 = int(os.environ.get("MAP3", 0)); DNT = os.environ.get("DNT", "")
DSGAP = int(os.environ.get("DSGAP", 5)); FLAGA = int(os.environ.get("FLAGA", 4))
P1PRE = int(os.environ.get("P1PRE", 0)); P2PRE = int(os.environ.get("P2PRE", 12)); P3PRE = int(os.environ.get("P3PRE", 0))
W2PRE = int(os.environ.get("W2PRE", 2)); HDEP = int(os.environ.get("HDEP", 5)); OUTFL = os.environ.get("OUTFL", "")

PORD = [[[(c + 1 + i) & 3 for i in range(4)] for c in range(4)], None, [[2, 3, 1, 0], [2, 3, 0, 1], [0, 1, 3, 2], [0, 1, 2, 3]]][ORDER]
TLBS, TLB0, TLBN, TLBS2, TLBN2 = (21, 0x1fff80, 5, 16, 0) if not TLBF else (18, 0x3ff80, 47, 16, 27)
def kernel():
    a = Asm()
    a("s_cmp_ge_u32 s2, 256"); a("s_cbranch_scc1 k_done")
    if PROF:
        a("v_mov_b32 v255, 0")
        a("s_memrealtime s[100:101]"); a("s_waitcnt lgkmcnt(0)"); a("v_writelane_b32 v255, s100, 30")
        stamp(a, 0)
    a("s_load_dwordx16 s[16:31], s[0:1], 0")
    a("s_load_dwordx16 s[32:47], s[0:1], 64")
    if CPF:
        a("s_getpc_b64 s[90:91]")
        a("k_pc:")
        a("s_bfe_u32 s5, s2, 0x30003"); a("s_mul_i32 s5, s5, 5"); a("s_lshr_b32 s5, s5, 3"); a("s_lshl_b32 s5, s5, 13")
        a("v_lshrrev_b32 v1, 3, v0"); a("v_lshl_add_u32 v1, v1, 7, s5")
        a("v_min_u32 v1, k_end-k_pc-4, v1")
        a("global_load_dword v254, v1, s[90:91]")
    a("v_lshrrev_b32 v1, 6, v0")
    a("v_readfirstlane_b32 s10, v1")
    a("v_and_b32 v0, 255, v0")
    common_ids(a)
    a("s_and_b32 s11, s10, 3")
    a("s_cmp_ge_u32 s10, 4"); a("s_cbranch_scc1 e_h")
    m_entry(a)
    a("s_branch m_main")
    a("e_h:")
    a(f"s_setprio {APRIO}")
    x_entry(a)
    h_phaseB(a, h_u(a))
    h_phaseC(a)
    stamp_out(a)
    a("s_endpgm")
    a("m_main:")
    m_kgen(a); (m_conv2 if CONV2 else m_conv)(a)
    m_phaseD(a, *m_phaseC(a))
    stamp_out(a)
    a("s_endpgm")
    a("h_spare:")
    h_var(a)
    a("k_done:")
    a("s_endpgm")
    a("k_end:")
    return a
def probe_kernel():
    w, st, nwg, mode, K = PROBE
    a = Asm()
    a("s_cmp_ge_u32 s2, 1"); a("s_cbranch_scc1 pr_done")
    a("s_load_dwordx2 s[46:47], s[0:1], 120")
    a("v_lshlrev_b32 v1, 10, v0"); a(f"v_add_u32 v1, {hex(PBUF)}, v1")
    a("s_waitcnt lgkmcnt(0)")
    n = nwg // 32
    for i in range(8):
        a(f"global_load_dword v{8+i}, v1, s[46:47]");
        if i < n: a(f"global_load_dword v{16+i}, v1, s[46:47] offset:{w*128+st*4}")
        a("v_add_u32 v1, 32768, v1")
    a("s_waitcnt vmcnt(0)")
    for i in range(1, 8): a(f"v_min_u32 v8, v8, v{8+i}")
    a("s_mov_b32 s10, -1")
    for l in range(32): a(f"v_readlane_b32 s11, v8, {l}"); a("s_min_u32 s10, s10, s11")
    for i in range(n): a(f"v_subrev_u32 v{16+i}, s10, v{16+i}")
    for i in range(1, n): a(f"{'v_add_u32' if mode else 'v_max_u32'} v16, v16, v{16+i}")
    a("s_mov_b32 s12, 0")
    for l in range(32): a(f"v_readlane_b32 s11, v16, {l}"); a(f"{'s_add_u32' if mode else 's_max_u32'} s12, s12, s11")
    a(f"s_mul_i32 s12, s12, {K}")
    if mode: a(f"s_mul_hi_u32 s12, s12, {hex((1<<32)//nwg)}")
    a("s_min_u32 s12, s12, 200000")
    a("s_memrealtime s[14:15]"); a("s_waitcnt lgkmcnt(0)")
    a("pr_l:")
    a("s_memrealtime s[16:17]"); a("s_waitcnt lgkmcnt(0)"); a("s_sub_u32 s16, s16, s14"); a("s_cmp_lt_u32 s16, s12"); a("s_cbranch_scc1 pr_l")
    a("pr_done:"); a("s_endpgm")
    return a
if __name__ == "__main__":
    a = kernel()
    kn = NAME + "_kernel"
    if PROBE:
        s = f"; @launch kernel={kn} grid=(256,1,1) block=(512,1,1) lds={LDS_TOTAL}\n; @launch kernel=probe_kernel grid=(1,1,1) block=(32,1,1) lds=0\n"
        s += '.amdgcn_target "amdgcn-amd-amdhsa--gfx950"\n.text\n' + head(kn) + a.text(True) + head("probe_kernel") + probe_kernel().text() + '.section .rodata,"a"\n' + kd(kn, 256) + kd("probe_kernel", 32)
    else:
        s = f"; @launch grid=(256,1,1) block=(512,1,1) lds={LDS_TOTAL}\n"
        s += '.amdgcn_target "amdgcn-amd-amdhsa--gfx950"\n.text\n' + head(kn) + a.text(True) + '.section .rodata,"a"\n' + kd(kn, 256)
    open(sys.argv[1] if len(sys.argv) > 1 else "f.s", "w").write(s)
```
